```python
import torch

def _softmax(x, axis=-1):
    return torch.softmax(x, dim=axis)
def _gelu(x):
    return torch.nn.functional.gelu(x, approximate="tanh")
def _silu(x):
    return torch.nn.functional.silu(x)
def _sigmoid(x):
    return torch.sigmoid(x)
def _layernorm(x, axis=-1, eps=1e-5):
    m = x.mean(dim=axis, keepdim=True)
    v = x.var(dim=axis, keepdim=True, unbiased=False)
    return (x - m) / torch.sqrt(v + eps)
def _scatter_add(tgt, idx, src, axis=0):
    return tgt.clone().index_add_(axis, idx, src)
def _segment_sum(src, seg, n):
    out = torch.zeros((n,) + src.shape[1:], dtype=src.dtype)
    return out.index_add_(0, seg, src)
def _pad(x, pw):
    flat = tuple(v for pair in reversed(pw) for v in pair)
    return torch.nn.functional.pad(x, flat)

kernel_name = 'sequential_preLN__sliding_block__mixer_channel_mlp__prompt'

def setup_inputs():

    _w = (lambda a: (lambda t: t.to(torch.bfloat16) if t.is_floating_point() else t)(torch.as_tensor(a)))
    def _A_setup():
        B, S, D = 1, 2048, 512
        return {
            "x": _w((lambda *s: torch.randn(*s, dtype=torch.bfloat16) * 0.05)(B, S, D)),
            "wqkv": _w((lambda *s: torch.randn(*s, dtype=torch.bfloat16) * 0.05)(D, 3 * D)),
            "wo": _w((lambda *s: torch.randn(*s, dtype=torch.bfloat16) * 0.05)(D, D)),
        }
    _A_in = _A_setup()

    def _B_setup():
        B, S, D, F = 1, 2048, 512, 1792
        return {
            "x": _w((lambda *s: torch.randn(*s, dtype=torch.bfloat16) * 0.05)(B, S, D)),
            "w1": _w((lambda *s: torch.randn(*s, dtype=torch.bfloat16) * 3.2)(D, F) * (D ** -0.5)),
            "b1": _w((lambda *s: torch.randn(*s, dtype=torch.bfloat16) * 1.6)(F)),
            "w2": _w((lambda *s: torch.randn(*s, dtype=torch.bfloat16) * 0.2)(F, D) * (F ** -0.5)),
            "b2": _w((lambda *s: torch.randn(*s, dtype=torch.bfloat16) * 0.2)(D)),
        }
    _B_in = _B_setup()

    return {
        "A_x": _A_in["x"],
        "A_wqkv": _A_in["wqkv"],
        "A_wo": _A_in["wo"],
        "B_x": _B_in["x"],
        "B_w1": _B_in["w1"],
        "B_b1": _B_in["b1"],
        "B_w2": _B_in["w2"],
        "B_b2": _B_in["b2"],
    }

def reference(A_x, A_wqkv, A_wo, B_x, B_w1, B_b1, B_w2, B_b2):
    def _A_ref(x, wqkv, wo):
        B, S, D = x.shape
        H = 32; Dh = D // H; W = 256
        qkv = (lambda x, *d: x.permute(*d))((x @ wqkv).reshape(B, S, 3, H, Dh), 2, 0, 3, 1, 4)
        q, k, v = qkv[0], qkv[1], qkv[2]
        scores = torch.einsum("bhqd,bhkd->bhqk", q, k) * (Dh ** -0.5)
        idx = torch.arange(S)
        mask = (idx[:, None] - idx[None, :] >= 0) & (idx[:, None] - idx[None, :] < W)
        scores = torch.where(mask[None, None], scores, -1e9)
        p = _softmax(scores, axis=-1)
        o = torch.einsum("bhqk,bhkd->bhqd", p, v)
        return (lambda x, *d: x.permute(*d))(o, 0, 2, 1, 3).reshape(B, S, D) @ wo

    def _B_ref(x, w1, b1, w2, b2):
        y = _layernorm(x, axis=-1)
        h = _gelu(torch.einsum("bsd,df->bsf", y, w1) + b1)
        return torch.einsum("bsf,fd->bsd", h, w2) + b2

    x = A_x
    h = x + _A_ref(_layernorm(x, axis=-1), A_wqkv, A_wo)
    h2 = h + _B_ref(_layernorm(h, axis=-1), B_w1, B_b1, B_w2, B_b2)
    return h2
```

```python
import re

def V(i, n=1):
    return f"v{i}" if n == 1 else f"v[{i}:{i+n-1}]"
def A(i, n=1):
    return f"a{i}" if n == 1 else f"a[{i}:{i+n-1}]"
def S(i, n=1):
    return f"s{i}" if n == 1 else f"s[{i}:{i+n-1}]"

_reg_re = re.compile(r"^(-?)(?:abs\()?([vas])(?:(\d+)|\[(\d+):(\d+)\])\)?$")

def regs_of(op):
    op = op.strip()
    if op == "vcc":
        return {"vcc"}
    if op == "exec":
        return {"exec"}
    if op == "m0":
        return {"m0"}
    m = _reg_re.match(op)
    if not m:
        return set()
    k = m.group(2)
    if m.group(3) is not None:
        return {f"{k}{m.group(3)}"}
    return {f"{k}{i}" for i in range(int(m.group(4)), int(m.group(5)) + 1)}

TRANS = ("v_exp_f32", "v_log_f32", "v_rcp_f32", "v_rsq_f32", "v_sqrt_f32", "v_sin_f32", "v_cos_f32")

class Ins:
    __slots__ = ("text", "mn", "ops", "rd", "wr", "kind", "states", "srcC", "srcAB", "wide_store")
    def __init__(self, text):
        self.text = text
        t = text.split(";")[0].strip()
        sp = t.split(None, 1)
        self.mn = sp[0]
        rest = sp[1] if len(sp) > 1 else ""
        ops, depth, cur = [], 0, ""
        for ch in rest:
            if ch in "[(":
                depth += 1
            if ch in "])":
                depth -= 1
            if ch == "," and depth == 0:
                ops.append(cur.strip()); cur = ""
            else:
                cur += ch
        if cur.strip():
            ops.append(cur.strip())
        mods = ""
        if ops:
            parts = ops[-1].split(None, 1)
            ops[-1] = parts[0]
            mods = parts[1] if len(parts) > 1 else ""
        self.ops = ops
        mn = self.mn
        rd, wr = set(), set()
        self.srcC = set(); self.srcAB = set(); self.wide_store = False
        R = [regs_of(o) for o in ops]
        allr = lambda l: set().union(*l) if l else set()
        self.states = 1
        if mn.startswith("v_mfma"):
            self.kind = "mfma"
            wr = R[0]; self.srcAB = R[1] | R[2]; self.srcC = R[3]; rd = self.srcAB | self.srcC
        elif mn.startswith("v_"):
            self.kind = "valu"
            if mn.startswith(TRANS):
                self.kind = "trans"
            if mn.startswith("v_dot2"):
                self.kind = "dot"
            if mn.startswith("v_permlane"):
                wr = R[0] | R[1]; rd = R[0] | R[1]
            elif mn.startswith(("v_dot2c", "v_fmac")):
                wr = R[0]; rd = allr(R)
            else:
                wr = R[0]; rd = allr(R[1:])
            if mn.startswith("v_cndmask") and len(ops) == 3:
                rd = rd | {"vcc"}
            if mn.startswith("v_cmpx"):
                raise ValueError("no cmpx")
        elif mn.startswith("ds_read"):
            self.kind = "dsr"; wr = R[0]; rd = R[1]
        elif mn.startswith("ds_write") or mn.startswith("ds_add"):
            self.kind = "dsw"; rd = allr(R)
        elif mn.startswith("buffer_load") or mn.startswith("global_load"):
            if " lds" in (" " + mods) or mn.startswith("global_load_lds"):
                self.kind = "dma"; rd = allr(R) | {"m0"}
            else:
                self.kind = "vld"; wr = R[0]; rd = allr(R[1:])
        elif mn.startswith("buffer_store") or mn.startswith("global_store"):
            self.kind = "vst"; rd = allr(R)
            self.wide_store = mn.endswith(("x3", "x4"))
            if self.wide_store:
                self.srcC = R[0] if mn.startswith("buffer") else R[1]
        elif mn.startswith(("s_load", "s_memtime", "s_memrealtime")):
            self.kind = "smem"; wr = R[0]; rd = allr(R[1:])
        elif mn == "s_nop":
            self.kind = "nop"; self.states = int(ops[0]) + 1
        elif mn == "s_waitcnt":
            self.kind = "wait"
        elif mn in ("s_barrier", "s_endpgm", "s_sleep", "s_setprio"):
            self.kind = "misc"
        elif mn.startswith(("s_cbranch", "s_branch")):
            self.kind = "br"
            if "vcc" in mn: rd = {"vcc"}
            if "exec" in mn: rd = {"exec"}
        elif mn.startswith(("s_cmp", "s_bitcmp")):
            self.kind = "salu"; rd = allr(R)
        elif mn.startswith("s_"):
            self.kind = "salu"; wr = R[0]; rd = allr(R[1:])
            if mn.startswith(("s_and_saveexec", "s_or_saveexec")):
                wr = wr | {"exec"}; rd = rd | {"exec"}
        else:
            raise ValueError("unknown instruction " + text)
        self.rd, self.wr = rd, wr

VALUK = ("valu", "trans", "dot")
VMEMK = ("vld", "vst", "dma")

def need_states(p, c):
    n = 0
    isv = lambda r: r[0] in "va" and r != "vcc"
    if p.kind in VALUK:
        vw = {r for r in p.wr if isv(r)}
        sw = p.wr - vw
        if c.kind == "mfma" and (vw & c.rd):
            n = max(n, 2)
        if c.mn.startswith("v_permlane") and (vw & c.rd):
            n = max(n, 2)
        if c.mn.startswith(("v_readlane", "v_readfirstlane")) and (vw & c.rd):
            n = max(n, 1)
        if "dpp" in c.mn and (vw & c.rd):
            n = max(n, 2)
        if p.kind == "trans" and c.kind in ("valu", "dot") and (vw & c.rd):
            n = max(n, 1)
        if p.kind == "dot":
            if c.kind in VALUK + ("mfma",) + VMEMK + ("dsw", "dsr") and (vw & (c.rd | c.wr)):
                same = c.mn == p.mn
                if same:
                    ab = set()
                    for o in c.ops[1:3]:
                        ab |= regs_of(o)
                    if vw & ab:
                        n = max(n, 3)
                else:
                    n = max(n, 3)
        if sw:
            if c.kind in VMEMK and (sw & c.rd):
                n = max(n, 5)
            if c.kind in VALUK and (sw & c.rd):
                n = max(n, 4 if c.mn.startswith(("v_readlane", "v_writelane")) else 2)
    if p.kind == "mfma":
        D = p.wr
        if c.kind == "mfma":
            if D & c.srcAB:
                n = max(n, 12)
            if D & c.srcC and D != c.srcC:
                n = max(n, 10)
        elif c.kind in VALUK + VMEMK + ("dsr", "dsw"):
            if D & (c.rd | c.wr):
                n = max(n, 12)
        if c.kind in VALUK and (p.srcC & c.wr):
            n = max(n, 7)
    if p.kind == "vst" and p.wide_store:
        if c.kind in VALUK and (p.srcC & c.wr):
            n = max(n, 2)
        elif c.kind in ("mfma", "dsr", "vld") and (p.srcC & c.wr):
            n = max(n, 1)
    if p.kind == "salu" and "m0" in p.wr and c.kind == "dma":
        n = max(n, 1)
    return n

class Token:
    def __init__(self, regs, cls):
        self.regs = regs; self.cls = cls; self.after = 0; self.done = False

class State:
    def __init__(self):
        self.hist = [[]]
        self.vm = []
        self.lg = []
    def copy(self):
        s = State()
        s.hist = [list(h) for h in self.hist]
        s.vm = [list(e) for e in self.vm]
        s.lg = [list(e) for e in self.lg]
        return s

def _merge_q(qs):
    d = {}
    order = []
    for q in qs:
        for tok, after in q:
            if id(tok) in d:
                d[id(tok)][1] = min(d[id(tok)][1], after)
            else:
                e = [tok, after]; d[id(tok)] = e; order.append(e)
    order.sort(key=lambda e: -e[1])
    return order

class Emitter:
    def __init__(self):
        self.out = []
        self.st = State()
        self.incoming = {}
        self.dead = False
        self.n_nop = 0
        self.n_ins = 0
        self.uid = 0
        self.seen_labels = set()

    def comment(self, t):
        self.out.append("    ; " + t)

    def raw(self, t):
        self.out.append(t)

    def fresh(self, base):
        self.uid += 1
        return f"L_{base}_{self.uid}"

    def _push(self, ins):
        self.out.append("    " + ins.text)
        self.n_ins += 1
        newh = []
        seen = set()
        for h in self.st.hist:
            h = h + [ins]
            tot = 0; k = len(h)
            while k > 0 and tot < 24:
                k -= 1; tot += h[k].states
            h = h[k:]
            key = tuple(id(x) for x in h)
            if key not in seen:
                seen.add(key); newh.append(h)
        self.st.hist = newh

    def _do_wait(self, vm=None, lg=None):
        parts = []
        if vm is not None:
            vm = min(vm, 63); parts.append(f"vmcnt({vm})")
            self.st.vm = [e for e in self.st.vm if e[1] < vm]
        if lg is not None:
            lg = min(lg, 15); parts.append(f"lgkmcnt({lg})")
            if lg == 0:
                self.st.lg = []
            else:
                assert not any(e[0].cls == "smem" for e in self.st.lg), "counted lgkm wait with SMEM pending"
                self.st.lg = [e for e in self.st.lg if e[1] < lg]
        if parts:
            self._push(Ins("s_waitcnt " + " ".join(parts)))

    def wait(self, vm=None, lg=None):
        self._do_wait(vm, lg)

    def wait_tok(self, *toks):
        vm = lg = None
        for tok in toks:
            for e in self.st.vm:
                if e[0] is tok:
                    vm = e[1] if vm is None else min(vm, e[1])
            for e in self.st.lg:
                if e[0] is tok:
                    lg = e[1] if lg is None else min(lg, e[1])
        if lg is not None and any(e[0].cls == "smem" for e in self.st.lg):
            lg = 0
        self._do_wait(vm, lg)

    def op(self, text):
        assert not self.dead, "code after unconditional branch without label: " + text
        ins = Ins(text)
        if ins.kind == "wait":
            raise ValueError("use wait()")
        touched = ins.rd | ins.wr
        vm = lg = None
        for tok, after in self.st.vm:
            if tok.regs & touched:
                vm = after if vm is None else min(vm, after)
        for tok, after in self.st.lg:
            if tok.regs & touched:
                lg = after if lg is None else min(lg, after)
        if lg is not None and any(e[0].cls == "smem" for e in self.st.lg):
            lg = 0
        if vm is not None or lg is not None:
            self._do_wait(vm, lg)
        need = 0
        for h in self.st.hist:
            dist = 0
            for p in reversed(h):
                n = need_states(p, ins)
                if n - dist > need:
                    need = n - dist
                dist += p.states
        while need > 0:
            k = min(need, 16)
            self._push(Ins(f"s_nop {k-1}")); self.n_nop += 1
            need -= k
        self._push(ins)
        tok = None
        if ins.kind in VMEMK:
            tok = Token(set(ins.wr), ins.kind)
            for e in self.st.vm: e[1] += 1
            self.st.vm.append([tok, 0])
        elif ins.kind in ("dsr", "dsw"):
            tok = Token(set(ins.wr), ins.kind)
            for e in self.st.lg: e[1] += 1
            self.st.lg.append([tok, 0])
        elif ins.kind == "smem":
            tok = Token(set(ins.wr), "smem")
            for e in self.st.lg: e[1] += 1
            self.st.lg.append([tok, 0])
        elif ins.kind == "br":
            tgt = ins.ops[0]
            if tgt not in self.seen_labels:
                self.incoming.setdefault(tgt, []).append(self.st.copy())
            if ins.mn == "s_branch":
                self.dead = True
        return tok

    def ops(self, lst):
        for t in lst:
            self.op(t)

    def label(self, name):
        sts = self.incoming.pop(name, [])
        if not self.dead:
            sts = sts + [self.st]
        assert sts, "unreachable label " + name
        ns = State()
        ns.hist = [h for s in sts for h in s.hist]
        ns.vm = _merge_q([s.vm for s in sts])
        ns.lg = _merge_q([s.lg for s in sts])
        self.st = ns
        self.dead = False
        self.seen_labels.add(name)
        self.out.append(name + ":")

    def loop_label(self, name):
        self.op("s_nop 7")
        self.label(name)

    def barrier(self):
        self.op("s_barrier")

    def text(self):
        assert not self.incoming, self.incoming.keys()
        return "\n".join(self.out) + "\n"


def interleave(*streams):
    streams = [s for s in streams if s]
    tot = max(len(s) for s in streams)
    idx = [0] * len(streams)
    out = []
    for step in range(1, tot + 1):
        for i, s in enumerate(streams):
            tgt = (len(s) * step + tot - 1) // tot
            while idx[i] < tgt:
                out.append(s[idx[i]]); idx[i] += 1
    return out
```

```python
import sys, math, struct
from emit import Emitter, V, A, S, interleave

NAME = "sequential_preLN__sliding_block__mixer_channel_mlp__prompt"
PROF = "--prof" in sys.argv

def f2u(x):
    return struct.unpack("<I", struct.pack("<f", x))[0]
def hx(x):
    return f"0x{x & 0xffffffff:x}"

WS_E, WS_CEN, WS_GF, WS_HALO = 0x0, 0x400, 0x1000, 0x2000
WS_K, WS_V, WS_O, WS_H, WS_G = 0x10000, 0x210000, 0x410000, 0x610000, 0x810000
WS_PROF = 0xF20000
WS_SIZE = 0x1000000
L_X, L_RING, L_MISC = 0, 65536, 147456
L_EX = L_RING + 2 * 16384
L_QX = L_MISC + 4096
L_R3 = 114688
L_CT = 131072
LDS_BYTES = 163840
sX, sWQ, sWO, sW1, sW2, sWS, sOUT, sB1, sB2 = 8, 12, 16, 20, 24, 28, 32, 36, 40
sDBG = 6
sW, sG, sM, sTB, sHQ, sXCC, sBASE, sTHI, sFAST, sELO = range(44, 54)
sT0, sT1, sT2, sT3, sT4, sT5 = range(54, 60)
sWOFF, sP, sT_ = 60, 61, 62
sONES = 63
sCM = 64
sCW, sCX = 64, 72
sLOW = 96
sM16 = 98
sPA, sPB = 100, 4
vL, vL16, vRES, vB2, vST, vTLO, vTHI = 0, 1, 2, 10, 16, 14, 15

e = Emitter()
op = e.op
stamp_n = [0]
stamp_names = []

def stamp(name):
    if not PROF:
        return
    i = stamp_n[0]; stamp_n[0] += 1
    stamp_names.append(name)
    op(f"s_memrealtime {S(sPA,2)}")
    e.wait(lg=0)
    op(f"v_writelane_b32 {V(vST)}, {S(sPA)}, {i}")

def srd(dst, src, size):
    op(f"s_mov_b32 {S(dst)}, {S(src)}")
    op(f"s_and_b32 {S(dst+1)}, {S(src+1)}, 0xffff")
    op(f"s_mov_b32 {S(dst+2)}, {hx(size)}")
    op(f"s_mov_b32 {S(dst+3)}, 0x20000")

def dma(voff, srdreg, soff, imm=0, mods=""):
    o = f" offset:{imm}" if imm else ""
    return op(f"buffer_load_dwordx4 {V(voff)}, {S(srdreg,4)}, {soff} offen{o}{mods} lds")

def mfma(d, a, b, c):
    op(f"v_mfma_f32_32x32x16_bf16 {d}, {a}, {b}, {c}")

def halves_sum(r, tmp):
    op(f"v_mov_b32 {V(tmp)}, {V(r)}")
    op(f"v_permlane32_swap_b32 {V(r)}, {V(tmp)}")
    op(f"v_add_f32 {V(r)}, {V(r)}, {V(tmp)}")

def split_hi_lo(val, hi_pk, lo, tmp):
    op(f"v_cvt_pk_bf16_f32 {V(hi_pk)}, {V(val)}, {V(val)}")
    op(f"v_and_b32 {V(tmp)}, 0xffff0000, {V(hi_pk)}")
    op(f"v_sub_f32 {V(lo)}, {V(val)}, {V(tmp)}")

def poll(voff, soff, need_mask, lo_expect, span, tlo, thi, code):
    L = e.fresh("poll"); D = e.fresh("polldone"); T = e.fresh("pollto")
    op(f"s_mov_b32 {S(sT5)}, 0x40000")
    e.wait(vm=0, lg=0)
    e.loop_label(L)
    op(f"buffer_load_dwordx2 {V(tlo,2)}, {V(voff)}, {S(sWS,4)}, {soff} offen sc1")
    e.wait(vm=0)
    op(f"v_subrev_u32 {V(tlo)}, {lo_expect}, {V(tlo)}")
    op(f"v_cmp_eq_u32 vcc, {thi}, {V(tlo+1)}")
    op(f"v_cmp_gt_u32 {S(sPA,2)}, {span}, {V(tlo)}")
    op(f"s_and_b64 vcc, vcc, {S(sPA,2)}")
    op(f"s_andn2_b64 {S(sPA,2)}, {need_mask}, vcc")
    op(f"s_cbranch_scc0 {D}")
    op(f"s_sub_u32 {S(sT5)}, {S(sT5)}, 1")
    op(f"s_cbranch_scc1 {T}")
    op(f"s_branch {L}")
    e.label(T)
    op(f"v_mov_b32 {V(tlo)}, {code}")
    op(f"v_mov_b32 {V(tlo+1)}, 0")
    op(f"global_store_dword {V(tlo+1)}, {V(tlo)}, {S(sDBG,2)}")
    e.wait(vm=0)
    e.label(D)

def stores_mode(fn):
    F = e.fresh("fast"); D = e.fresh("stdone")
    op(f"s_cmp_eq_u32 {S(sFAST)}, 1")
    op(f"s_cbranch_scc1 {F}")
    fn(" sc1")
    op(f"s_branch {D}")
    e.label(F)
    fn("")
    e.label(D)

def wave0(fn):
    D = e.fresh("w0")
    op(f"s_cmp_lg_u32 {S(sW)}, 0")
    op(f"s_cbranch_scc1 {D}")
    fn()
    e.label(D)

def group_signal(phase):
    e.wait(vm=0)
    e.barrier()
    def f():
        op(f"s_add_u32 {S(sT0)}, {S(sBASE)}, {8+phase}")
        op(f"v_mov_b32 {V(18)}, {S(sT0)}")
        op(f"v_mov_b32 {V(19)}, {S(sTHI)}")
        op(f"s_lshl_b32 {S(sT1)}, {S(sG)}, 7")
        op(f"s_lshl_b32 {S(sT2)}, {S(sM)}, 3")
        op(f"s_add_u32 {S(sT1)}, {S(sT1)}, {S(sT2)}")
        op(f"s_add_u32 {S(sT1)}, {S(sT1)}, {hx(WS_GF)}")
        op(f"v_mov_b32 {V(17)}, 0")
        op("s_mov_b64 exec, 1")
        stores_mode(lambda m: op(f"buffer_store_dwordx2 {V(18,2)}, {V(17)}, {S(sWS,4)}, {S(sT1)} offen{m}"))
        op("s_mov_b64 exec, -1")
    wave0(f)

def group_wait(phase, mask_fn):
    def f():
        mask_fn()
        op(f"v_and_b32 {V(17)}, 15, {V(vL)}")
        op(f"v_lshlrev_b32 {V(17)}, 3, {V(17)}")
        op(f"s_lshl_b32 {S(sT1)}, {S(sG)}, 7")
        op(f"s_add_u32 {S(sT1)}, {S(sT1)}, {hx(WS_GF)}")
        op(f"s_add_u32 {S(sT0)}, {S(sBASE)}, {8+phase}")
        poll(17, S(sT1), S(sT2,2), S(sT0), 4-phase, 18, S(sTHI), 0x100+phase)
    wave0(f)
    e.barrier()

KERNEL = NAME + "_kernel"
op("s_cmp_ge_u32 s2, 0x100")
op("s_cbranch_scc1 L_end")
op("s_load_dwordx16 s[44:59], s[0:1], 0")
op("s_load_dwordx4 s[60:63], s[0:1], 64")
op("s_load_dwordx2 s[4:5], s[0:1], 80")
op(f"v_lshrrev_b32 {V(17)}, 6, v0")
op(f"v_and_b32 {V(vL)}, 63, v0")
op(f"v_readfirstlane_b32 s3, {V(17)}")
op(f"v_lshlrev_b32 {V(vL16)}, 4, {V(vL)}")
if PROF:
    op(f"v_mov_b32 {V(vST)}, 0")
vXD0, vXD1, vWD0, vWD1 = 20, 21, 22, 23
vXR = 24
vWRe, vWRo, vWReH, vWRoH = 28, 29, 30, 31
op(f"v_lshrrev_b32 {V(17)}, 3, {V(vL)}")
op(f"v_lshrrev_b32 {V(18)}, 4, {V(vL)}")
op(f"v_and_b32 {V(19)}, 7, {V(vL)}")
op(f"v_xor_b32 {V(vXD0)}, {V(19)}, {V(18)}")
op(f"v_lshlrev_b32 {V(vXD0)}, 4, {V(vXD0)}")
op(f"v_lshl_add_u32 {V(vXD0)}, {V(17)}, 10, {V(vXD0)}")
op(f"v_and_b32 {V(18)}, 1, {V(18)}")
op(f"v_lshlrev_b32 {V(18)}, 2, {V(18)}")
op(f"v_xor_b32 {V(19)}, {V(19)}, {V(18)}")
op(f"v_lshlrev_b32 {V(19)}, 4, {V(19)}")
vWSW = 17
op(f"v_mul_u32_u24 {V(vWD0)}, 3072, {V(17)}")
op(f"v_add_u32 {V(vWD0)}, {V(vWD0)}, {V(19)}")
op("s_and_b32 s96, s2, 7")
op("s_lshr_b32 s97, s2, 3")
e.wait(lg=0)
srd(sX, 44, 2048*1024)
srd(sWQ, 46, 512*3072)
srd(sWO, 48, 512*1024)
srd(sW1, 52, 512*3584)
srd(sB1, 54, 1792*2)
srd(sW2, 56, 1792*1024)
srd(sB2, 58, 1024)
srd(sOUT, 60, 2048*1024)
srd(sWS, 4, WS_SIZE)
op(f"s_mov_b64 {S(sDBG,2)}, s[62:63]")
op(f"s_mov_b32 {S(sW)}, s3")
op(f"s_lshr_b32 {S(sT0)}, s97, 4")
op(f"s_lshl_b32 {S(sG)}, s96, 1")
op(f"s_add_u32 {S(sG)}, {S(sG)}, {S(sT0)}")
op(f"s_and_b32 {S(sM)}, s97, 15")
op(f"s_lshr_b32 {S(sT0)}, {S(sM)}, 3")
op(f"s_lshl_b32 {S(sTB)}, {S(sG)}, 1")
op(f"s_add_u32 {S(sTB)}, {S(sTB)}, {S(sT0)}")
op(f"s_and_b32 {S(sHQ)}, {S(sM)}, 7")
op(f"s_lshl_b32 {S(sWOFF)}, {S(sW)}, 11")
op(f"s_lshr_b32 {S(sP)}, {S(sW)}, 1")
op(f"s_and_b32 {S(sT_)}, {S(sW)}, 1")
op(f"s_mov_b32 {S(sONES)}, 0x3f803f80")
op(f"s_lshl_b32 {S(sT1)}, {S(sTB)}, 16")
op(f"s_lshl_b32 {S(sT2)}, {S(sW)}, 14")
op(f"s_add_u32 {S(sT1)}, {S(sT1)}, {S(sT2)}")
op(f"v_add_u32 {V(vXD0)}, {S(sT1)}, {V(vXD0)}")
op(f"v_xor_b32 {V(vXD1)}, 64, {V(vXD0)}")
op(f"v_add_u32 {V(vXD1)}, {8192-1024}, {V(vXD1)}")
op(f"s_mul_i32 {S(sT1)}, {S(sW)}, {16*3072}")
op(f"s_lshl_b32 {S(sT2)}, {S(sHQ)}, 7")
op(f"s_add_u32 {S(sT1)}, {S(sT1)}, {S(sT2)}")
op(f"v_add_u32 {V(vWD0)}, {S(sT1)}, {V(vWD0)}")
op(f"v_add_u32 {V(vWD1)}, {8*3072-1024}, {V(vWD0)}")
op(f"s_lshl_b32 {S(sT0)}, {S(sT0)}, 2")
op(f"s_add_u32 {S(sT4)}, {S(sT0)}, {S(sHQ)}")
stamp("start")

def chunk_offs(i):
    op(f"s_add_u32 {S(sT1)}, {S(sT4)}, {i}")
    op(f"s_and_b32 {S(sT1)}, {S(sT1)}, 7")
    op(f"s_lshl_b32 {S(sCX+i)}, {S(sT1)}, 7")
    op(f"s_mul_i32 {S(sCW+i)}, {S(sT1)}, {64*3072}")

def dma_x(i):
    op(f"s_add_u32 m0, {S(sWOFF)}, {L_X + i*8192}")
    op("s_nop 0")
    dma(vXD0, sX, S(sCX+i))
    return dma(vXD1, sX, S(sCX+i), 1024)

def dma_item(it):
    slot = it % 5
    tok = None
    for sg in range(2):
        if it < 8:
            ch, seg = it, 1 + sg
        else:
            ch, seg = 2*(it-8) + sg, 0
        op(f"s_add_u32 m0, {S(sWOFF)}, {L_RING + slot*16384 + sg*8192}")
        op(f"s_add_u32 {S(sT1)}, {S(sCW+ch)}, {seg*1024}")
        dma(vWD0, sWQ, S(sT1))
        tok = dma(vWD1, sWQ, S(sT1), 1024)
    return tok

op(f"s_add_u32 {S(sT1)}, {S(sTB)}, 1")
op(f"v_add_u32 {V(18)}, {S(sT1)}, {V(vL)}")
op(f"v_lshrrev_b32 {V(18)}, 1, {V(18)}")
op(f"v_min_u32 {V(18)}, 15, {V(18)}")
op(f"v_mov_b32 {V(19)}, {S(sG)}")
op(f"v_cmp_gt_u32 vcc, 4, {V(vL)}")
op(f"v_cndmask_b32 {V(18)}, {V(19)}, {V(18)}, vcc")
op(f"v_lshlrev_b32 {V(18)}, 3, {V(18)}")
tokE = op(f"buffer_load_dwordx2 {V(vTLO,2)}, {V(18)}, {S(sWS,4)}, 0 offen sc1")

xtok, itok = {}, {}
for i in range(5):
    chunk_offs(i)
    xtok[i] = dma_x(i)
    itok[i] = dma_item(i)
for i in range(5, 8):
    chunk_offs(i)
    xtok[i] = dma_x(i)

op(f"s_getpc_b64 {S(sPA,2)}")
e.label("L_pc")
op(f"s_sub_u32 {S(sPA)}, {S(sPA)}, L_pc-{KERNEL}")
op(f"s_subb_u32 {S(sPA+1)}, {S(sPA+1)}, 0")
op(f"s_lshl_b32 {S(sT1)}, s97, 4")
op(f"v_and_b32 {V(18)}, 15, {V(vL)}")
op(f"v_add_u32 {V(18)}, {S(sT1)}, {V(18)}")
op(f"v_lshlrev_b32 {V(18)}, 7, {V(18)}")
op(f"v_min_u32 {V(18)}, L_code_end-{KERNEL}-4, {V(18)}")
op(f"global_load_dword {V(190)}, {V(18)}, {S(sPA,2)}")

op(f"v_lshrrev_b32 {V(17)}, 5, {V(vL)}")
op(f"v_lshlrev_b32 {V(17)}, 3, {V(17)}")
op(f"s_lshl_b32 {S(sT1)}, {S(sHQ)}, 7")
op(f"s_lshl_b32 {S(sT2)}, {S(sW)}, 5")
op(f"s_add_u32 {S(sT1)}, {S(sT1)}, {S(sT2)}")
op(f"buffer_load_dwordx2 {V(vB2,2)}, {V(17)}, {S(sB2,4)}, {S(sT1)} offen")
op(f"buffer_load_dwordx2 {V(vB2+2,2)}, {V(17)}, {S(sB2,4)}, {S(sT1)} offen offset:16")

op(f"v_and_b32 {V(17)}, 31, {V(vL)}")
op(f"v_lshrrev_b32 {V(18)}, 5, {V(vL)}")
op(f"v_bfe_u32 {V(32)}, {V(vL)}, 1, 3")
op(f"v_xor_b32 {V(32)}, {V(32)}, {V(18)}")
op(f"v_lshlrev_b32 {V(32)}, 4, {V(32)}")
op(f"v_lshl_add_u32 {V(32)}, {V(17)}, 7, {V(32)}")
op(f"s_lshl_b32 {S(sT1)}, {S(sT_)}, 12")
op(f"v_add_u32 {V(32)}, {S(sT1)}, {V(32)}")
op(f"s_lshl_b32 {S(sT1)}, {S(sT_)}, 5")
op(f"v_xor_b32 {V(32)}, {S(sT1)}, {V(32)}")
for s in range(4):
    op(f"v_xor_b32 {V(vXR+s)}, {s<<5}, {V(32)}")
def tr_base128(dst, half_mul, tmp):
    op(f"v_bfe_u32 {V(tmp)}, {V(vL)}, 2, 2")
    op(f"v_lshlrev_b32 {V(dst)}, 7, {V(tmp)}")
    op(f"v_lshrrev_b32 {V(tmp)}, 1, {V(tmp)}")
    op(f"v_lshl_add_u32 {V(dst)}, {V(tmp)}, 6, {V(dst)}")
    op(f"v_bfe_u32 {V(tmp)}, {V(vL)}, 4, 1")
    op(f"v_lshl_add_u32 {V(dst)}, {V(tmp)}, 5, {V(dst)}")
    op(f"v_and_b32 {V(tmp)}, 3, {V(vL)}")
    op(f"v_lshl_add_u32 {V(dst)}, {V(tmp)}, 3, {V(dst)}")
    op(f"v_lshrrev_b32 {V(tmp)}, 5, {V(vL)}")
    op(f"v_lshl_add_u32 {V(dst)}, {V(tmp)}, {half_mul}, {V(dst)}")
tr_base128(33, 10, 34)
op(f"s_lshl_b32 {S(sT1)}, {S(sP)}, 6")
op(f"v_xor_b32 {V(33)}, {S(sT1)}, {V(33)}")
op(f"v_add_u32 {V(33)}, {L_RING}, {V(33)}")
op(f"s_lshl_b32 {S(sT1)}, {S(sT_)}, 11")
op(f"v_add_u32 {V(vWRe)}, {S(sT1)}, {V(33)}")
op(f"v_subrev_u32 {V(vWRo)}, {S(sT1)}, {V(33)}")
op(f"v_add_u32 {V(vWReH)}, 0x10000, {V(vWRe)}")
op(f"v_add_u32 {V(vWRoH)}, 0x10000, {V(vWRo)}")
op(f"s_mov_b32 {S(sLOW)}, -1")
op(f"s_mov_b32 {S(sLOW+1)}, 0")
op(f"s_mov_b32 {S(sM16)}, 0xffff")
op(f"s_mov_b32 {S(sM16+1)}, 0xffff")
op(f"s_getreg_b32 {S(sXCC)}, hwreg(HW_REG_XCC_ID, 0, 4)")

aK, aV, aQ, aR = 32, 48, 64, 80
XF, WF = 96, 112
sx0, sx1, sq0, sq1, cK0, cK1, cV0, cV1 = range(144, 152)
for r in range(144, 152):
    op(f"v_mov_b32 {V(r)}, 0")

def w_reads(it, sg, s):
    slot = it % 5
    base = (vWRe if s % 2 == 0 else vWRo) if slot < 4 else (vWReH if s % 2 == 0 else vWRoH)
    off = (slot % 4) * 16384 + sg*8192 + s*2048
    d = WF + 16*sg + 4*s
    op(f"ds_read_b64_tr_b16 {V(d,2)}, {V(base)} offset:{off}")
    op(f"ds_read_b64_tr_b16 {V(d+2,2)}, {V(base)} offset:{off+512}")

def x_read(ch, s, d):
    op(f"ds_read_b128 {V(d,4)}, {V(vXR+s)} offset:{L_X + ch*8192}")

def dot_ones(acc, r):
    return f"v_dot2c_f32_bf16 {V(acc)}, {S(sONES)}, {V(r)}"
def dot_sq(acc, r):
    return f"v_dot2c_f32_bf16 {V(acc)}, {V(r)}, {V(r)}"

for it in range(8):
    e.wait_tok(xtok[it], itok[it])
    if it == 0:
        op(f"v_add_u32 {V(vTHI)}, 0x9e3779b9, {V(vTHI)}")
        op(f"v_readlane_b32 {S(sELO)}, {V(vTLO)}, 4")
        op(f"v_add_u32 {V(vTLO)}, 1, {V(vTLO)}")
        op(f"v_lshlrev_b32 {V(vTLO)}, 4, {V(vTLO)}")
        op(f"v_readlane_b32 {S(sTHI)}, {V(vTHI)}, 4")
        op(f"v_readlane_b32 {S(sBASE)}, {V(vTLO)}, 4")
        def census():
            op(f"s_add_u32 {S(sT0)}, {S(sBASE)}, {S(sXCC)}")
            op(f"v_mov_b32 {V(18)}, {S(sT0)}")
            op(f"v_mov_b32 {V(19)}, {S(sTHI)}")
            op(f"s_lshl_b32 {S(sT1)}, {S(sG)}, 7")
            op(f"s_lshl_b32 {S(sT2)}, {S(sM)}, 3")
            op(f"s_add_u32 {S(sT1)}, {S(sT1)}, {S(sT2)}")
            op(f"v_mov_b32 {V(17)}, 0")
            op("s_mov_b64 exec, 1")
            op(f"buffer_store_dwordx2 {V(18,2)}, {V(17)}, {S(sWS,4)}, {S(sT1)} offen offset:{WS_CEN} sc1")
            op("s_mov_b64 exec, -1")
        wave0(census)
    e.wait(lg=0)
    e.barrier()
    if it == 0:
        stamp("p1_first")
    if it >= 1:
        itok[it+4] = dma_item(it+4)
    def reads(s):
        x_read(it, s, XF + 4*s)
        w_reads(it, 0, s)
        w_reads(it, 1, s)
    def comp(s):
        x = XF + 4*s; k = WF + 4*s; v = WF + 16 + 4*s
        first = (it == 0 and s == 0)
        mfma(V(aK,16), V(k,4), V(x,4), "0" if first else V(aK,16))
        for j in range(4):
            op(dot_ones(sx0 if j % 2 == 0 else sx1, x+j))
            op(dot_sq(sq0 if j % 2 == 0 else sq1, x+j))
        mfma(V(aV,16), V(x,4), V(v,4), "0" if first else V(aV,16))
        if s % 2 == 0:
            for j in range(4):
                op(dot_ones(cK0 if j % 2 == 0 else cK1, k+j))
                op(dot_ones(cV0 if j % 2 == 0 else cV1, v+j))
    reads(0); reads(1); reads(2)
    comp(0)
    reads(3)
    comp(1); comp(2); comp(3)
stamp("p1_kvloop")

vMU, vT0, vT1, vT2 = 152, 153, 154, 155
vR = 156
SF, CFK, CFV, RF, ONF = 160, 164, 168, 172, 176
op(f"v_add_f32 {V(cK0)}, {V(cK0)}, {V(cK1)}")
op(f"v_add_f32 {V(cK1)}, {V(cV0)}, {V(cV1)}")
op(f"v_add_f32 {V(sx0)}, {V(sx0)}, {V(sx1)}")
op(f"v_add_f32 {V(sq0)}, {V(sq0)}, {V(sq1)}")
halves_sum(cK0, vT0); halves_sum(cK1, vT1)
vCX = 17
op(f"v_lshlrev_b32 {V(vCX)}, 3, {V(vL)}")
op(f"s_lshl_b32 {S(sT1)}, {S(sW)}, 9")
op(f"s_add_u32 {S(sT1)}, {S(sT1)}, {L_MISC}")
op(f"v_add_u32 {V(vCX)}, {S(sT1)}, {V(vCX)}")
op(f"ds_write_b64 {V(vCX)}, {V(cK0,2)}")
halves_sum(sx0, vT0); halves_sum(sq0, vT1)
op(f"v_mul_f32 {V(vMU)}, {hx(f2u(-1.0/512))}, {V(sx0)}")
op(f"v_mul_f32 {V(vT0)}, {V(vMU)}, {V(vMU)}")
op(f"v_mul_f32 {V(vT1)}, {hx(f2u(1.0/512))}, {V(sq0)}")
op(f"v_sub_f32 {V(vT1)}, {V(vT1)}, {V(vT0)}")
op(f"v_max_f32 {V(vT1)}, 0, {V(vT1)}")
op(f"v_add_f32 {V(vT1)}, {hx(f2u(1e-5))}, {V(vT1)}")
op(f"v_rsq_f32 {V(vR)}, {V(vT1)}")
e.wait(lg=0)
e.barrier()
op(f"v_xor_b32 {V(vCX)}, 512, {V(vCX)}")
op(f"ds_read_b64 {V(cV0,2)}, {V(vCX)}")
op(f"v_mul_f32 {V(vR+1)}, {hx(f2u(0.25*math.log2(math.e)))}, {V(vR)}")
split_hi_lo(vMU, vT0, vT1, vT2)
op(f"v_cvt_pk_bf16_f32 {V(SF)}, {V(vMU)}, {V(vT1)}")
op(f"v_and_b32 {V(SF+1)}, 0xffff, {V(vT0)}")
op(f"v_cndmask_b32 {V(SF)}, 0, {V(SF)}, {S(sLOW,2)}")
op(f"v_cndmask_b32 {V(SF+1)}, 0, {V(SF+1)}, {S(sLOW,2)}")
split_hi_lo(vR, vT0, vT1, vT2)
op(f"v_cvt_pk_bf16_f32 {V(RF)}, {V(vR)}, {V(vT1)}")
op(f"v_cndmask_b32 {V(RF)}, 0, {V(RF)}, {S(sLOW,2)}")
for r in (SF+2, SF+3, CFK+2, CFK+3, CFV+2, CFV+3, RF+1, RF+2, RF+3, ONF+1, ONF+2, ONF+3):
    op(f"v_mov_b32 {V(r)}, 0")
op(f"v_mov_b32 {V(ONF)}, {S(sONES)}")
op(f"v_add_f32 {V(cK0)}, {V(cK0)}, {V(cV0)}")
op(f"v_add_f32 {V(cK1)}, {V(cK1)}, {V(cV1)}")
split_hi_lo(cK0, CFK, vT1, vT2)
op(f"v_cvt_pk_bf16_f32 {V(CFK+1)}, {V(vT1)}, 0")
split_hi_lo(cK1, CFV, vT1, vT2)
op(f"v_cvt_pk_bf16_f32 {V(CFV+1)}, {V(vT1)}, 0")
mfma(V(aR,16), V(RF,4), V(ONF,4), "0")
mfma(V(aK,16), V(CFK,4), V(SF,4), V(aK,16))
mfma(V(aV,16), V(SF,4), V(CFV,4), V(aV,16))
vVS, vKW, vVW = 180, 181, 182
op(f"v_bfe_u32 {V(vT0)}, {V(vL)}, 4, 1")
op(f"v_lshrrev_b32 {V(vT1)}, 5, {V(vL)}")
op(f"v_and_b32 {V(vT2)}, 15, {V(vL)}")
op(f"v_lshlrev_b32 {V(vT2)}, 4, {V(vT2)}")
op(f"v_lshl_add_u32 {V(vT2)}, {V(vT1)}, 8, {V(vT2)}")
vVR = 183
op(f"v_mov_b32 {V(vVR)}, {V(vT2)}")
op(f"v_lshl_add_u32 {V(vVS)}, {V(vT0)}, 16, {V(vT2)}")
op(f"v_lshl_add_u32 {V(vVW)}, {V(vT0)}, 11, {V(vT2)}")
op(f"s_lshl_b32 {S(sT1)}, {S(sP)}, 12")
op(f"s_lshl_b32 {S(sT2)}, {S(sT_)}, 10")
op(f"s_add_u32 {S(sT1)}, {S(sT1)}, {S(sT2)}")
op(f"s_add_u32 {S(sT1)}, {S(sT1)}, {L_EX}")
op(f"v_add_u32 {V(vKW)}, {S(sT1)}, {V(vL16)}")
op(f"v_add_u32 {V(vVW)}, {S(sT1)}, {V(vVW)}")
op(f"s_lshl_b32 {S(sT0)}, {S(sHQ)}, 1")
op(f"s_add_u32 {S(sT0)}, {S(sT0)}, {S(sP)}")
op(f"s_lshl_b32 {S(sT0)}, {S(sT0)}, 7")
op(f"s_lshl_b32 {S(sT1)}, {S(sTB)}, 1")
op(f"s_add_u32 {S(sT0)}, {S(sT0)}, {S(sT1)}")
op(f"s_add_u32 {S(sT0)}, {S(sT0)}, {S(sT_)}")
op(f"s_lshl_b32 {S(sT0)}, {S(sT0)}, 10")
op(f"s_add_u32 {S(sT1)}, {S(sT0)}, {hx(WS_K)}")
op(f"s_add_u32 {S(sT2)}, {S(sT0)}, {hx(WS_K + 65536)}")
op(f"s_add_u32 {S(sT3)}, {S(sT0)}, {hx(WS_V)}")
KP, VP = 96, 104
for i in range(8):
    op(f"v_pk_mul_f32 {V(aK+2*i,2)}, {V(aK+2*i,2)}, {V(vR,2)} op_sel_hi:[1,0]")
for i in range(8):
    op(f"v_cvt_pk_bf16_f32 {V(KP+i)}, {V(aK+2*i)}, {V(aK+2*i+1)}")
op(f"buffer_store_dwordx4 {V(KP,4)}, {V(vL16)}, {S(sWS,4)}, {S(sT1)} offen sc1")
op(f"buffer_store_dwordx4 {V(KP+4,4)}, {V(vL16)}, {S(sWS,4)}, {S(sT2)} offen sc1")
for i in range(8):
    op(f"v_pk_mul_f32 {V(aV+2*i,2)}, {V(aV+2*i,2)}, {V(aR+2*i,2)}")
for i in range(8):
    op(f"v_cvt_pk_bf16_f32 {V(VP+i)}, {V(aV+2*i)}, {V(aV+2*i+1)}")
op(f"buffer_store_dwordx4 {V(VP,4)}, {V(vVS)}, {S(sWS,4)}, {S(sT3)} offen sc1")
op(f"buffer_store_dwordx4 {V(VP+4,4)}, {V(vVS)}, {S(sWS,4)}, {S(sT3)} offen offset:512 sc1")
op(f"ds_write_b128 {V(vKW)}, {V(KP,4)}")
op(f"ds_write_b128 {V(vKW)}, {V(KP+4,4)} offset:2048")
op(f"ds_write_b128 {V(vVW)}, {V(VP,4)} offset:8192")
op(f"ds_write_b128 {V(vVW)}, {V(VP+4,4)} offset:{8192+512}")
stamp("kv_stored")
op(f"v_and_b32 {V(vT0)}, 31, {V(vL)}")
op(f"v_bfe_u32 {V(vT1)}, {V(vL)}, 1, 3")
op(f"s_lshl_b32 {S(sT1)}, {S(sW)}, 1")
op(f"v_xor_b32 {V(vT1)}, {S(sT1)}, {V(vT1)}")
op(f"v_lshlrev_b32 {V(vT1)}, 4, {V(vT1)}")
op(f"v_lshl_add_u32 {V(vT1)}, {V(vT0)}, 7, {V(vT1)}")
op(f"v_lshrrev_b32 {V(vT0)}, 5, {V(vL)}")
op(f"v_lshl_add_u32 {V(vT1)}, {V(vT0)}, 3, {V(vT1)}")
op(f"s_and_b32 {S(sT1)}, {S(sTB)}, 1")
op(f"s_lshl_b32 {S(sT1)}, {S(sT1)}, 15")
op(f"v_add_u32 {V(vT1)}, {S(sT1)}, {V(vT1)}")
op(f"v_xor_b32 {V(vT2)}, 16, {V(vT1)}")
for t in range(2):
    op(f"ds_read_b64 {V(vRES+4*t,2)}, {V(vT1)} offset:{L_X + t*4096}")
    op(f"ds_read_b64 {V(vRES+4*t+2,2)}, {V(vT2)} offset:{L_X + t*4096}")

cQ0, cQ1 = 144, 145
op(f"v_mov_b32 {V(cQ0)}, 0")
op(f"v_mov_b32 {V(cQ1)}, 0")
XF2 = 184
for it in range(8, 12):
    if it == 9:
        e.wait(vm=0)
    else:
        e.wait_tok(itok[it])
    e.wait(lg=0)
    e.barrier()
    if it == 9:
        def halo_flags():
            op(f"s_add_u32 {S(sT1)}, {S(sTB)}, 1")
            op(f"v_add_u32 {V(17)}, {S(sT1)}, {V(vL)}")
            op(f"v_cmp_gt_u32 vcc, 32, {V(17)}")
            op(f"v_cmp_gt_u32 {S(sPA,2)}, 4, {V(vL)}")
            op(f"v_lshlrev_b32 {V(17)}, 3, {V(17)}")
            op(f"v_add_u32 {V(17)}, {S(sHQ)}, {V(17)}")
            op(f"v_lshlrev_b32 {V(17)}, 4, {V(17)}")
            op(f"v_add_u32 {V(17)}, {V(17)}, {V(vL)}")
            op(f"v_lshlrev_b32 {V(17)}, 3, {V(17)}")
            op(f"v_add_u32 {V(18)}, 15, {V(vTLO)}")
            op(f"v_mov_b32 {V(19)}, {V(vTHI)}")
            op(f"s_and_b64 {S(sPA,2)}, {S(sPA,2)}, vcc")
            D = e.fresh("nohalo")
            op(f"s_cbranch_scc0 {D}")
            op(f"s_mov_b64 exec, {S(sPA,2)}")
            op(f"s_mov_b32 {S(sT1)}, {hx(WS_HALO)}")
            op(f"buffer_store_dwordx2 {V(18,2)}, {V(17)}, {S(sWS,4)}, {S(sT1)} offen sc1")
            op("s_mov_b64 exec, -1")
            e.label(D)
        wave0(halo_flags)
        stamp("halo_sent")
        op(f"v_and_b32 {V(17)}, 15, {V(vL)}")
        op(f"v_lshlrev_b32 {V(17)}, 3, {V(17)}")
        op(f"s_lshl_b32 {S(sT1)}, {S(sG)}, 7")
        tokC = op(f"buffer_load_dwordx2 {V(146,2)}, {V(17)}, {S(sWS,4)}, {S(sT1)} offen offset:{WS_CEN} sc1")
    for sg in range(2):
        ch = 2*(it-8) + sg
        for s in range(4):
            x_read(ch, s, XF + 4*s)
            w_reads(it, sg, s)
        for s in range(4):
            x = XF + 4*s; q = WF + 16*sg + 4*s
            first = (ch == 0 and s == 0)
            mfma(V(aQ,16), V(q,4), V(x,4), "0" if first else V(aQ,16))
            if s % 2 == 0:
                for j in range(4):
                    op(dot_ones(cQ0 if j % 2 == 0 else cQ1, q+j))
stamp("q_loop")
op(f"v_add_f32 {V(cQ0)}, {V(cQ0)}, {V(cQ1)}")
halves_sum(cQ0, vT0)
op(f"v_lshlrev_b32 {V(vCX)}, 2, {V(vL)}")
op(f"s_lshl_b32 {S(sT1)}, {S(sW)}, 9")
op(f"s_add_u32 {S(sT1)}, {S(sT1)}, {L_MISC + 2048}")
op(f"v_add_u32 {V(vCX)}, {S(sT1)}, {V(vCX)}")
op(f"ds_write_b32 {V(vCX)}, {V(cQ0)}")
op(f"s_add_u32 {S(sT0)}, {S(sBASE)}, {S(sXCC)}")
op(f"v_cmp_eq_u32 vcc, {S(sT0)}, {V(146)}")
op(f"v_cmp_eq_u32 {S(sPA,2)}, {S(sTHI)}, {V(147)}")
op(f"s_and_b64 vcc, vcc, {S(sPA,2)}")
op(f"s_cmp_eq_u64 vcc, -1")
op(f"s_cselect_b32 {S(sFAST)}, 1, 0")
e.wait(lg=0)
e.barrier()
op(f"v_xor_b32 {V(vCX)}, 512, {V(vCX)}")
op(f"ds_read_b32 {V(cQ1)}, {V(vCX)}")
op(f"v_add_f32 {V(cQ0)}, {V(cQ0)}, {V(cQ1)}")
split_hi_lo(cQ0, CFK, vT1, vT2)
op(f"v_cvt_pk_bf16_f32 {V(CFK+1)}, {V(vT1)}, 0")
mfma(V(aQ,16), V(CFK,4), V(SF,4), V(aQ,16))
op(f"v_add_u32 {V(vKW)}, {L_QX - L_EX}, {V(vKW)}")
op(f"v_lshrrev_b32 {V(17)}, 3, {V(vL)}")
op(f"v_bfe_u32 {V(18)}, {V(vL)}, 4, 1")
op(f"v_lshlrev_b32 {V(18)}, 2, {V(18)}")
op(f"v_and_b32 {V(19)}, 7, {V(vL)}")
op(f"v_xor_b32 {V(18)}, {V(18)}, {V(19)}")
op(f"v_lshlrev_b32 {V(18)}, 4, {V(18)}")
vWD = 20
op(f"v_lshl_add_u32 {V(vWD)}, {V(17)}, 10, {V(18)}")
op(f"s_lshl_b32 {S(sT1)}, {S(sHQ)}, 7")
op(f"v_add_u32 {V(vWD)}, {S(sT1)}, {V(vWD)}")
op(f"s_lshl_b32 {S(sT2)}, {S(sW)}, 17")
op(f"s_lshl_b32 {S(sT3)}, {S(sW)}, 14")
wotok = None
for i in range(16):
    op(f"s_add_u32 m0, {S(sT3)}, {L_X + i*1024}")
    op(f"s_add_u32 {S(sT1)}, {S(sT2)}, {i*8192}")
    wotok = dma(vWD, sWO, S(sT1))
for i in range(8):
    op(f"v_pk_mul_f32 {V(aQ+2*i,2)}, {V(aQ+2*i,2)}, {V(vR,2)} op_sel:[0,1] op_sel_hi:[1,1]")
for i in range(8):
    op(f"v_cvt_pk_bf16_f32 {V(KP+i)}, {V(aQ+2*i)}, {V(aQ+2*i+1)}")
op(f"ds_write_b128 {V(vKW)}, {V(KP,4)}")
op(f"ds_write_b128 {V(vKW)}, {V(KP+4,4)} offset:2048")
aKT, aVT = 0, 40
op(f"v_mov_b32 {V(17)}, {S(sONES)}")
for r in range(80):
    op(f"v_accvgpr_write_b32 {A(aVT+r)}, {V(17)}")
for r in range(16):
    c0 = 8*(r >> 2) + (r & 3)
    op(f"s_mov_b32 {S(sCM+2*r)}, {hx(0xffffffff << c0)}")
    op(f"s_mov_b32 {S(sCM+2*r+1)}, {hx(0xffffffff << (c0+4))}")
MK = 22
op(f"v_mov_b32 {V(17)}, 0xffff")
op(f"v_mov_b32 {V(18)}, 0xffff0000")
for i in range(8):
    op(f"v_cndmask_b32 {V(19)}, 0, {V(17)}, {S(sCM+4*i,2)}")
    op(f"v_cndmask_b32 {V(MK+i)}, 0, {V(18)}, {S(sCM+4*i+2,2)}")
    op(f"v_or_b32 {V(MK+i)}, {V(MK+i)}, {V(19)}")
e.wait(lg=0)
e.barrier()
Q0 = 32
op(f"s_lshl_b32 {S(sT1)}, {S(sW)}, 11")
op(f"v_add_u32 {V(17)}, {S(sT1)}, {V(vL16)}")
op(f"v_add_u32 {V(18)}, {L_QX}, {V(17)}")
op(f"v_add_u32 {V(17)}, {L_EX}, {V(17)}")
op(f"s_add_u32 {S(sT1)}, {S(sT1)}, {L_EX + 8192}")
op(f"v_add_u32 {V(19)}, {S(sT1)}, {V(vVR)}")
for t in range(2):
    op(f"ds_read_b128 {V(Q0+4*t,4)}, {V(18)} offset:{t*1024}")
    op(f"ds_read_b128 {A(aKT+4*(8+t),4)}, {V(17)} offset:{t*1024}")
op(f"s_mov_b64 exec, {S(sM16,2)}")
for t in range(2):
    for st in range(2):
        op(f"ds_read_b128 {A(aVT+8*(8+t)+4*st,4)}, {V(19)} offset:{t*1024+st*512}")
op("s_mov_b64 exec, -1")
stamp("q_done")
WO = 192
def wo_like_addr(dst0, dst1, base_sreg, base_imm):
    tr_base128(dst0, 9, 19)
    op(f"s_lshl_b32 {S(sT1)}, {S(sP)}, 6")
    op(f"s_lshl_b32 {S(sT2)}, {S(sT_)}, 5")
    op(f"s_or_b32 {S(sT1)}, {S(sT1)}, {S(sT2)}")
    op(f"v_xor_b32 {V(dst0)}, {S(sT1)}, {V(dst0)}")
    op(f"s_add_u32 {S(sT1)}, {base_sreg}, {base_imm}")
    op(f"v_add_u32 {V(dst0)}, {S(sT1)}, {V(dst0)}")
    op(f"v_xor_b32 {V(dst1)}, 64, {V(dst0)}")
wo_like_addr(17, 18, S(sT3), L_X)
e.wait_tok(wotok)
for s in range(8):
    for u in range(2):
        for j in range(2):
            op(f"ds_read_b64_tr_b16 {V(WO+8*s+4*u+2*j,2)}, {V(17+u)} offset:{s*2048+j*1024}")
e.wait(lg=0)
stamp("wo_done")
def halo_wait():
    op(f"s_min_u32 {S(sT0)}, {S(sTB)}, 4")
    op(f"s_lshl_b32 {S(sT2)}, 1, {S(sT0)}")
    op(f"s_sub_u32 {S(sT2)}, {S(sT2)}, 1")
    op(f"s_mov_b32 {S(sT3)}, 0")
    op(f"v_and_b32 {V(17)}, 3, {V(vL)}")
    op(f"v_lshlrev_b32 {V(17)}, 3, {V(17)}")
    op(f"s_lshl_b32 {S(sT1)}, {S(sTB)}, 3")
    op(f"s_add_u32 {S(sT1)}, {S(sT1)}, {S(sHQ)}")
    op(f"s_lshl_b32 {S(sT1)}, {S(sT1)}, 7")
    op(f"s_add_u32 {S(sT1)}, {S(sT1)}, {hx(WS_HALO)}")
    op(f"s_add_u32 {S(sT0)}, {S(sBASE)}, 15")
    poll(17, S(sT1), S(sT2,2), S(sT0), 1, 18, S(sTHI), 0x100)
wave0(halo_wait)
e.barrier()
stamp("halo_ok")
op(f"s_lshl_b32 {S(sT0)}, {S(sHQ)}, 2")
op(f"s_add_u32 {S(sT0)}, {S(sT0)}, {S(sW)}")
op(f"s_lshl_b32 {S(sT0)}, {S(sT0)}, 6")
op(f"s_lshl_b32 {S(sT1)}, {S(sTB)}, 1")
op(f"s_add_u32 {S(sT0)}, {S(sT0)}, {S(sT1)}")
op(f"s_lshl_b32 {S(sT0)}, {S(sT0)}, 10")
op(f"s_add_u32 {S(sT1)}, {S(sT0)}, {hx(WS_K - 8192)}")
op(f"s_add_u32 {S(sT2)}, {S(sT0)}, {hx(WS_K - 4096)}")
for j in range(7, -1, -1):
    op(f"buffer_load_dwordx4 {A(aKT+4*j,4)}, {V(vL16)}, {S(sWS,4)}, {S(sT1 if j < 4 else sT2)} offen offset:{(j%4)*1024} sc1")
op(f"s_add_u32 {S(sT1)}, {S(sT0)}, {hx(WS_V - 8192)}")
op(f"s_add_u32 {S(sT2)}, {S(sT0)}, {hx(WS_V - 4096)}")
op(f"s_mov_b64 exec, {S(sM16,2)}")
for j in (0, 1, 7, 6, 5, 4, 3, 2):
    for st in range(2):
        op(f"buffer_load_dwordx4 {A(aVT+8*j+4*st,4)}, {V(vVR)}, {S(sWS,4)}, {S(sT1 if j < 4 else sT2)} offen offset:{(j%4)*1024+st*512} sc1")
op("s_mov_b64 exec, -1")
vW1D = 21
op(f"v_lshrrev_b32 {V(17)}, 4, {V(vL)}")
op(f"v_lshlrev_b32 {V(18)}, 2, {V(17)}")
op(f"v_and_b32 {V(19)}, 15, {V(vL)}")
op(f"v_xor_b32 {V(18)}, {V(18)}, {V(19)}")
op(f"v_lshlrev_b32 {V(18)}, 4, {V(18)}")
op(f"v_mul_u32_u24 {V(vW1D)}, 3584, {V(17)}")
op(f"v_add_u32 {V(vW1D)}, {V(vW1D)}, {V(18)}")
op(f"s_mul_i32 {S(sT1)}, {S(sW)}, {4*3584}")
op(f"s_lshl_b32 {S(sT2)}, {S(sM)}, 8")
op(f"s_add_u32 {S(sT1)}, {S(sT1)}, {S(sT2)}")
op(f"v_add_u32 {V(vW1D)}, {S(sT1)}, {V(vW1D)}")
def w1_dma(lo, hi):
    D = e.fresh("now1")
    op(f"s_cmp_ge_u32 {S(sM)}, 14")
    op(f"s_cbranch_scc1 {D}")
    op(f"s_lshl_b32 {S(sT3)}, {S(sW)}, 10")
    for i in range(lo, hi):
        op(f"s_add_u32 m0, {S(sT3)}, {i*4096}")
        op(f"s_mov_b32 {S(sT1)}, {i*16*3584}")
        dma(vW1D, sW1, S(sT1))
    e.label(D)
w1_dma(0, 28)

NM = [40, 56]; MG = [72, 88]; SB = [104, 120, 136]; OA = [152, 168]
mx = [184, 185, 186, 187]
vNEG = 188
Kt = lambda j: A(aKT+4*j, 4)
Vt = lambda j, st: A(aVT+8*j+4*st, 4)
Qt = lambda i: V(Q0+4*i, 4)
op(f"v_mov_b32 {V(vNEG)}, 0xff800000")
for r in mx:
    op(f"v_mov_b32 {V(r)}, {V(vNEG)}")
mfma(V(MG[0],16), Kt(8), Qt(0), "0")
mfma(V(MG[1],16), Kt(9), Qt(1), "0")
def max_ops(i, b):
    return [f"v_max3_f32 {V(mx[2*i+(k&1)])}, {V(mx[2*i+(k&1)])}, {V(b+2*k)}, {V(b+2*k+1)}" for k in range(8)]
units = [(1, 8)] + [(i, j) for j in range(7, 1, -1) for i in range(2)] + [(0, 1), (1, 1), (0, 0)]
exit_at = {1: 1, 5: 2, 9: 3, 13: 4}
def s_mfma(n, c0, c1):
    i, j = units[n]
    mfma(V(SB[n % 3],16), Kt(j), Qt(i), (c0, c1)[i])
s_mfma(0, "0", "0"); s_mfma(1, "0", "0")
for n in range(len(units)):
    if n in exit_at:
        op(f"s_cmp_lt_u32 {S(sTB)}, {exit_at[n]}")
        op("s_cbranch_scc1 L_p1_short")
    i, j = units[n]
    if n + 2 < len(units):
        s_mfma(n+2, "0", "0")
    if n < 14:
        e.ops(max_ops(i, SB[n % 3]))
    else:
        for r in range(16):
            op(f"v_cndmask_b32 {V(MG[i]+r)}, {V(SB[n%3]+r)}, {V(MG[i]+r)}, {S(sCM+2*r,2)}")
op("s_branch L_p1_join")
e.label("L_p1_short")
for i in range(2):
    for r in range(16):
        op(f"v_cndmask_b32 {V(MG[i]+r)}, {V(vNEG)}, {V(MG[i]+r)}, {S(sCM+2*r,2)}")
e.label("L_p1_join")
e.ops(interleave(max_ops(0, MG[0]), max_ops(1, MG[1])))
for i in range(2):
    op(f"v_max_f32 {V(mx[2*i])}, {V(mx[2*i])}, {V(mx[2*i+1])}")
for i in range(2):
    op(f"v_mov_b32 {V(mx[2*i+1])}, {V(mx[2*i])}")
for i in range(2):
    op(f"v_permlane32_swap_b32 {V(mx[2*i])}, {V(mx[2*i+1])}")
for i in range(2):
    op(f"v_max_f32 {V(mx[2*i])}, {V(mx[2*i])}, {V(mx[2*i+1])}")
for i in range(2):
    op(f"v_sub_f32 {V(NM[i])}, 0, {V(mx[2*i])}")
    op(f"v_mov_b32 {V(NM[i]+1)}, {V(NM[i])}")
for i in range(2):
    for k in range(1, 8):
        op(f"v_pk_mov_b32 {V(NM[i]+2*k,2)}, {V(NM[i],2)}, {V(NM[i],2)} op_sel:[0,1]")
stamp("att_p1")
full = units[:14]
def exp_cvt(b):
    o = []
    for k in range(8):
        o.append(f"v_exp_f32 {V(b+2*k)}, {V(b+2*k)}")
        o.append(f"v_exp_f32 {V(b+2*k+1)}, {V(b+2*k+1)}")
        if k >= 1:
            o.append(f"v_cvt_pk_bf16_f32 {V(b+k-1)}, {V(b+2*k-2)}, {V(b+2*k-1)}")
    o.append("NOP")
    o.append(f"v_cvt_pk_bf16_f32 {V(b+7)}, {V(b+14)}, {V(b+15)}")
    return o
def run_with(valu, inserts):
    for k, t in enumerate(valu):
        if k in inserts:
            for f in inserts[k]:
                f()
        if t != "NOP":
            op(t)
def s2(n):
    i, j = full[n]
    mfma(V(SB[n % 3],16), Kt(j), Qt(i), V(NM[i],16))
def pv(i, j, b, first=False):
    return [lambda: mfma(V(OA[i],16), Vt(j,0), V(b,4), "0" if first else V(OA[i],16)),
            lambda: mfma(V(OA[i],16), Vt(j,1), V(b+4,4), V(OA[i],16))]
s2(0); s2(1)
for i in range(2):
    for k in range(8):
        op(f"v_pk_add_f32 {V(MG[i]+2*k,2)}, {V(MG[i]+2*k,2)}, {V(NM[i],2)}")
for i in range(2):
    run_with(exp_cvt(MG[i]), {})
    for k in range(8):
        op(f"v_and_b32 {V(MG[i]+8+k)}, {V(MG[i]+k)}, {V(MK+k)}")
    for k in range(8):
        op(f"v_xor_b32 {V(MG[i]+k)}, {V(MG[i]+k)}, {V(MG[i]+8+k)}")
    for f in pv(i, 8+i, MG[i]+8, first=True):
        f()
op(f"s_cmp_lt_u32 {S(sTB)}, 4")
op("s_cbranch_scc1 L_noold")
for i in range(2):
    for f in pv(i, i, MG[i]):
        f()
e.label("L_noold")
pend = None
for n in range(len(full)):
    if n in exit_at:
        if pend:
            for f in pend: f()
            pend = None
        op(f"s_cmp_lt_u32 {S(sTB)}, {exit_at[n]}")
        op("s_cbranch_scc1 L_p2_done")
    i, j = full[n]
    ins = {}
    if pend:
        ins[2] = [pend[0]]; ins[7] = [pend[1]]
    if n + 2 < len(full):
        ins.setdefault(13, []).append(lambda n=n: s2(n+2))
    run_with(exp_cvt(SB[n % 3]), ins)
    pend = pv(i, j, SB[n % 3])
for f in pend: f()
e.label("L_p2_done")
stamp("att_p2")
for i in range(2):
    op(f"v_rcp_f32 {V(mx[2*i])}, {V(OA[i]+8)}")
for i in range(2):
    for k in range(4):
        op(f"v_pk_mul_f32 {V(OA[i]+2*k,2)}, {V(OA[i]+2*k,2)}, {V(mx[2*i],2)} op_sel_hi:[1,0]")
    for k in range(4):
        op(f"v_cvt_pk_bf16_f32 {V(OA[i]+8+k)}, {V(OA[i]+2*k)}, {V(OA[i]+2*k+1)}")
op(f"s_lshl_b32 {S(sT0)}, {S(sTB)}, 6")
op(f"s_lshl_b32 {S(sT1)}, {S(sHQ)}, 2")
op(f"s_add_u32 {S(sT0)}, {S(sT0)}, {S(sT1)}")
op(f"s_add_u32 {S(sT0)}, {S(sT0)}, {S(sW)}")
op(f"s_lshl_b32 {S(sT0)}, {S(sT0)}, 10")
op(f"s_add_u32 {S(sT0)}, {S(sT0)}, {hx(WS_O)}")
op(f"s_add_u32 {S(sT1)}, {S(sT0)}, 32768")
def st_o(m):
    op(f"buffer_store_dwordx4 {V(OA[0]+8,4)}, {V(vL16)}, {S(sWS,4)}, {S(sT0)} offen{m}")
    op(f"buffer_store_dwordx4 {V(OA[1]+8,4)}, {V(vL16)}, {S(sWS,4)}, {S(sT1)} offen{m}")
stores_mode(st_o)
group_signal(1)
stamp("o_signaled")
def mask8():
    op(f"s_and_b32 {S(sT2)}, {S(sM)}, 8")
    op(f"s_lshl_b32 {S(sT2)}, 0xff, {S(sT2)}")
    op(f"s_mov_b32 {S(sT3)}, 0")
group_wait(1, mask8)
stamp("o_ok")

OF, ACC, RT = 32, 96, 160
op(f"s_lshl_b32 {S(sT0)}, {S(sTB)}, 6")
op(f"s_lshl_b32 {S(sT1)}, {S(sW)}, 3")
op(f"s_add_u32 {S(sT0)}, {S(sT0)}, {S(sT1)}")
op(f"s_lshl_b32 {S(sT0)}, {S(sT0)}, 10")
op(f"s_add_u32 {S(sT0)}, {S(sT0)}, {hx(WS_O)}")
for t in range(2):
    for hb in range(2):
        op(f"s_add_u32 {S(sT1)}, {S(sT0)}, {t*32768 + hb*4096}")
        for s in range(4):
            op(f"buffer_load_dwordx4 {V(OF+32*t+16*hb+4*s,4)}, {V(vL16)}, {S(sWS,4)}, {S(sT1)} offen offset:{s*1024} sc1")
vRW, vRR = 22, 25
def reduce_addrs(base):
    for q in range(1, 4):
        op(f"s_xor_b32 {S(sT1)}, {S(sW)}, {q}")
        op(f"s_mul_i32 {S(sT1)}, {S(sT1)}, 6144")
        op(f"s_add_u32 {S(sT1)}, {S(sT1)}, {base + (q-1)*2048}")
        op(f"v_add_u32 {V(vRW+q-1)}, {S(sT1)}, {V(vL16)}")
    op(f"s_mul_i32 {S(sT1)}, {S(sW)}, 6144")
    op(f"s_add_u32 {S(sT1)}, {S(sT1)}, {base}")
    op(f"v_add_u32 {V(vRR)}, {S(sT1)}, {V(vL16)}")
reduce_addrs(L_R3)
def red_write(acc, t):
    for q in range(1, 4):
        r = acc + 32*t + 8*q
        op(f"ds_write_b128 {V(vRW+q-1)}, {V(r,4)} offset:{t*24576}")
        op(f"ds_write_b128 {V(vRW+q-1)}, {V(r+4,4)} offset:{t*24576+1024}")
def red_read(tmp, t):
    for q in range(3):
        op(f"ds_read_b128 {V(tmp+8*q,4)}, {V(vRR)} offset:{t*24576+q*2048}")
        op(f"ds_read_b128 {V(tmp+8*q+4,4)}, {V(vRR)} offset:{t*24576+q*2048+1024}")
def red_sum(acc, tmp, t):
    r = acc + 32*t
    for k in range(4):
        op(f"v_pk_add_f32 {V(tmp+2*k,2)}, {V(tmp+2*k,2)}, {V(tmp+8+2*k,2)}")
        op(f"v_pk_add_f32 {V(r+2*k,2)}, {V(r+2*k,2)}, {V(tmp+16+2*k,2)}")
    for k in range(4):
        op(f"v_pk_add_f32 {V(r+2*k,2)}, {V(r+2*k,2)}, {V(tmp+2*k,2)}")
def add_packed(r, pk, tmp):
    for k in range(4):
        op(f"v_lshlrev_b32 {V(tmp+2*k)}, 16, {V(pk+k)}")
        op(f"v_and_b32 {V(tmp+2*k+1)}, 0xffff0000, {V(pk+k)}")
    for k in range(4):
        op(f"v_pk_add_f32 {V(r+2*k,2)}, {V(r+2*k,2)}, {V(tmp+2*k,2)}")
for t in range(2):
    for s in range(8):
        for u in range(2):
            d = V(ACC+32*t+16*u, 16)
            mfma(d, V(WO+8*s+4*u,4), V(OF+32*t+4*s,4), "0" if s == 0 else d)
        if t == 1 and s == 2:
            red_write(ACC, 0)
red_write(ACC, 1)
e.wait(lg=0)
e.barrier()
stamp("p3_red")
op(f"s_lshl_b32 {S(sT0)}, {S(sTB)}, 6")
op(f"s_lshl_b32 {S(sT1)}, {S(sHQ)}, 2")
op(f"s_add_u32 {S(sT0)}, {S(sT0)}, {S(sT1)}")
op(f"s_add_u32 {S(sT0)}, {S(sT0)}, {S(sW)}")
op(f"s_lshl_b32 {S(sT0)}, {S(sT0)}, 10")
op(f"s_add_u32 {S(sT0)}, {S(sT0)}, {hx(WS_H)}")
op(f"s_add_u32 {S(sT1)}, {S(sT0)}, 32768")
red_read(RT, 0)
red_read(OF, 1)
for t in range(2):
    tmp = RT if t == 0 else OF
    red_sum(ACC, tmp, t)
    add_packed(ACC+32*t, vRES+4*t, tmp)
    for k in range(4):
        op(f"v_cvt_pk_bf16_f32 {V(vRES+4*t+k)}, {V(ACC+32*t+2*k)}, {V(ACC+32*t+2*k+1)}")
def st_h(m):
    op(f"buffer_store_dwordx4 {V(vRES,4)}, {V(vL16)}, {S(sWS,4)}, {S(sT0)} offen{m}")
    op(f"buffer_store_dwordx4 {V(vRES+4,4)}, {V(vL16)}, {S(sWS,4)}, {S(sT1)} offen{m}")
stores_mode(st_h)
group_signal(2)
stamp("h_signaled")
op(f"s_cmp_ge_u32 {S(sM)}, 14")
op("s_cbranch_scc1 L_p4_skip")

w1_dma(28, 32)
vA = 22
op(f"v_and_b32 {V(17)}, 31, {V(vL)}")
op(f"v_lshlrev_b32 {V(17)}, 1, {V(17)}")
op(f"s_lshl_b32 {S(sT1)}, {S(sM)}, 8")
op(f"s_lshl_b32 {S(sT2)}, {S(sW)}, 6")
op(f"s_add_u32 {S(sT1)}, {S(sT1)}, {S(sT2)}")
op(f"buffer_load_ushort {V(14)}, {V(17)}, {S(sB1,4)}, {S(sT1)} offen")
op(f"v_bfe_u32 {V(17)}, {V(vL)}, 2, 2")
op(f"v_lshlrev_b32 {V(vA)}, 8, {V(17)}")
op(f"v_lshl_add_u32 {V(vA)}, {V(17)}, 6, {V(vA)}")
op(f"v_bfe_u32 {V(17)}, {V(vL)}, 4, 1")
op(f"v_lshl_add_u32 {V(vA)}, {V(17)}, 5, {V(vA)}")
op(f"v_and_b32 {V(17)}, 3, {V(vL)}")
op(f"v_lshl_add_u32 {V(vA)}, {V(17)}, 3, {V(vA)}")
op(f"v_lshrrev_b32 {V(17)}, 5, {V(vL)}")
op(f"v_lshl_add_u32 {V(vA)}, {V(17)}, 10, {V(vA)}")
for nb in range(1, 4):
    op(f"v_xor_b32 {V(vA+nb)}, {nb << 6}, {V(vA)}")
op(f"s_lshl_b32 {S(sT1)}, {S(sW)}, 6")
op(f"v_xor_b32 {V(26)}, {S(sT1)}, {V(vA)}")
op(f"v_add_u32 {V(27)}, 0x10000, {V(26)}")
e.wait(vm=0)
e.barrier()
c0, c1 = 28, 29
op(f"v_mov_b32 {V(c0)}, 0")
op(f"v_mov_b32 {V(c1)}, 0")
for grp in range(8):
    for s in range(4):
        ss = grp*4 + s
        base = 26 if ss < 16 else 27
        for j in range(2):
            op(f"ds_read_b64_tr_b16 {V(32+16*(grp%2)+4*s+2*j,2)}, {V(base)} offset:{(ss%16)*4096+j*2048}")
    if grp >= 1:
        for k in range(16):
            op(dot_ones(c0 if k % 2 == 0 else c1, 32+16*((grp-1)%2)+k))
for k in range(16):
    op(dot_ones(c0 if k % 2 == 0 else c1, 48+k))
op(f"v_add_f32 {V(c0)}, {V(c0)}, {V(c1)}")
halves_sum(c0, c1)
split_hi_lo(c0, 32, 33, 17)
op(f"v_cvt_pk_bf16_f32 {V(33)}, {V(33)}, 0")
op(f"v_lshl_or_b32 {V(33)}, {V(14)}, 16, {V(33)}")
op(f"v_mov_b32 {V(34)}, {V(14)}")
op(f"v_mov_b32 {V(35)}, 0")
op(f"s_lshl_b32 {S(sT1)}, {S(sW)}, 10")
op(f"s_add_u32 {S(sT1)}, {S(sT1)}, {L_CT}")
op(f"v_add_u32 {V(17)}, {S(sT1)}, {V(vL16)}")
op(f"ds_write_b128 {V(17)}, {V(32,4)}")
e.wait(lg=0)
stamp("cs1_done")
def mask16():
    op(f"s_mov_b32 {S(sT2)}, 0xffff")
    op(f"s_mov_b32 {S(sT3)}, 0")
group_wait(2, mask16)
stamp("h_ok")
def epoch_bump():
    D = e.fresh("nobump")
    op(f"s_cmp_lg_u32 {S(sM)}, 0")
    op(f"s_cbranch_scc1 {D}")
    op(f"s_add_u32 {S(sT0)}, {S(sELO)}, 1")
    op(f"v_mov_b32 {V(18)}, {S(sT0)}")
    op(f"s_lshl_b32 {S(sT1)}, {S(sG)}, 3")
    op(f"v_mov_b32 {V(17)}, 0")
    op("s_mov_b64 exec, 1")
    op(f"buffer_store_dword {V(18)}, {V(17)}, {S(sWS,4)}, {S(sT1)} offen offset:{WS_E} sc1")
    op("s_mov_b64 exec, -1")
    e.label(D)
HB, GA, RING4 = 32, 160, 224
op(f"s_lshl_b32 {S(sT0)}, {S(sG)}, 2")
op(f"s_add_u32 {S(sT0)}, {S(sT0)}, {S(sW)}")
op(f"s_lshl_b32 {S(sT0)}, {S(sT0)}, 15")
op(f"s_add_u32 {S(sT0)}, {S(sT0)}, {hx(WS_H)}")
for s in range(32):
    if s % 4 == 0:
        op(f"s_add_u32 {S(sT1)}, {S(sT0)}, {s*1024}")
    op(f"buffer_load_dwordx4 {V(HB+4*s,4)}, {V(vL16)}, {S(sWS,4)}, {S(sT1)} offen offset:{(s%4)*1024} sc1")
wave0(epoch_bump)
vCT = 15
op(f"v_add_u32 {V(vCT)}, {L_CT}, {V(vL16)}")
SF4, vR4, vC, TP = 28, 26, 18, 252
C1 = -2.0 * math.log2(math.e) * math.sqrt(2.0/math.pi)
op(f"v_mov_b32 {V(vC)}, {hx(f2u(C1))}")
op(f"v_mov_b32 {V(vC+1)}, {hx(f2u(C1*0.044715))}")
for r in range(TP, TP+4):
    op(f"v_mov_b32 {V(r)}, 0")
seq = []
for s in range(32):
    seq += [(0, s), (1, s)]
seq += [(2, s) for s in range(4)] + [(0, 'r'), (1, 'r')] + [(2, s) for s in range(4, 32)] + [(2, 'r')]
seq += [(3, s) for s in range(32)] + [(3, 'r')]
NS, LA = 7, 5
hi_state = {nb: False for nb in range(4)}
def frag_read(n):
    nb, s = seq[n]
    d = RING4 + 4*(n % NS)
    if s == 'r':
        op(f"ds_read_b128 {V(d,4)}, {V(vCT)} offset:{nb*1024}")
        return
    if s >= 16 and not hi_state[nb]:
        op(f"v_add_u32 {V(vA+nb)}, 0x10000, {V(vA+nb)}")
        hi_state[nb] = True
    op(f"ds_read_b64_tr_b16 {V(d,2)}, {V(vA+nb)} offset:{(s%16)*4096}")
    op(f"ds_read_b64_tr_b16 {V(d+2,2)}, {V(vA+nb)} offset:{(s%16)*4096+2048}")
def frag_mfma(n):
    nb, s = seq[n]
    d = V(GA+16*nb, 16)
    b = V(SF4,4) if s == 'r' else V(HB+4*s,4)
    mfma(d, V(RING4+4*(n % NS),4), b, "0" if s == 0 else d)
def gelu_ops(nb):
    o = []
    a0 = GA + 16*nb
    for i in range(0, 8, 2):
        prs = [(a0+2*i, TP), (a0+2*i+2, TP+2)]
        for a, T in prs: o.append(f"v_pk_mul_f32 {V(a,2)}, {V(a,2)}, {V(vR4,2)} op_sel_hi:[1,0]")
        for a, T in prs: o.append(f"v_pk_mul_f32 {V(T,2)}, {V(a,2)}, {V(a,2)}")
        for a, T in prs: o.append(f"v_pk_fma_f32 {V(T,2)}, {V(T,2)}, {V(vC,2)}, {V(vC,2)} op_sel:[0,1,0] op_sel_hi:[1,1,0]")
        for a, T in prs: o.append(f"v_pk_mul_f32 {V(T,2)}, {V(T,2)}, {V(a,2)}")
        for a, T in prs: o += [f"v_exp_f32 {V(T)}, {V(T)}", f"v_exp_f32 {V(T+1)}, {V(T+1)}"]
        for a, T in prs: o.append(f"v_pk_add_f32 {V(T,2)}, {V(T,2)}, 1.0 op_sel_hi:[1,0]")
        for a, T in prs: o += [f"v_rcp_f32 {V(T)}, {V(T)}", f"v_rcp_f32 {V(T+1)}, {V(T+1)}"]
        for a, T in prs: o.append(f"v_pk_mul_f32 {V(T,2)}, {V(T,2)}, {V(a,2)}")
        for k, (a, T) in enumerate(prs): o.append(f"v_cvt_pk_bf16_f32 {V(a0+i+k)}, {V(T)}, {V(T+1)}")
    o.append(("store", nb))
    return o
sG0 = sT4
op(f"s_lshl_b32 {S(sT2)}, {S(sG)}, 2")
op(f"s_add_u32 {S(sT2)}, {S(sT2)}, {S(sW)}")
op(f"s_mul_i32 {S(sT2)}, {S(sT2)}, 112")
op(f"s_lshl_b32 {S(sT3)}, {S(sM)}, 3")
op(f"s_add_u32 {S(sT2)}, {S(sT2)}, {S(sT3)}")
op(f"s_lshl_b32 {S(sT2)}, {S(sT2)}, 10")
op(f"s_add_u32 {S(sG0)}, {S(sT2)}, {hx(WS_G)}")
op(f"s_add_u32 {S(sT3)}, {S(sG0)}, 4096")
def emit_filler(x):
    if isinstance(x, tuple):
        nb = x[1]
        so = S(sG0) if nb < 2 else S(sT3)
        def st(m):
            op(f"buffer_store_dwordx4 {V(GA+16*nb,4)}, {V(vL16)}, {S(sWS,4)}, {so} offen offset:{(nb%2)*2048}{m}")
            op(f"buffer_store_dwordx4 {V(GA+16*nb+4,4)}, {V(vL16)}, {S(sWS,4)}, {so} offen offset:{(nb%2)*2048+1024}{m}")
        stores_mode(st)
    else:
        op(x)
def stats4():
    s0, s1, q0, q1 = TP, TP+1, TP+2, TP+3
    t0, t1, t2 = 14, 17, 27
    op(f"v_add_f32 {V(s0)}, {V(s0)}, {V(s1)}")
    op(f"v_add_f32 {V(q0)}, {V(q0)}, {V(q1)}")
    halves_sum(s0, t0); halves_sum(q0, t1)
    op(f"v_mul_f32 {V(s0)}, {hx(f2u(-1.0/512))}, {V(s0)}")
    op(f"v_mul_f32 {V(t0)}, {V(s0)}, {V(s0)}")
    op(f"v_mul_f32 {V(q0)}, {hx(f2u(1.0/512))}, {V(q0)}")
    op(f"v_sub_f32 {V(q0)}, {V(q0)}, {V(t0)}")
    op(f"v_max_f32 {V(q0)}, 0, {V(q0)}")
    op(f"v_add_f32 {V(t0)}, {hx(f2u(1e-5))}, {V(q0)}")
    op(f"v_rsq_f32 {V(t1)}, {V(t0)}")
    op(f"v_mul_f32 {V(q0)}, {V(q0)}, {V(t1)}")
    op(f"v_mul_f32 {V(q0)}, {V(q0)}, {V(t1)}")
    op(f"v_add_f32 {V(q0)}, {hx(f2u(1e-5))}, {V(q0)}")
    op(f"v_rsq_f32 {V(q1)}, {V(q0)}")
    op(f"v_mul_f32 {V(t0)}, {V(t0)}, {V(t1)}")
    op(f"v_mul_f32 {V(vR4)}, {V(t1)}, {V(q1)}")
    op(f"v_mul_f32 {V(q0)}, {V(q0)}, {V(q1)}")
    op(f"v_mul_f32 {V(q0)}, {V(q0)}, {V(t0)}")
    split_hi_lo(s0, t0, t1, t2)
    op(f"v_cvt_pk_bf16_f32 {V(SF4)}, {V(s0)}, {V(t1)}")
    op(f"v_cvt_pk_bf16_f32 {V(SF4+1)}, {V(s0)}, {V(q0)}")
    split_hi_lo(q0, t0, t1, t2)
    op(f"v_cvt_pk_bf16_f32 {V(SF4+2)}, {V(t1)}, 0")
    op(f"v_mov_b32 {V(SF4+3)}, 0")
    for k in range(3):
        op(f"v_cndmask_b32 {V(SF4+k)}, 0, {V(SF4+k)}, {S(sLOW,2)}")
iB0 = seq.index((1, 'r')) + 1
iC0 = seq.index((2, 'r')) + 1
fillB = gelu_ops(0) + gelu_ops(1)
fillC = gelu_ops(2)
nB = iC0 - (iB0 + 2)
nC = len(seq) - (iC0 + 2)
for n in range(LA):
    frag_read(n)
for n in range(len(seq)):
    if n + LA < len(seq):
        frag_read(n + LA)
    frag_mfma(n)
    nb, s = seq[n]
    if n < 64:
        x = HB + 4*s
        js = (0, 1) if nb == 0 else (2, 3)
        for j in js:
            op(dot_ones(TP + (j & 1), x+j))
            op(dot_sq(TP + 2 + (j & 1), x+j))
        if n == 63:
            stamp("p4_passA")
            stats4()
    elif iB0 + 2 <= n < iC0:
        k = n - (iB0 + 2)
        for x in fillB[len(fillB)*k//nB : len(fillB)*(k+1)//nB]:
            emit_filler(x)
    elif n >= iC0 + 2:
        k = n - (iC0 + 2)
        for x in fillC[len(fillC)*k//nC : len(fillC)*(k+1)//nC]:
            emit_filler(x)
stamp("p4_mfma")
for x in gelu_ops(3):
    emit_filler(x)
group_signal(3)
stamp("g_signaled")
e.label("L_p4_skip")

op(f"s_mul_i32 {S(sT3)}, {S(sW)}, 40960")
op(f"s_mul_i32 {S(sT2)}, {S(sW)}, {448*1024}")
wo_like_addr(26, 27, S(sT3), 0)
op(f"s_mul_i32 {S(sT2)}, {S(sW)}, {448*1024}")
for lo, hi in ((0, 20), (20, 28)):
    tok = None
    for i in range(2*lo, 2*hi):
        op(f"s_add_u32 m0, {S(sT3)}, {(i-2*lo)*1024}")
        op(f"s_add_u32 {S(sT1)}, {S(sT2)}, {i*8192}")
        tok = dma(vWD, sW2, S(sT1))
    e.wait_tok(tok)
    for s in range(lo, hi):
        for u in range(2):
            for j in range(2):
                op(f"ds_read_b64_tr_b16 {A(8*s+4*u+2*j,2)}, {V(26+u)} offset:{(s-lo)*2048+j*1024}")
    e.wait(lg=0)
stamp("w2_done")
def mask14():
    op(f"s_mov_b32 {S(sT2)}, 0x3fff")
    op(f"s_mov_b32 {S(sT3)}, 0")
group_wait(3, mask14)
stamp("g_ok")
GB, NG, RT5, ACC5 = 32, 34, 168, 192
op(f"s_mul_i32 {S(sT0)}, {S(sTB)}, 224")
op(f"s_mul_i32 {S(sT1)}, {S(sW)}, 28")
op(f"s_add_u32 {S(sT0)}, {S(sT0)}, {S(sT1)}")
op(f"s_lshl_b32 {S(sT0)}, {S(sT0)}, 10")
op(f"s_add_u32 {S(sT0)}, {S(sT0)}, {hx(WS_G)}")
def g_load(n):
    t, s = divmod(n, 28)
    if s % 4 == 0:
        op(f"s_add_u32 {S(sT4)}, {S(sT0)}, {(t*112+s)*1024}")
    op(f"buffer_load_dwordx4 {V(GB+4*(n%NG),4)}, {V(vL16)}, {S(sWS,4)}, {S(sT4)} offen offset:{(s%4)*1024} sc1")
for n in range(NG):
    g_load(n)
reduce_addrs(0)
for n in range(56):
    t, s = divmod(n, 28)
    for u in range(2):
        d = V(ACC5+32*t+16*u, 16)
        mfma(d, A(8*s+4*u,4), V(GB+4*(n%NG),4), "0" if s == 0 else d)
    if n + NG < 56:
        g_load(n + NG)
    if n == 28 + 4:
        red_write(ACC5, 0)
    if n == 28 + 12:
        e.wait(lg=0)
        e.barrier()
        red_read(RT5, 0)
    if n == 28 + 18:
        red_sum(ACC5, RT5, 0)
        add_packed(ACC5, vRES, RT5)
        add_packed(ACC5, vB2, RT5)
        for k in range(4):
            op(f"v_cvt_pk_bf16_f32 {V(vRES+k)}, {V(ACC5+2*k)}, {V(ACC5+2*k+1)}")
stamp("p5_mfma")
red_write(ACC5, 1)
L_OT = 65536
op(f"v_and_b32 {V(17)}, 31, {V(vL)}")
op(f"v_mul_u32_u24 {V(17)}, 144, {V(17)}")
op(f"v_lshrrev_b32 {V(18)}, 5, {V(vL)}")
op(f"v_lshl_add_u32 {V(17)}, {V(18)}, 3, {V(17)}")
op(f"s_lshl_b32 {S(sT1)}, {S(sW)}, 5")
op(f"s_add_u32 {S(sT1)}, {S(sT1)}, {L_OT}")
op(f"v_add_u32 {V(17)}, {S(sT1)}, {V(17)}")
op(f"ds_write_b64 {V(17)}, {V(vRES,2)}")
op(f"ds_write_b64 {V(17)}, {V(vRES+2,2)} offset:16")
e.wait(lg=0)
e.barrier()
red_read(RT5, 1)
op(f"v_lshrrev_b32 {V(18)}, 3, {V(vL)}")
op(f"v_and_b32 {V(19)}, 7, {V(vL)}")
op(f"v_lshlrev_b32 {V(19)}, 4, {V(19)}")
op(f"v_lshl_add_u32 {V(20)}, {V(18)}, 10, {V(19)}")
op(f"v_mul_u32_u24 {V(18)}, 144, {V(18)}")
op(f"v_add_u32 {V(18)}, {V(18)}, {V(19)}")
op(f"s_mul_i32 {S(sT1)}, {S(sW)}, {16*144}")
op(f"s_add_u32 {S(sT1)}, {S(sT1)}, {L_OT}")
op(f"v_add_u32 {V(18)}, {S(sT1)}, {V(18)}")
op(f"s_lshl_b32 {S(sT0)}, {S(sTB)}, 16")
op(f"s_lshl_b32 {S(sT1)}, {S(sW)}, 14")
op(f"s_add_u32 {S(sT0)}, {S(sT0)}, {S(sT1)}")
op(f"s_lshl_b32 {S(sT1)}, {S(sHQ)}, 7")
op(f"s_add_u32 {S(sT0)}, {S(sT0)}, {S(sT1)}")
op(f"s_add_u32 {S(sT1)}, {S(sT0)}, 8192")
red_sum(ACC5, RT5, 1)
add_packed(ACC5+32, vRES+4, RT5)
add_packed(ACC5+32, vB2, RT5)
for k in range(4):
    op(f"v_cvt_pk_bf16_f32 {V(vRES+4+k)}, {V(ACC5+32+2*k)}, {V(ACC5+32+2*k+1)}")
op(f"ds_write_b64 {V(17)}, {V(vRES+4,2)} offset:{32*144}")
op(f"ds_write_b64 {V(17)}, {V(vRES+6,2)} offset:{32*144+16}")
e.wait(lg=0)
e.barrier()
op(f"ds_read_b128 {V(32,4)}, {V(18)}")
op(f"ds_read_b128 {V(36,4)}, {V(18)} offset:{8*144}")
op(f"buffer_store_dwordx4 {V(32,4)}, {V(20)}, {S(sOUT,4)}, {S(sT0)} offen")
op(f"buffer_store_dwordx4 {V(36,4)}, {V(20)}, {S(sOUT,4)}, {S(sT1)} offen")
if PROF:
    e.wait(vm=0)
    stamp("end")
    op(f"s_lshl_b32 {S(sT0)}, {S(sG)}, 4")
    op(f"s_add_u32 {S(sT0)}, {S(sT0)}, {S(sM)}")
    op(f"s_lshl_b32 {S(sT0)}, {S(sT0)}, 2")
    op(f"s_add_u32 {S(sT0)}, {S(sT0)}, {S(sW)}")
    op(f"s_lshl_b32 {S(sT0)}, {S(sT0)}, 8")
    op(f"s_add_u32 {S(sT0)}, {S(sT0)}, {hx(WS_PROF)}")
    op(f"v_writelane_b32 {V(vST)}, {S(sFAST)}, 62")
    op(f"v_writelane_b32 {V(vST)}, {S(sXCC)}, 63")
    op(f"v_lshlrev_b32 {V(17)}, 2, {V(vL)}")
    op(f"buffer_store_dword {V(vST)}, {V(17)}, {S(sWS,4)}, {S(sT0)} offen")
e.label("L_end")
op("s_endpgm")

hdr = open("cdna_kernels/" + NAME + ".s.ref").read().split("; Override launch")[0]
txt = hdr
txt += "; One persistent launch: 256 workgroups (one per CU), five phases handed over through d_ws.\n"
txt += f"; @launch grid=(256,1,1) block=(256,1,1) lds={LDS_BYTES}\n"
txt += f""".amdgcn_target "amdgcn-amd-amdhsa--gfx950"
.text
.globl {KERNEL}
.p2align 8
.type {KERNEL},@function
{KERNEL}:
"""
txt += e.text()
txt += f"""L_code_end:
.section .rodata,"a"
.p2align 6
.amdhsa_kernel {KERNEL}
  .amdhsa_next_free_vgpr 512
  .amdhsa_next_free_sgpr 102
  .amdhsa_accum_offset 256
  .amdhsa_group_segment_fixed_size 0
  .amdhsa_kernarg_size 88
  .amdhsa_user_sgpr_count 2
  .amdhsa_user_sgpr_kernarg_segment_ptr 1
  .amdhsa_system_sgpr_workgroup_id_x 1
  .amdhsa_float_denorm_mode_32 3
.end_amdhsa_kernel
"""
out = [a for a in sys.argv[1:] if not a.startswith("--")]
open(out[0] if out else "out.s", "w").write(txt)
print("instructions", e.n_ins, "nops", e.n_nop, file=sys.stderr)
if PROF:
    open("stamps.txt", "w").write("\n".join(stamp_names) + "\n")
```

```python
import sys, math, struct
from emit import Emitter, V, A, S, interleave

NAME = "sequential_preLN__sliding_block__mixer_channel_mlp__prompt"
PROF = "--prof" in sys.argv
SLOW = "--slow" in sys.argv

def f2u(x):
    return struct.unpack("<I", struct.pack("<f", x))[0]
def hx(x):
    return f"0x{x & 0xffffffff:x}"

WS_E, WS_CEN, WS_GF, WS_HALO = 0x0, 0x400, 0x1000, 0x2000
WS_K, WS_V, WS_O, WS_H, WS_G = 0x10000, 0x210000, 0x410000, 0x610000, 0x810000
WS_PROF = 0xF20000
WS_SIZE = 0x1000000
L_X, L_RING, L_MISC = 0, 65536, 147456
L_EX = L_RING + 2 * 16384
L_QX = L_MISC + 4096
L_R3 = 114688
L_CT = 131072
LDS_BYTES = 163840
sX, sWQ, sWO, sW1, sW2, sWS, sOUT, sB1, sB2 = 8, 12, 16, 20, 24, 28, 32, 36, 40
sDBG = 6
sW, sG, sM, sTB, sHQ, sXCC, sBASE, sTHI, sFAST, sELO = range(44, 54)
sT0, sT1, sT2, sT3, sT4, sT5 = range(54, 60)
sWOFF, sP, sT_ = 60, 61, 62
sONES = 63
sCM = 64
sCW, sCX = 64, 72
sLOW = 96
sM16 = 98
sPA, sPB = 100, 4
vL, vL16, vRES, vB2, vST, vTLO, vTHI = 0, 1, 2, 10, 16, 14, 15

e = Emitter()
op = e.op
stamp_n = [0]
stamp_names = []

def stamp(name):
    if not PROF:
        return
    i = stamp_n[0]; stamp_n[0] += 1
    stamp_names.append(name)
    op(f"s_memrealtime {S(sPA,2)}")
    e.wait(lg=0)
    op(f"v_writelane_b32 {V(vST)}, {S(sPA)}, {i}")

def srd(dst, src, size):
    op(f"s_mov_b32 {S(dst)}, {S(src)}")
    op(f"s_and_b32 {S(dst+1)}, {S(src+1)}, 0xffff")
    op(f"s_mov_b32 {S(dst+2)}, {hx(size)}")
    op(f"s_mov_b32 {S(dst+3)}, 0x20000")

def dma(voff, srdreg, soff, imm=0, mods=""):
    o = f" offset:{imm}" if imm else ""
    return op(f"buffer_load_dwordx4 {V(voff)}, {S(srdreg,4)}, {soff} offen{o}{mods} lds")

def mfma(d, a, b, c):
    op(f"v_mfma_f32_32x32x16_bf16 {d}, {a}, {b}, {c}")

def halves_sum(r, tmp):
    op(f"v_mov_b32 {V(tmp)}, {V(r)}")
    op(f"v_permlane32_swap_b32 {V(r)}, {V(tmp)}")
    op(f"v_add_f32 {V(r)}, {V(r)}, {V(tmp)}")

def split_hi_lo(val, hi_pk, lo, tmp):
    op(f"v_cvt_pk_bf16_f32 {V(hi_pk)}, {V(val)}, {V(val)}")
    op(f"v_and_b32 {V(tmp)}, 0xffff0000, {V(hi_pk)}")
    op(f"v_sub_f32 {V(lo)}, {V(val)}, {V(tmp)}")

def poll(voff, soff, need_mask, lo_expect, span, tlo, thi, code):
    L = e.fresh("poll"); D = e.fresh("polldone"); T = e.fresh("pollto")
    op(f"s_mov_b32 {S(sT5)}, 0x40000")
    e.wait(vm=0, lg=0)
    e.loop_label(L)
    op(f"buffer_load_dwordx2 {V(tlo,2)}, {V(voff)}, {S(sWS,4)}, {soff} offen sc1")
    e.wait(vm=0)
    op(f"v_subrev_u32 {V(tlo)}, {lo_expect}, {V(tlo)}")
    op(f"v_cmp_eq_u32 vcc, {thi}, {V(tlo+1)}")
    op(f"v_cmp_gt_u32 {S(sPA,2)}, {span}, {V(tlo)}")
    op(f"s_and_b64 vcc, vcc, {S(sPA,2)}")
    op(f"s_andn2_b64 {S(sPA,2)}, {need_mask}, vcc")
    op(f"s_cbranch_scc0 {D}")
    op(f"s_sub_u32 {S(sT5)}, {S(sT5)}, 1")
    op(f"s_cbranch_scc1 {T}")
    op(f"s_branch {L}")
    e.label(T)
    op(f"v_mov_b32 {V(tlo)}, {code}")
    op(f"v_mov_b32 {V(tlo+1)}, 0")
    op(f"global_store_dword {V(tlo+1)}, {V(tlo)}, {S(sDBG,2)}")
    e.wait(vm=0)
    e.label(D)

def stores_mode(fn):
    F = e.fresh("fast"); D = e.fresh("stdone")
    op(f"s_cmp_eq_u32 {S(sFAST)}, 1")
    op(f"s_cbranch_scc1 {F}")
    fn(" sc1")
    op(f"s_branch {D}")
    e.label(F)
    fn("")
    e.label(D)

def wave0(fn):
    D = e.fresh("w0")
    op(f"s_cmp_lg_u32 {S(sW)}, 0")
    op(f"s_cbranch_scc1 {D}")
    fn()
    e.label(D)

def group_signal(phase):
    e.wait(vm=0)
    e.barrier()
    def f():
        op(f"s_add_u32 {S(sT0)}, {S(sBASE)}, {8+phase}")
        op(f"v_mov_b32 {V(18)}, {S(sT0)}")
        op(f"v_mov_b32 {V(19)}, {S(sTHI)}")
        op(f"s_lshl_b32 {S(sT1)}, {S(sG)}, 7")
        op(f"s_lshl_b32 {S(sT2)}, {S(sM)}, 3")
        op(f"s_add_u32 {S(sT1)}, {S(sT1)}, {S(sT2)}")
        op(f"s_add_u32 {S(sT1)}, {S(sT1)}, {hx(WS_GF)}")
        op(f"v_mov_b32 {V(17)}, 0")
        op("s_mov_b64 exec, 1")
        stores_mode(lambda m: op(f"buffer_store_dwordx2 {V(18,2)}, {V(17)}, {S(sWS,4)}, {S(sT1)} offen{m}"))
        op("s_mov_b64 exec, -1")
    wave0(f)

def group_wait(phase, mask_fn):
    def f():
        mask_fn()
        op(f"v_and_b32 {V(17)}, 15, {V(vL)}")
        op(f"v_lshlrev_b32 {V(17)}, 3, {V(17)}")
        op(f"s_lshl_b32 {S(sT1)}, {S(sG)}, 7")
        op(f"s_add_u32 {S(sT1)}, {S(sT1)}, {hx(WS_GF)}")
        op(f"s_add_u32 {S(sT0)}, {S(sBASE)}, {8+phase}")
        poll(17, S(sT1), S(sT2,2), S(sT0), 4-phase, 18, S(sTHI), 0x100+phase)
    wave0(f)
    e.barrier()

KERNEL = NAME + "_kernel"
op("s_cmp_ge_u32 s2, 0x100")
op("s_cbranch_scc1 L_end")
op("s_load_dwordx16 s[44:59], s[0:1], 0")
op("s_load_dwordx4 s[60:63], s[0:1], 64")
op("s_load_dwordx2 s[4:5], s[0:1], 80")
op(f"v_lshrrev_b32 {V(17)}, 6, v0")
op(f"v_and_b32 {V(vL)}, 63, v0")
op(f"v_readfirstlane_b32 s3, {V(17)}")
op(f"v_lshlrev_b32 {V(vL16)}, 4, {V(vL)}")
if PROF:
    op(f"v_mov_b32 {V(vST)}, 0")
vXD0, vXD1, vWD0, vWD1 = 20, 21, 22, 23
vXR = 24
vWRe, vWRo, vWReH, vWRoH = 28, 29, 30, 31
op(f"v_lshrrev_b32 {V(17)}, 3, {V(vL)}")
op(f"v_lshrrev_b32 {V(18)}, 4, {V(vL)}")
op(f"v_and_b32 {V(19)}, 7, {V(vL)}")
op(f"v_xor_b32 {V(vXD0)}, {V(19)}, {V(18)}")
op(f"v_lshlrev_b32 {V(vXD0)}, 4, {V(vXD0)}")
op(f"v_lshl_add_u32 {V(vXD0)}, {V(17)}, 10, {V(vXD0)}")
op(f"v_and_b32 {V(18)}, 1, {V(18)}")
op(f"v_lshlrev_b32 {V(18)}, 2, {V(18)}")
op(f"v_xor_b32 {V(19)}, {V(19)}, {V(18)}")
op(f"v_lshlrev_b32 {V(19)}, 4, {V(19)}")
vWSW = 17
op(f"v_mul_u32_u24 {V(vWD0)}, 3072, {V(17)}")
op(f"v_add_u32 {V(vWD0)}, {V(vWD0)}, {V(19)}")
op("s_and_b32 s96, s2, 7")
op("s_lshr_b32 s97, s2, 3")
e.wait(lg=0)
srd(sX, 44, 2048*1024)
srd(sWQ, 46, 512*3072)
srd(sWO, 48, 512*1024)
srd(sW1, 52, 512*3584)
srd(sB1, 54, 1792*2)
srd(sW2, 56, 1792*1024)
srd(sB2, 58, 1024)
srd(sOUT, 60, 2048*1024)
srd(sWS, 4, WS_SIZE)
op(f"s_mov_b64 {S(sDBG,2)}, s[62:63]")
op(f"s_mov_b32 {S(sW)}, s3")
op(f"s_lshr_b32 {S(sT0)}, s97, 4")
op(f"s_lshl_b32 {S(sG)}, s96, 1")
op(f"s_add_u32 {S(sG)}, {S(sG)}, {S(sT0)}")
op(f"s_and_b32 {S(sM)}, s97, 15")
op(f"s_lshr_b32 {S(sT0)}, {S(sM)}, 3")
op(f"s_lshl_b32 {S(sTB)}, {S(sG)}, 1")
op(f"s_add_u32 {S(sTB)}, {S(sTB)}, {S(sT0)}")
op(f"s_and_b32 {S(sHQ)}, {S(sM)}, 7")
op(f"s_lshl_b32 {S(sWOFF)}, {S(sW)}, 11")
op(f"s_lshr_b32 {S(sP)}, {S(sW)}, 1")
op(f"s_and_b32 {S(sT_)}, {S(sW)}, 1")
op(f"s_mov_b32 {S(sONES)}, 0x3f803f80")
op(f"s_lshl_b32 {S(sT1)}, {S(sTB)}, 16")
op(f"s_lshl_b32 {S(sT2)}, {S(sW)}, 14")
op(f"s_add_u32 {S(sT1)}, {S(sT1)}, {S(sT2)}")
op(f"v_add_u32 {V(vXD0)}, {S(sT1)}, {V(vXD0)}")
op(f"v_xor_b32 {V(vXD1)}, 64, {V(vXD0)}")
op(f"v_add_u32 {V(vXD1)}, {8192-1024}, {V(vXD1)}")
op(f"s_mul_i32 {S(sT1)}, {S(sW)}, {16*3072}")
op(f"s_lshl_b32 {S(sT2)}, {S(sHQ)}, 7")
op(f"s_add_u32 {S(sT1)}, {S(sT1)}, {S(sT2)}")
op(f"v_add_u32 {V(vWD0)}, {S(sT1)}, {V(vWD0)}")
op(f"v_add_u32 {V(vWD1)}, {8*3072-1024}, {V(vWD0)}")
op(f"s_lshl_b32 {S(sT0)}, {S(sT0)}, 2")
op(f"s_add_u32 {S(sT4)}, {S(sT0)}, {S(sHQ)}")
stamp("start")
if PROF:
    op(f"s_memtime {S(sPA,2)}")
    e.wait(lg=0)
    op(f"v_writelane_b32 {V(vST)}, {S(sPA)}, 60")

def chunk_offs(i):
    op(f"s_add_u32 {S(sT1)}, {S(sT4)}, {i}")
    op(f"s_and_b32 {S(sT1)}, {S(sT1)}, 7")
    op(f"s_lshl_b32 {S(sCX+i)}, {S(sT1)}, 7")
    op(f"s_mul_i32 {S(sCW+i)}, {S(sT1)}, {64*3072}")

def dma_x(i):
    op(f"s_add_u32 m0, {S(sWOFF)}, {L_X + i*8192}")
    op("s_nop 0")
    dma(vXD0, sX, S(sCX+i))
    return dma(vXD1, sX, S(sCX+i), 1024)

def dma_item(it):
    slot = it % 5
    tok = None
    for sg in range(2):
        if it < 8:
            ch, seg = it, 1 + sg
        else:
            ch, seg = 2*(it-8) + sg, 0
        op(f"s_add_u32 m0, {S(sWOFF)}, {L_RING + slot*16384 + sg*8192}")
        op(f"s_add_u32 {S(sT1)}, {S(sCW+ch)}, {seg*1024}")
        dma(vWD0, sWQ, S(sT1))
        tok = dma(vWD1, sWQ, S(sT1), 1024)
    return tok

op(f"s_add_u32 {S(sT1)}, {S(sTB)}, 1")
op(f"v_add_u32 {V(18)}, {S(sT1)}, {V(vL)}")
op(f"v_lshrrev_b32 {V(18)}, 1, {V(18)}")
op(f"v_min_u32 {V(18)}, 15, {V(18)}")
op(f"v_mov_b32 {V(19)}, {S(sG)}")
op(f"v_cmp_gt_u32 vcc, 4, {V(vL)}")
op(f"v_cndmask_b32 {V(18)}, {V(19)}, {V(18)}, vcc")
op(f"v_lshlrev_b32 {V(18)}, 3, {V(18)}")
tokE = op(f"buffer_load_dwordx2 {V(vTLO,2)}, {V(18)}, {S(sWS,4)}, 0 offen sc1")

xtok, itok = {}, {}
for i in range(5):
    chunk_offs(i)
    xtok[i] = dma_x(i)
    itok[i] = dma_item(i)
for i in range(5, 8):
    chunk_offs(i)
    xtok[i] = dma_x(i)

op(f"s_getpc_b64 {S(sPA,2)}")
e.label("L_pc")
op(f"s_sub_u32 {S(sPA)}, {S(sPA)}, L_pc-{KERNEL}")
op(f"s_subb_u32 {S(sPA+1)}, {S(sPA+1)}, 0")
op(f"s_lshl_b32 {S(sT1)}, s97, 4")
op(f"v_and_b32 {V(18)}, 15, {V(vL)}")
op(f"v_add_u32 {V(18)}, {S(sT1)}, {V(18)}")
op(f"v_lshlrev_b32 {V(18)}, 7, {V(18)}")
op(f"v_min_u32 {V(18)}, L_code_end-{KERNEL}-4, {V(18)}")
op(f"global_load_dword {V(190)}, {V(18)}, {S(sPA,2)}")

op(f"v_lshrrev_b32 {V(17)}, 5, {V(vL)}")
op(f"v_lshlrev_b32 {V(17)}, 3, {V(17)}")
op(f"s_lshl_b32 {S(sT1)}, {S(sHQ)}, 7")
op(f"s_lshl_b32 {S(sT2)}, {S(sW)}, 5")
op(f"s_add_u32 {S(sT1)}, {S(sT1)}, {S(sT2)}")
op(f"buffer_load_dwordx2 {V(vB2,2)}, {V(17)}, {S(sB2,4)}, {S(sT1)} offen")
op(f"buffer_load_dwordx2 {V(vB2+2,2)}, {V(17)}, {S(sB2,4)}, {S(sT1)} offen offset:16")

op(f"v_and_b32 {V(17)}, 31, {V(vL)}")
op(f"v_lshrrev_b32 {V(18)}, 5, {V(vL)}")
op(f"v_bfe_u32 {V(32)}, {V(vL)}, 1, 3")
op(f"v_xor_b32 {V(32)}, {V(32)}, {V(18)}")
op(f"v_lshlrev_b32 {V(32)}, 4, {V(32)}")
op(f"v_lshl_add_u32 {V(32)}, {V(17)}, 7, {V(32)}")
op(f"s_lshl_b32 {S(sT1)}, {S(sT_)}, 12")
op(f"v_add_u32 {V(32)}, {S(sT1)}, {V(32)}")
op(f"s_lshl_b32 {S(sT1)}, {S(sT_)}, 5")
op(f"v_xor_b32 {V(32)}, {S(sT1)}, {V(32)}")
for s in range(4):
    op(f"v_xor_b32 {V(vXR+s)}, {s<<5}, {V(32)}")
def tr_base128(dst, half_mul, tmp):
    op(f"v_bfe_u32 {V(tmp)}, {V(vL)}, 2, 2")
    op(f"v_lshlrev_b32 {V(dst)}, 7, {V(tmp)}")
    op(f"v_lshrrev_b32 {V(tmp)}, 1, {V(tmp)}")
    op(f"v_lshl_add_u32 {V(dst)}, {V(tmp)}, 6, {V(dst)}")
    op(f"v_bfe_u32 {V(tmp)}, {V(vL)}, 4, 1")
    op(f"v_lshl_add_u32 {V(dst)}, {V(tmp)}, 5, {V(dst)}")
    op(f"v_and_b32 {V(tmp)}, 3, {V(vL)}")
    op(f"v_lshl_add_u32 {V(dst)}, {V(tmp)}, 3, {V(dst)}")
    op(f"v_lshrrev_b32 {V(tmp)}, 5, {V(vL)}")
    op(f"v_lshl_add_u32 {V(dst)}, {V(tmp)}, {half_mul}, {V(dst)}")
tr_base128(33, 10, 34)
op(f"s_lshl_b32 {S(sT1)}, {S(sP)}, 6")
op(f"v_xor_b32 {V(33)}, {S(sT1)}, {V(33)}")
op(f"v_add_u32 {V(33)}, {L_RING}, {V(33)}")
op(f"s_lshl_b32 {S(sT1)}, {S(sT_)}, 11")
op(f"v_add_u32 {V(vWRe)}, {S(sT1)}, {V(33)}")
op(f"v_subrev_u32 {V(vWRo)}, {S(sT1)}, {V(33)}")
op(f"v_add_u32 {V(vWReH)}, 0x10000, {V(vWRe)}")
op(f"v_add_u32 {V(vWRoH)}, 0x10000, {V(vWRo)}")
op(f"s_mov_b32 {S(sLOW)}, -1")
op(f"s_mov_b32 {S(sLOW+1)}, 0")
op(f"s_mov_b32 {S(sM16)}, 0xffff")
op(f"s_mov_b32 {S(sM16+1)}, 0xffff")
op(f"s_getreg_b32 {S(sXCC)}, hwreg(HW_REG_XCC_ID, 0, 4)")

aK, aV, aQ, aR = 32, 48, 64, 80
XF, WF = 96, 112
sx0, sx1, sq0, sq1, cK0, cK1, cV0, cV1 = range(144, 152)
for r in range(144, 152):
    op(f"v_mov_b32 {V(r)}, 0")

def w_reads(it, sg, s):
    slot = it % 5
    base = (vWRe if s % 2 == 0 else vWRo) if slot < 4 else (vWReH if s % 2 == 0 else vWRoH)
    off = (slot % 4) * 16384 + sg*8192 + s*2048
    d = WF + 16*sg + 4*s
    op(f"ds_read_b64_tr_b16 {V(d,2)}, {V(base)} offset:{off}")
    op(f"ds_read_b64_tr_b16 {V(d+2,2)}, {V(base)} offset:{off+512}")

def x_read(ch, s, d):
    op(f"ds_read_b128 {V(d,4)}, {V(vXR+s)} offset:{L_X + ch*8192}")

def dot_ones(acc, r):
    return f"v_dot2c_f32_bf16 {V(acc)}, {S(sONES)}, {V(r)}"
def dot_sq(acc, r):
    return f"v_dot2c_f32_bf16 {V(acc)}, {V(r)}, {V(r)}"

for it in range(8):
    e.wait_tok(xtok[it], itok[it])
    if it == 0:
        op(f"v_add_u32 {V(vTHI)}, 0x9e3779b9, {V(vTHI)}")
        op(f"v_readlane_b32 {S(sELO)}, {V(vTLO)}, 4")
        op(f"v_add_u32 {V(vTLO)}, 1, {V(vTLO)}")
        op(f"v_lshlrev_b32 {V(vTLO)}, 4, {V(vTLO)}")
        op(f"v_readlane_b32 {S(sTHI)}, {V(vTHI)}, 4")
        op(f"v_readlane_b32 {S(sBASE)}, {V(vTLO)}, 4")
        def census():
            op(f"s_add_u32 {S(sT0)}, {S(sBASE)}, {S(sXCC)}")
            op(f"v_mov_b32 {V(18)}, {S(sT0)}")
            op(f"v_mov_b32 {V(19)}, {S(sTHI)}")
            op(f"s_lshl_b32 {S(sT1)}, {S(sG)}, 7")
            op(f"s_lshl_b32 {S(sT2)}, {S(sM)}, 3")
            op(f"s_add_u32 {S(sT1)}, {S(sT1)}, {S(sT2)}")
            op(f"v_mov_b32 {V(17)}, 0")
            op("s_mov_b64 exec, 1")
            op(f"buffer_store_dwordx2 {V(18,2)}, {V(17)}, {S(sWS,4)}, {S(sT1)} offen offset:{WS_CEN} sc1")
            op("s_mov_b64 exec, -1")
        wave0(census)
    e.wait(lg=0)
    e.barrier()
    if it == 0:
        stamp("p1_first")
    if it >= 1:
        itok[it+4] = dma_item(it+4)
    def reads(s):
        x_read(it, s, XF + 4*s)
        w_reads(it, 0, s)
        w_reads(it, 1, s)
    def comp(s):
        x = XF + 4*s; k = WF + 4*s; v = WF + 16 + 4*s
        first = (it == 0 and s == 0)
        mfma(V(aK,16), V(k,4), V(x,4), "0" if first else V(aK,16))
        for j in range(4):
            op(dot_ones(sx0 if j % 2 == 0 else sx1, x+j))
            op(dot_sq(sq0 if j % 2 == 0 else sq1, x+j))
        mfma(V(aV,16), V(x,4), V(v,4), "0" if first else V(aV,16))
        if s % 2 == 0:
            for j in range(4):
                op(dot_ones(cK0 if j % 2 == 0 else cK1, k+j))
                op(dot_ones(cV0 if j % 2 == 0 else cV1, v+j))
    reads(0); reads(1); reads(2)
    comp(0)
    reads(3)
    comp(1); comp(2); comp(3)
stamp("p1_kvloop")

vMU, vT0, vT1, vT2 = 152, 153, 154, 155
vR = 156
SF, CFK, CFV, RF, ONF = 160, 164, 168, 172, 176
op(f"v_add_f32 {V(cK0)}, {V(cK0)}, {V(cK1)}")
op(f"v_add_f32 {V(cK1)}, {V(cV0)}, {V(cV1)}")
op(f"v_add_f32 {V(sx0)}, {V(sx0)}, {V(sx1)}")
op(f"v_add_f32 {V(sq0)}, {V(sq0)}, {V(sq1)}")
halves_sum(cK0, vT0); halves_sum(cK1, vT1)
vCX = 17
op(f"v_lshlrev_b32 {V(vCX)}, 3, {V(vL)}")
op(f"s_lshl_b32 {S(sT1)}, {S(sW)}, 9")
op(f"s_add_u32 {S(sT1)}, {S(sT1)}, {L_MISC}")
op(f"v_add_u32 {V(vCX)}, {S(sT1)}, {V(vCX)}")
op(f"ds_write_b64 {V(vCX)}, {V(cK0,2)}")
halves_sum(sx0, vT0); halves_sum(sq0, vT1)
op(f"v_mul_f32 {V(vMU)}, {hx(f2u(-1.0/512))}, {V(sx0)}")
op(f"v_mul_f32 {V(vT0)}, {V(vMU)}, {V(vMU)}")
op(f"v_mul_f32 {V(vT1)}, {hx(f2u(1.0/512))}, {V(sq0)}")
op(f"v_sub_f32 {V(vT1)}, {V(vT1)}, {V(vT0)}")
op(f"v_max_f32 {V(vT1)}, 0, {V(vT1)}")
op(f"v_add_f32 {V(vT1)}, {hx(f2u(1e-5))}, {V(vT1)}")
op(f"v_rsq_f32 {V(vR)}, {V(vT1)}")
e.wait(lg=0)
e.barrier()
op(f"v_xor_b32 {V(vCX)}, 512, {V(vCX)}")
op(f"ds_read_b64 {V(cV0,2)}, {V(vCX)}")
op(f"v_mul_f32 {V(vR+1)}, {hx(f2u(0.25*math.log2(math.e)))}, {V(vR)}")
split_hi_lo(vMU, vT0, vT1, vT2)
op(f"v_cvt_pk_bf16_f32 {V(SF)}, {V(vMU)}, {V(vT1)}")
op(f"v_and_b32 {V(SF+1)}, 0xffff, {V(vT0)}")
op(f"v_cndmask_b32 {V(SF)}, 0, {V(SF)}, {S(sLOW,2)}")
op(f"v_cndmask_b32 {V(SF+1)}, 0, {V(SF+1)}, {S(sLOW,2)}")
split_hi_lo(vR, vT0, vT1, vT2)
op(f"v_cvt_pk_bf16_f32 {V(RF)}, {V(vR)}, {V(vT1)}")
op(f"v_cndmask_b32 {V(RF)}, 0, {V(RF)}, {S(sLOW,2)}")
for r in (SF+2, SF+3, CFK+2, CFK+3, CFV+2, CFV+3, RF+1, RF+2, RF+3, ONF+1, ONF+2, ONF+3):
    op(f"v_mov_b32 {V(r)}, 0")
op(f"v_mov_b32 {V(ONF)}, {S(sONES)}")
op(f"v_add_f32 {V(cK0)}, {V(cK0)}, {V(cV0)}")
op(f"v_add_f32 {V(cK1)}, {V(cK1)}, {V(cV1)}")
split_hi_lo(cK0, CFK, vT1, vT2)
op(f"v_cvt_pk_bf16_f32 {V(CFK+1)}, {V(vT1)}, 0")
split_hi_lo(cK1, CFV, vT1, vT2)
op(f"v_cvt_pk_bf16_f32 {V(CFV+1)}, {V(vT1)}, 0")
mfma(V(aR,16), V(RF,4), V(ONF,4), "0")
mfma(V(aK,16), V(CFK,4), V(SF,4), V(aK,16))
mfma(V(aV,16), V(SF,4), V(CFV,4), V(aV,16))
vVS, vKW, vVW = 180, 181, 182
op(f"v_bfe_u32 {V(vT0)}, {V(vL)}, 4, 1")
op(f"v_lshrrev_b32 {V(vT1)}, 5, {V(vL)}")
op(f"v_and_b32 {V(vT2)}, 15, {V(vL)}")
op(f"v_lshlrev_b32 {V(vT2)}, 4, {V(vT2)}")
op(f"v_lshl_add_u32 {V(vT2)}, {V(vT1)}, 8, {V(vT2)}")
vVR = 183
op(f"v_mov_b32 {V(vVR)}, {V(vT2)}")
op(f"v_lshl_add_u32 {V(vVS)}, {V(vT0)}, 16, {V(vT2)}")
op(f"v_lshl_add_u32 {V(vVW)}, {V(vT0)}, 11, {V(vT2)}")
op(f"s_lshl_b32 {S(sT1)}, {S(sP)}, 12")
op(f"s_lshl_b32 {S(sT2)}, {S(sT_)}, 10")
op(f"s_add_u32 {S(sT1)}, {S(sT1)}, {S(sT2)}")
op(f"s_add_u32 {S(sT1)}, {S(sT1)}, {L_EX}")
op(f"v_add_u32 {V(vKW)}, {S(sT1)}, {V(vL16)}")
op(f"v_add_u32 {V(vVW)}, {S(sT1)}, {V(vVW)}")
op(f"s_lshl_b32 {S(sT0)}, {S(sHQ)}, 1")
op(f"s_add_u32 {S(sT0)}, {S(sT0)}, {S(sP)}")
op(f"s_lshl_b32 {S(sT0)}, {S(sT0)}, 7")
op(f"s_lshl_b32 {S(sT1)}, {S(sTB)}, 1")
op(f"s_add_u32 {S(sT0)}, {S(sT0)}, {S(sT1)}")
op(f"s_add_u32 {S(sT0)}, {S(sT0)}, {S(sT_)}")
op(f"s_lshl_b32 {S(sT0)}, {S(sT0)}, 10")
op(f"s_add_u32 {S(sT1)}, {S(sT0)}, {hx(WS_K)}")
op(f"s_add_u32 {S(sT2)}, {S(sT0)}, {hx(WS_K + 65536)}")
op(f"s_add_u32 {S(sT3)}, {S(sT0)}, {hx(WS_V)}")
KP, VP = 96, 104
for i in range(8):
    op(f"v_pk_mul_f32 {V(aK+2*i,2)}, {V(aK+2*i,2)}, {V(vR,2)} op_sel_hi:[1,0]")
for i in range(8):
    op(f"v_cvt_pk_bf16_f32 {V(KP+i)}, {V(aK+2*i)}, {V(aK+2*i+1)}")
op(f"buffer_store_dwordx4 {V(KP,4)}, {V(vL16)}, {S(sWS,4)}, {S(sT1)} offen sc1")
op(f"buffer_store_dwordx4 {V(KP+4,4)}, {V(vL16)}, {S(sWS,4)}, {S(sT2)} offen sc1")
for i in range(8):
    op(f"v_pk_mul_f32 {V(aV+2*i,2)}, {V(aV+2*i,2)}, {V(aR+2*i,2)}")
for i in range(8):
    op(f"v_cvt_pk_bf16_f32 {V(VP+i)}, {V(aV+2*i)}, {V(aV+2*i+1)}")
op(f"buffer_store_dwordx4 {V(VP,4)}, {V(vVS)}, {S(sWS,4)}, {S(sT3)} offen sc1")
op(f"buffer_store_dwordx4 {V(VP+4,4)}, {V(vVS)}, {S(sWS,4)}, {S(sT3)} offen offset:512 sc1")
op(f"ds_write_b128 {V(vKW)}, {V(KP,4)}")
op(f"ds_write_b128 {V(vKW)}, {V(KP+4,4)} offset:2048")
op(f"ds_write_b128 {V(vVW)}, {V(VP,4)} offset:8192")
op(f"ds_write_b128 {V(vVW)}, {V(VP+4,4)} offset:{8192+512}")
stamp("kv_stored")
op(f"v_and_b32 {V(vT0)}, 31, {V(vL)}")
op(f"v_bfe_u32 {V(vT1)}, {V(vL)}, 1, 3")
op(f"s_lshl_b32 {S(sT1)}, {S(sW)}, 1")
op(f"v_xor_b32 {V(vT1)}, {S(sT1)}, {V(vT1)}")
op(f"v_lshlrev_b32 {V(vT1)}, 4, {V(vT1)}")
op(f"v_lshl_add_u32 {V(vT1)}, {V(vT0)}, 7, {V(vT1)}")
op(f"v_lshrrev_b32 {V(vT0)}, 5, {V(vL)}")
op(f"v_lshl_add_u32 {V(vT1)}, {V(vT0)}, 3, {V(vT1)}")
op(f"s_and_b32 {S(sT1)}, {S(sTB)}, 1")
op(f"s_lshl_b32 {S(sT1)}, {S(sT1)}, 15")
op(f"v_add_u32 {V(vT1)}, {S(sT1)}, {V(vT1)}")
op(f"v_xor_b32 {V(vT2)}, 16, {V(vT1)}")
for t in range(2):
    op(f"ds_read_b64 {V(vRES+4*t,2)}, {V(vT1)} offset:{L_X + t*4096}")
    op(f"ds_read_b64 {V(vRES+4*t+2,2)}, {V(vT2)} offset:{L_X + t*4096}")

cQ0, cQ1 = 144, 145
op(f"v_mov_b32 {V(cQ0)}, 0")
op(f"v_mov_b32 {V(cQ1)}, 0")
XF2 = 184
for it in range(8, 12):
    if it == 9:
        e.wait(vm=0)
    else:
        e.wait_tok(itok[it])
    e.wait(lg=0)
    e.barrier()
    if it == 9:
        def halo_flags():
            op(f"s_add_u32 {S(sT1)}, {S(sTB)}, 1")
            op(f"v_add_u32 {V(17)}, {S(sT1)}, {V(vL)}")
            op(f"v_cmp_gt_u32 vcc, 32, {V(17)}")
            op(f"v_cmp_gt_u32 {S(sPA,2)}, 4, {V(vL)}")
            op(f"v_lshlrev_b32 {V(17)}, 3, {V(17)}")
            op(f"v_add_u32 {V(17)}, {S(sHQ)}, {V(17)}")
            op(f"v_lshlrev_b32 {V(17)}, 4, {V(17)}")
            op(f"v_add_u32 {V(17)}, {V(17)}, {V(vL)}")
            op(f"v_lshlrev_b32 {V(17)}, 3, {V(17)}")
            op(f"v_add_u32 {V(18)}, 15, {V(vTLO)}")
            op(f"v_mov_b32 {V(19)}, {V(vTHI)}")
            op(f"s_and_b64 {S(sPA,2)}, {S(sPA,2)}, vcc")
            D = e.fresh("nohalo")
            op(f"s_cbranch_scc0 {D}")
            op(f"s_mov_b64 exec, {S(sPA,2)}")
            op(f"s_mov_b32 {S(sT1)}, {hx(WS_HALO)}")
            op(f"buffer_store_dwordx2 {V(18,2)}, {V(17)}, {S(sWS,4)}, {S(sT1)} offen sc1")
            op("s_mov_b64 exec, -1")
            e.label(D)
        wave0(halo_flags)
        stamp("halo_sent")
        op(f"v_and_b32 {V(17)}, 15, {V(vL)}")
        op(f"v_lshlrev_b32 {V(17)}, 3, {V(17)}")
        op(f"s_lshl_b32 {S(sT1)}, {S(sG)}, 7")
        tokC = op(f"buffer_load_dwordx2 {V(146,2)}, {V(17)}, {S(sWS,4)}, {S(sT1)} offen offset:{WS_CEN} sc1")
    for sg in range(2):
        ch = 2*(it-8) + sg
        for s in range(4):
            x_read(ch, s, XF + 4*s)
            w_reads(it, sg, s)
        for s in range(4):
            x = XF + 4*s; q = WF + 16*sg + 4*s
            first = (ch == 0 and s == 0)
            mfma(V(aQ,16), V(q,4), V(x,4), "0" if first else V(aQ,16))
            if s % 2 == 0:
                for j in range(4):
                    op(dot_ones(cQ0 if j % 2 == 0 else cQ1, q+j))
stamp("q_loop")
op(f"v_add_f32 {V(cQ0)}, {V(cQ0)}, {V(cQ1)}")
halves_sum(cQ0, vT0)
op(f"v_lshlrev_b32 {V(vCX)}, 2, {V(vL)}")
op(f"s_lshl_b32 {S(sT1)}, {S(sW)}, 9")
op(f"s_add_u32 {S(sT1)}, {S(sT1)}, {L_MISC + 2048}")
op(f"v_add_u32 {V(vCX)}, {S(sT1)}, {V(vCX)}")
op(f"ds_write_b32 {V(vCX)}, {V(cQ0)}")
op(f"s_add_u32 {S(sT0)}, {S(sBASE)}, {S(sXCC)}")
op(f"v_cmp_eq_u32 vcc, {S(sT0)}, {V(146)}")
op(f"v_cmp_eq_u32 {S(sPA,2)}, {S(sTHI)}, {V(147)}")
op(f"s_and_b64 vcc, vcc, {S(sPA,2)}")
op(f"s_cmp_eq_u64 vcc, -1")
op(f"s_cselect_b32 {S(sFAST)}, {0 if SLOW else 1}, 0")
e.wait(lg=0)
e.barrier()
op(f"v_xor_b32 {V(vCX)}, 512, {V(vCX)}")
op(f"ds_read_b32 {V(cQ1)}, {V(vCX)}")
op(f"v_add_f32 {V(cQ0)}, {V(cQ0)}, {V(cQ1)}")
split_hi_lo(cQ0, CFK, vT1, vT2)
op(f"v_cvt_pk_bf16_f32 {V(CFK+1)}, {V(vT1)}, 0")
mfma(V(aQ,16), V(CFK,4), V(SF,4), V(aQ,16))
op(f"v_add_u32 {V(vKW)}, {L_QX - L_EX}, {V(vKW)}")
op(f"v_lshrrev_b32 {V(17)}, 3, {V(vL)}")
op(f"v_bfe_u32 {V(18)}, {V(vL)}, 4, 1")
op(f"v_lshlrev_b32 {V(18)}, 2, {V(18)}")
op(f"v_and_b32 {V(19)}, 7, {V(vL)}")
op(f"v_xor_b32 {V(18)}, {V(18)}, {V(19)}")
op(f"v_lshlrev_b32 {V(18)}, 4, {V(18)}")
vWD = 20
op(f"v_lshl_add_u32 {V(vWD)}, {V(17)}, 10, {V(18)}")
op(f"s_lshl_b32 {S(sT1)}, {S(sHQ)}, 7")
op(f"v_add_u32 {V(vWD)}, {S(sT1)}, {V(vWD)}")
op(f"s_lshl_b32 {S(sT2)}, {S(sW)}, 17")
op(f"s_lshl_b32 {S(sT3)}, {S(sW)}, 14")
wotok = None
for i in range(16):
    op(f"s_add_u32 m0, {S(sT3)}, {L_X + i*1024}")
    op(f"s_add_u32 {S(sT1)}, {S(sT2)}, {i*8192}")
    wotok = dma(vWD, sWO, S(sT1))
for i in range(8):
    op(f"v_pk_mul_f32 {V(aQ+2*i,2)}, {V(aQ+2*i,2)}, {V(vR,2)} op_sel:[0,1] op_sel_hi:[1,1]")
for i in range(8):
    op(f"v_cvt_pk_bf16_f32 {V(KP+i)}, {V(aQ+2*i)}, {V(aQ+2*i+1)}")
op(f"ds_write_b128 {V(vKW)}, {V(KP,4)}")
op(f"ds_write_b128 {V(vKW)}, {V(KP+4,4)} offset:2048")
aKT, aVT = 0, 40
op(f"v_mov_b32 {V(17)}, {S(sONES)}")
for r in range(80):
    op(f"v_accvgpr_write_b32 {A(aVT+r)}, {V(17)}")
for r in range(16):
    c0 = 8*(r >> 2) + (r & 3)
    op(f"s_mov_b32 {S(sCM+2*r)}, {hx(0xffffffff << c0)}")
    op(f"s_mov_b32 {S(sCM+2*r+1)}, {hx(0xffffffff << (c0+4))}")
MK = 22
op(f"v_mov_b32 {V(17)}, 0xffff")
op(f"v_mov_b32 {V(18)}, 0xffff0000")
for i in range(8):
    op(f"v_cndmask_b32 {V(19)}, 0, {V(17)}, {S(sCM+4*i,2)}")
    op(f"v_cndmask_b32 {V(MK+i)}, 0, {V(18)}, {S(sCM+4*i+2,2)}")
    op(f"v_or_b32 {V(MK+i)}, {V(MK+i)}, {V(19)}")
e.wait(lg=0)
e.barrier()
Q0 = 32
op(f"s_lshl_b32 {S(sT1)}, {S(sW)}, 11")
op(f"v_add_u32 {V(17)}, {S(sT1)}, {V(vL16)}")
op(f"v_add_u32 {V(18)}, {L_QX}, {V(17)}")
op(f"v_add_u32 {V(17)}, {L_EX}, {V(17)}")
op(f"s_add_u32 {S(sT1)}, {S(sT1)}, {L_EX + 8192}")
op(f"v_add_u32 {V(19)}, {S(sT1)}, {V(vVR)}")
for t in range(2):
    op(f"ds_read_b128 {V(Q0+4*t,4)}, {V(18)} offset:{t*1024}")
    op(f"ds_read_b128 {A(aKT+4*(8+t),4)}, {V(17)} offset:{t*1024}")
op(f"s_mov_b64 exec, {S(sM16,2)}")
for t in range(2):
    for st in range(2):
        op(f"ds_read_b128 {A(aVT+8*(8+t)+4*st,4)}, {V(19)} offset:{t*1024+st*512}")
op("s_mov_b64 exec, -1")
stamp("q_done")
WO = 192
def wo_like_addr(dst0, dst1, base_sreg, base_imm):
    tr_base128(dst0, 9, 19)
    op(f"s_lshl_b32 {S(sT1)}, {S(sP)}, 6")
    op(f"s_lshl_b32 {S(sT2)}, {S(sT_)}, 5")
    op(f"s_or_b32 {S(sT1)}, {S(sT1)}, {S(sT2)}")
    op(f"v_xor_b32 {V(dst0)}, {S(sT1)}, {V(dst0)}")
    op(f"s_add_u32 {S(sT1)}, {base_sreg}, {base_imm}")
    op(f"v_add_u32 {V(dst0)}, {S(sT1)}, {V(dst0)}")
    op(f"v_xor_b32 {V(dst1)}, 64, {V(dst0)}")
wo_like_addr(17, 18, S(sT3), L_X)
e.wait_tok(wotok)
for s in range(8):
    for u in range(2):
        for j in range(2):
            op(f"ds_read_b64_tr_b16 {V(WO+8*s+4*u+2*j,2)}, {V(17+u)} offset:{s*2048+j*1024}")
e.wait(lg=0)
stamp("wo_done")
def halo_wait():
    op(f"s_min_u32 {S(sT0)}, {S(sTB)}, 4")
    op(f"s_lshl_b32 {S(sT2)}, 1, {S(sT0)}")
    op(f"s_sub_u32 {S(sT2)}, {S(sT2)}, 1")
    op(f"s_mov_b32 {S(sT3)}, 0")
    op(f"v_and_b32 {V(17)}, 3, {V(vL)}")
    op(f"v_lshlrev_b32 {V(17)}, 3, {V(17)}")
    op(f"s_lshl_b32 {S(sT1)}, {S(sTB)}, 3")
    op(f"s_add_u32 {S(sT1)}, {S(sT1)}, {S(sHQ)}")
    op(f"s_lshl_b32 {S(sT1)}, {S(sT1)}, 7")
    op(f"s_add_u32 {S(sT1)}, {S(sT1)}, {hx(WS_HALO)}")
    op(f"s_add_u32 {S(sT0)}, {S(sBASE)}, 15")
    poll(17, S(sT1), S(sT2,2), S(sT0), 1, 18, S(sTHI), 0x100)
wave0(halo_wait)
e.barrier()
stamp("halo_ok")
op(f"s_lshl_b32 {S(sT0)}, {S(sHQ)}, 2")
op(f"s_add_u32 {S(sT0)}, {S(sT0)}, {S(sW)}")
op(f"s_lshl_b32 {S(sT0)}, {S(sT0)}, 6")
op(f"s_lshl_b32 {S(sT1)}, {S(sTB)}, 1")
op(f"s_add_u32 {S(sT0)}, {S(sT0)}, {S(sT1)}")
op(f"s_lshl_b32 {S(sT0)}, {S(sT0)}, 10")
op(f"s_add_u32 {S(sT1)}, {S(sT0)}, {hx(WS_K - 8192)}")
op(f"s_add_u32 {S(sT2)}, {S(sT0)}, {hx(WS_K - 4096)}")
for j in range(7, -1, -1):
    op(f"buffer_load_dwordx4 {A(aKT+4*j,4)}, {V(vL16)}, {S(sWS,4)}, {S(sT1 if j < 4 else sT2)} offen offset:{(j%4)*1024} sc1")
op(f"s_add_u32 {S(sT1)}, {S(sT0)}, {hx(WS_V - 8192)}")
op(f"s_add_u32 {S(sT2)}, {S(sT0)}, {hx(WS_V - 4096)}")
op(f"s_mov_b64 exec, {S(sM16,2)}")
for j in (0, 1, 7, 6, 5, 4, 3, 2):
    for st in range(2):
        op(f"buffer_load_dwordx4 {A(aVT+8*j+4*st,4)}, {V(vVR)}, {S(sWS,4)}, {S(sT1 if j < 4 else sT2)} offen offset:{(j%4)*1024+st*512} sc1")
op("s_mov_b64 exec, -1")
vW1D = 21
op(f"v_lshrrev_b32 {V(17)}, 4, {V(vL)}")
op(f"v_lshlrev_b32 {V(18)}, 2, {V(17)}")
op(f"v_and_b32 {V(19)}, 15, {V(vL)}")
op(f"v_xor_b32 {V(18)}, {V(18)}, {V(19)}")
op(f"v_lshlrev_b32 {V(18)}, 4, {V(18)}")
op(f"v_mul_u32_u24 {V(vW1D)}, 3584, {V(17)}")
op(f"v_add_u32 {V(vW1D)}, {V(vW1D)}, {V(18)}")
op(f"s_mul_i32 {S(sT1)}, {S(sW)}, {4*3584}")
op(f"s_lshl_b32 {S(sT2)}, {S(sM)}, 8")
op(f"s_add_u32 {S(sT1)}, {S(sT1)}, {S(sT2)}")
op(f"v_add_u32 {V(vW1D)}, {S(sT1)}, {V(vW1D)}")
def w1_dma(lo, hi):
    D = e.fresh("now1")
    op(f"s_cmp_ge_u32 {S(sM)}, 14")
    op(f"s_cbranch_scc1 {D}")
    op(f"s_lshl_b32 {S(sT3)}, {S(sW)}, 10")
    for i in range(lo, hi):
        op(f"s_add_u32 m0, {S(sT3)}, {i*4096}")
        op(f"s_mov_b32 {S(sT1)}, {i*16*3584}")
        dma(vW1D, sW1, S(sT1))
    e.label(D)
w1_dma(0, 28)

NM = [40, 56]; MG = [72, 88]; SB = [104, 120, 136]; OA = [152, 168]
mx = [184, 185, 186, 187]
vNEG = 188
Kt = lambda j: A(aKT+4*j, 4)
Vt = lambda j, st: A(aVT+8*j+4*st, 4)
Qt = lambda i: V(Q0+4*i, 4)
op(f"v_mov_b32 {V(vNEG)}, 0xff800000")
for r in mx:
    op(f"v_mov_b32 {V(r)}, {V(vNEG)}")
mfma(V(MG[0],16), Kt(8), Qt(0), "0")
mfma(V(MG[1],16), Kt(9), Qt(1), "0")
def max_ops(i, b):
    return [f"v_max3_f32 {V(mx[2*i+(k&1)])}, {V(mx[2*i+(k&1)])}, {V(b+2*k)}, {V(b+2*k+1)}" for k in range(8)]
units = [(1, 8)] + [(i, j) for j in range(7, 1, -1) for i in range(2)] + [(0, 1), (1, 1), (0, 0)]
exit_at = {1: 1, 5: 2, 9: 3, 13: 4}
def s_mfma(n, c0, c1):
    i, j = units[n]
    mfma(V(SB[n % 3],16), Kt(j), Qt(i), (c0, c1)[i])
s_mfma(0, "0", "0"); s_mfma(1, "0", "0")
for n in range(len(units)):
    if n in exit_at:
        op(f"s_cmp_lt_u32 {S(sTB)}, {exit_at[n]}")
        op("s_cbranch_scc1 L_p1_short")
    i, j = units[n]
    if n + 2 < len(units):
        s_mfma(n+2, "0", "0")
    if n < 14:
        e.ops(max_ops(i, SB[n % 3]))
    else:
        for r in range(16):
            op(f"v_cndmask_b32 {V(MG[i]+r)}, {V(SB[n%3]+r)}, {V(MG[i]+r)}, {S(sCM+2*r,2)}")
op("s_branch L_p1_join")
e.label("L_p1_short")
for i in range(2):
    for r in range(16):
        op(f"v_cndmask_b32 {V(MG[i]+r)}, {V(vNEG)}, {V(MG[i]+r)}, {S(sCM+2*r,2)}")
e.label("L_p1_join")
e.ops(interleave(max_ops(0, MG[0]), max_ops(1, MG[1])))
for i in range(2):
    op(f"v_max_f32 {V(mx[2*i])}, {V(mx[2*i])}, {V(mx[2*i+1])}")
for i in range(2):
    op(f"v_mov_b32 {V(mx[2*i+1])}, {V(mx[2*i])}")
for i in range(2):
    op(f"v_permlane32_swap_b32 {V(mx[2*i])}, {V(mx[2*i+1])}")
for i in range(2):
    op(f"v_max_f32 {V(mx[2*i])}, {V(mx[2*i])}, {V(mx[2*i+1])}")
for i in range(2):
    op(f"v_sub_f32 {V(NM[i])}, 0, {V(mx[2*i])}")
    op(f"v_mov_b32 {V(NM[i]+1)}, {V(NM[i])}")
for i in range(2):
    for k in range(1, 8):
        op(f"v_pk_mov_b32 {V(NM[i]+2*k,2)}, {V(NM[i],2)}, {V(NM[i],2)} op_sel:[0,1]")
stamp("att_p1")
full = units[:14]
def exp_cvt(b):
    o = []
    for k in range(8):
        o.append(f"v_exp_f32 {V(b+2*k)}, {V(b+2*k)}")
        o.append(f"v_exp_f32 {V(b+2*k+1)}, {V(b+2*k+1)}")
        if k >= 1:
            o.append(f"v_cvt_pk_bf16_f32 {V(b+k-1)}, {V(b+2*k-2)}, {V(b+2*k-1)}")
    o.append("NOP")
    o.append(f"v_cvt_pk_bf16_f32 {V(b+7)}, {V(b+14)}, {V(b+15)}")
    return o
def run_with(valu, inserts):
    for k, t in enumerate(valu):
        if k in inserts:
            for f in inserts[k]:
                f()
        if t != "NOP":
            op(t)
def s2(n):
    i, j = full[n]
    mfma(V(SB[n % 3],16), Kt(j), Qt(i), V(NM[i],16))
def pv(i, j, b, first=False):
    return [lambda: mfma(V(OA[i],16), Vt(j,0), V(b,4), "0" if first else V(OA[i],16)),
            lambda: mfma(V(OA[i],16), Vt(j,1), V(b+4,4), V(OA[i],16))]
s2(0); s2(1)
for i in range(2):
    for k in range(8):
        op(f"v_pk_add_f32 {V(MG[i]+2*k,2)}, {V(MG[i]+2*k,2)}, {V(NM[i],2)}")
for i in range(2):
    run_with(exp_cvt(MG[i]), {})
    for k in range(8):
        op(f"v_and_b32 {V(MG[i]+8+k)}, {V(MG[i]+k)}, {V(MK+k)}")
    for k in range(8):
        op(f"v_xor_b32 {V(MG[i]+k)}, {V(MG[i]+k)}, {V(MG[i]+8+k)}")
    for f in pv(i, 8+i, MG[i]+8, first=True):
        f()
op(f"s_cmp_lt_u32 {S(sTB)}, 4")
op("s_cbranch_scc1 L_noold")
for i in range(2):
    for f in pv(i, i, MG[i]):
        f()
e.label("L_noold")
pend = None
for n in range(len(full)):
    if n in exit_at:
        if pend:
            for f in pend: f()
            pend = None
        op(f"s_cmp_lt_u32 {S(sTB)}, {exit_at[n]}")
        op("s_cbranch_scc1 L_p2_done")
    i, j = full[n]
    ins = {}
    if pend:
        ins[2] = [pend[0]]; ins[7] = [pend[1]]
    if n + 2 < len(full):
        ins.setdefault(13, []).append(lambda n=n: s2(n+2))
    run_with(exp_cvt(SB[n % 3]), ins)
    pend = pv(i, j, SB[n % 3])
for f in pend: f()
e.label("L_p2_done")
stamp("att_p2")
for i in range(2):
    op(f"v_rcp_f32 {V(mx[2*i])}, {V(OA[i]+8)}")
for i in range(2):
    for k in range(4):
        op(f"v_pk_mul_f32 {V(OA[i]+2*k,2)}, {V(OA[i]+2*k,2)}, {V(mx[2*i],2)} op_sel_hi:[1,0]")
    for k in range(4):
        op(f"v_cvt_pk_bf16_f32 {V(OA[i]+8+k)}, {V(OA[i]+2*k)}, {V(OA[i]+2*k+1)}")
op(f"s_lshl_b32 {S(sT0)}, {S(sTB)}, 6")
op(f"s_lshl_b32 {S(sT1)}, {S(sHQ)}, 2")
op(f"s_add_u32 {S(sT0)}, {S(sT0)}, {S(sT1)}")
op(f"s_add_u32 {S(sT0)}, {S(sT0)}, {S(sW)}")
op(f"s_lshl_b32 {S(sT0)}, {S(sT0)}, 10")
op(f"s_add_u32 {S(sT0)}, {S(sT0)}, {hx(WS_O)}")
op(f"s_add_u32 {S(sT1)}, {S(sT0)}, 32768")
def st_o(m):
    op(f"buffer_store_dwordx4 {V(OA[0]+8,4)}, {V(vL16)}, {S(sWS,4)}, {S(sT0)} offen{m}")
    op(f"buffer_store_dwordx4 {V(OA[1]+8,4)}, {V(vL16)}, {S(sWS,4)}, {S(sT1)} offen{m}")
stores_mode(st_o)
group_signal(1)
stamp("o_signaled")
def mask8():
    op(f"s_and_b32 {S(sT2)}, {S(sM)}, 8")
    op(f"s_lshl_b32 {S(sT2)}, 0xff, {S(sT2)}")
    op(f"s_mov_b32 {S(sT3)}, 0")
group_wait(1, mask8)
stamp("o_ok")

OF, ACC, RT = 32, 96, 160
op(f"s_lshl_b32 {S(sT0)}, {S(sTB)}, 6")
op(f"s_lshl_b32 {S(sT1)}, {S(sW)}, 3")
op(f"s_add_u32 {S(sT0)}, {S(sT0)}, {S(sT1)}")
op(f"s_lshl_b32 {S(sT0)}, {S(sT0)}, 10")
op(f"s_add_u32 {S(sT0)}, {S(sT0)}, {hx(WS_O)}")
for t in range(2):
    for hb in range(2):
        op(f"s_add_u32 {S(sT1)}, {S(sT0)}, {t*32768 + hb*4096}")
        for s in range(4):
            op(f"buffer_load_dwordx4 {V(OF+32*t+16*hb+4*s,4)}, {V(vL16)}, {S(sWS,4)}, {S(sT1)} offen offset:{s*1024} sc1")
vRW, vRR = 22, 25
def reduce_addrs(base):
    for q in range(1, 4):
        op(f"s_xor_b32 {S(sT1)}, {S(sW)}, {q}")
        op(f"s_mul_i32 {S(sT1)}, {S(sT1)}, 6144")
        op(f"s_add_u32 {S(sT1)}, {S(sT1)}, {base + (q-1)*2048}")
        op(f"v_add_u32 {V(vRW+q-1)}, {S(sT1)}, {V(vL16)}")
    op(f"s_mul_i32 {S(sT1)}, {S(sW)}, 6144")
    op(f"s_add_u32 {S(sT1)}, {S(sT1)}, {base}")
    op(f"v_add_u32 {V(vRR)}, {S(sT1)}, {V(vL16)}")
reduce_addrs(L_R3)
def red_write(acc, t):
    for q in range(1, 4):
        r = acc + 32*t + 8*q
        op(f"ds_write_b128 {V(vRW+q-1)}, {V(r,4)} offset:{t*24576}")
        op(f"ds_write_b128 {V(vRW+q-1)}, {V(r+4,4)} offset:{t*24576+1024}")
def red_read(tmp, t):
    for q in range(3):
        op(f"ds_read_b128 {V(tmp+8*q,4)}, {V(vRR)} offset:{t*24576+q*2048}")
        op(f"ds_read_b128 {V(tmp+8*q+4,4)}, {V(vRR)} offset:{t*24576+q*2048+1024}")
def red_sum(acc, tmp, t):
    r = acc + 32*t
    for k in range(4):
        op(f"v_pk_add_f32 {V(tmp+2*k,2)}, {V(tmp+2*k,2)}, {V(tmp+8+2*k,2)}")
        op(f"v_pk_add_f32 {V(r+2*k,2)}, {V(r+2*k,2)}, {V(tmp+16+2*k,2)}")
    for k in range(4):
        op(f"v_pk_add_f32 {V(r+2*k,2)}, {V(r+2*k,2)}, {V(tmp+2*k,2)}")
def add_packed(r, pk, tmp):
    for k in range(4):
        op(f"v_lshlrev_b32 {V(tmp+2*k)}, 16, {V(pk+k)}")
        op(f"v_and_b32 {V(tmp+2*k+1)}, 0xffff0000, {V(pk+k)}")
    for k in range(4):
        op(f"v_pk_add_f32 {V(r+2*k,2)}, {V(r+2*k,2)}, {V(tmp+2*k,2)}")
for t in range(2):
    for s in range(8):
        for u in range(2):
            d = V(ACC+32*t+16*u, 16)
            mfma(d, V(WO+8*s+4*u,4), V(OF+32*t+4*s,4), "0" if s == 0 else d)
        if t == 1 and s == 2:
            red_write(ACC, 0)
red_write(ACC, 1)
e.wait(lg=0)
e.barrier()
stamp("p3_red")
op(f"s_lshl_b32 {S(sT0)}, {S(sTB)}, 6")
op(f"s_lshl_b32 {S(sT1)}, {S(sHQ)}, 2")
op(f"s_add_u32 {S(sT0)}, {S(sT0)}, {S(sT1)}")
op(f"s_add_u32 {S(sT0)}, {S(sT0)}, {S(sW)}")
op(f"s_lshl_b32 {S(sT0)}, {S(sT0)}, 10")
op(f"s_add_u32 {S(sT0)}, {S(sT0)}, {hx(WS_H)}")
op(f"s_add_u32 {S(sT1)}, {S(sT0)}, 32768")
red_read(RT, 0)
red_read(OF, 1)
for t in range(2):
    tmp = RT if t == 0 else OF
    red_sum(ACC, tmp, t)
    add_packed(ACC+32*t, vRES+4*t, tmp)
    for k in range(4):
        op(f"v_cvt_pk_bf16_f32 {V(vRES+4*t+k)}, {V(ACC+32*t+2*k)}, {V(ACC+32*t+2*k+1)}")
def st_h(m):
    op(f"buffer_store_dwordx4 {V(vRES,4)}, {V(vL16)}, {S(sWS,4)}, {S(sT0)} offen{m}")
    op(f"buffer_store_dwordx4 {V(vRES+4,4)}, {V(vL16)}, {S(sWS,4)}, {S(sT1)} offen{m}")
stores_mode(st_h)
group_signal(2)
stamp("h_signaled")
op(f"s_cmp_ge_u32 {S(sM)}, 14")
op("s_cbranch_scc1 L_p4_skip")

w1_dma(28, 32)
vA = 22
op(f"v_and_b32 {V(17)}, 31, {V(vL)}")
op(f"v_lshlrev_b32 {V(17)}, 1, {V(17)}")
op(f"s_lshl_b32 {S(sT1)}, {S(sM)}, 8")
op(f"s_lshl_b32 {S(sT2)}, {S(sW)}, 6")
op(f"s_add_u32 {S(sT1)}, {S(sT1)}, {S(sT2)}")
op(f"buffer_load_ushort {V(14)}, {V(17)}, {S(sB1,4)}, {S(sT1)} offen")
op(f"v_bfe_u32 {V(17)}, {V(vL)}, 2, 2")
op(f"v_lshlrev_b32 {V(vA)}, 8, {V(17)}")
op(f"v_lshl_add_u32 {V(vA)}, {V(17)}, 6, {V(vA)}")
op(f"v_bfe_u32 {V(17)}, {V(vL)}, 4, 1")
op(f"v_lshl_add_u32 {V(vA)}, {V(17)}, 5, {V(vA)}")
op(f"v_and_b32 {V(17)}, 3, {V(vL)}")
op(f"v_lshl_add_u32 {V(vA)}, {V(17)}, 3, {V(vA)}")
op(f"v_lshrrev_b32 {V(17)}, 5, {V(vL)}")
op(f"v_lshl_add_u32 {V(vA)}, {V(17)}, 10, {V(vA)}")
for nb in range(1, 4):
    op(f"v_xor_b32 {V(vA+nb)}, {nb << 6}, {V(vA)}")
op(f"s_lshl_b32 {S(sT1)}, {S(sW)}, 6")
op(f"v_xor_b32 {V(26)}, {S(sT1)}, {V(vA)}")
op(f"v_add_u32 {V(27)}, 0x10000, {V(26)}")
e.wait(vm=0)
e.barrier()
c0, c1 = 28, 29
op(f"v_mov_b32 {V(c0)}, 0")
op(f"v_mov_b32 {V(c1)}, 0")
for grp in range(8):
    for s in range(4):
        ss = grp*4 + s
        base = 26 if ss < 16 else 27
        for j in range(2):
            op(f"ds_read_b64_tr_b16 {V(32+16*(grp%2)+4*s+2*j,2)}, {V(base)} offset:{(ss%16)*4096+j*2048}")
    if grp >= 1:
        for k in range(16):
            op(dot_ones(c0 if k % 2 == 0 else c1, 32+16*((grp-1)%2)+k))
for k in range(16):
    op(dot_ones(c0 if k % 2 == 0 else c1, 48+k))
op(f"v_add_f32 {V(c0)}, {V(c0)}, {V(c1)}")
halves_sum(c0, c1)
split_hi_lo(c0, 32, 33, 17)
op(f"v_cvt_pk_bf16_f32 {V(33)}, {V(33)}, 0")
op(f"v_lshl_or_b32 {V(33)}, {V(14)}, 16, {V(33)}")
op(f"v_mov_b32 {V(34)}, {V(14)}")
op(f"v_mov_b32 {V(35)}, 0")
op(f"s_lshl_b32 {S(sT1)}, {S(sW)}, 10")
op(f"s_add_u32 {S(sT1)}, {S(sT1)}, {L_CT}")
op(f"v_add_u32 {V(17)}, {S(sT1)}, {V(vL16)}")
op(f"ds_write_b128 {V(17)}, {V(32,4)}")
e.wait(lg=0)
stamp("cs1_done")
def mask16():
    op(f"s_mov_b32 {S(sT2)}, 0xffff")
    op(f"s_mov_b32 {S(sT3)}, 0")
group_wait(2, mask16)
stamp("h_ok")
def epoch_bump():
    D = e.fresh("nobump")
    op(f"s_cmp_lg_u32 {S(sM)}, 0")
    op(f"s_cbranch_scc1 {D}")
    op(f"s_add_u32 {S(sT0)}, {S(sELO)}, 1")
    op(f"v_mov_b32 {V(18)}, {S(sT0)}")
    op(f"s_lshl_b32 {S(sT1)}, {S(sG)}, 3")
    op(f"v_mov_b32 {V(17)}, 0")
    op("s_mov_b64 exec, 1")
    op(f"buffer_store_dword {V(18)}, {V(17)}, {S(sWS,4)}, {S(sT1)} offen offset:{WS_E} sc1")
    op("s_mov_b64 exec, -1")
    e.label(D)
HB, GA, RING4 = 32, 160, 224
op(f"s_lshl_b32 {S(sT0)}, {S(sG)}, 2")
op(f"s_add_u32 {S(sT0)}, {S(sT0)}, {S(sW)}")
op(f"s_lshl_b32 {S(sT0)}, {S(sT0)}, 15")
op(f"s_add_u32 {S(sT0)}, {S(sT0)}, {hx(WS_H)}")
for s in range(32):
    if s % 4 == 0:
        op(f"s_add_u32 {S(sT1)}, {S(sT0)}, {s*1024}")
    op(f"buffer_load_dwordx4 {V(HB+4*s,4)}, {V(vL16)}, {S(sWS,4)}, {S(sT1)} offen offset:{(s%4)*1024} sc1")
wave0(epoch_bump)
vCT = 15
op(f"v_add_u32 {V(vCT)}, {L_CT}, {V(vL16)}")
SF4, vR4, vC, TP = 28, 26, 18, 252
C1 = -2.0 * math.log2(math.e) * math.sqrt(2.0/math.pi)
op(f"v_mov_b32 {V(vC)}, {hx(f2u(C1))}")
op(f"v_mov_b32 {V(vC+1)}, {hx(f2u(C1*0.044715))}")
for r in range(TP, TP+4):
    op(f"v_mov_b32 {V(r)}, 0")
seq = []
for s in range(32):
    seq += [(0, s), (1, s)]
seq += [(2, s) for s in range(4)] + [(0, 'r'), (1, 'r')] + [(2, s) for s in range(4, 32)] + [(2, 'r')]
seq += [(3, s) for s in range(32)] + [(3, 'r')]
NS, LA = 7, 5
hi_state = {nb: False for nb in range(4)}
def frag_read(n):
    nb, s = seq[n]
    d = RING4 + 4*(n % NS)
    if s == 'r':
        op(f"ds_read_b128 {V(d,4)}, {V(vCT)} offset:{nb*1024}")
        return
    if s >= 16 and not hi_state[nb]:
        op(f"v_add_u32 {V(vA+nb)}, 0x10000, {V(vA+nb)}")
        hi_state[nb] = True
    op(f"ds_read_b64_tr_b16 {V(d,2)}, {V(vA+nb)} offset:{(s%16)*4096}")
    op(f"ds_read_b64_tr_b16 {V(d+2,2)}, {V(vA+nb)} offset:{(s%16)*4096+2048}")
def frag_mfma(n):
    nb, s = seq[n]
    d = V(GA+16*nb, 16)
    b = V(SF4,4) if s == 'r' else V(HB+4*s,4)
    mfma(d, V(RING4+4*(n % NS),4), b, "0" if s == 0 else d)
def gelu_ops(nb):
    o = []
    a0 = GA + 16*nb
    for i in range(0, 8, 2):
        prs = [(a0+2*i, TP), (a0+2*i+2, TP+2)]
        for a, T in prs: o.append(f"v_pk_mul_f32 {V(a,2)}, {V(a,2)}, {V(vR4,2)} op_sel_hi:[1,0]")
        for a, T in prs: o.append(f"v_pk_mul_f32 {V(T,2)}, {V(a,2)}, {V(a,2)}")
        for a, T in prs: o.append(f"v_pk_fma_f32 {V(T,2)}, {V(T,2)}, {V(vC,2)}, {V(vC,2)} op_sel:[0,1,0] op_sel_hi:[1,1,0]")
        for a, T in prs: o.append(f"v_pk_mul_f32 {V(T,2)}, {V(T,2)}, {V(a,2)}")
        for a, T in prs: o += [f"v_exp_f32 {V(T)}, {V(T)}", f"v_exp_f32 {V(T+1)}, {V(T+1)}"]
        for a, T in prs: o.append(f"v_pk_add_f32 {V(T,2)}, {V(T,2)}, 1.0 op_sel_hi:[1,0]")
        for a, T in prs: o += [f"v_rcp_f32 {V(T)}, {V(T)}", f"v_rcp_f32 {V(T+1)}, {V(T+1)}"]
        for a, T in prs: o.append(f"v_pk_mul_f32 {V(T,2)}, {V(T,2)}, {V(a,2)}")
        for k, (a, T) in enumerate(prs): o.append(f"v_cvt_pk_bf16_f32 {V(a0+i+k)}, {V(T)}, {V(T+1)}")
    o.append(("store", nb))
    return o
sG0 = sT4
op(f"s_lshl_b32 {S(sT2)}, {S(sG)}, 2")
op(f"s_add_u32 {S(sT2)}, {S(sT2)}, {S(sW)}")
op(f"s_mul_i32 {S(sT2)}, {S(sT2)}, 112")
op(f"s_lshl_b32 {S(sT3)}, {S(sM)}, 3")
op(f"s_add_u32 {S(sT2)}, {S(sT2)}, {S(sT3)}")
op(f"s_lshl_b32 {S(sT2)}, {S(sT2)}, 10")
op(f"s_add_u32 {S(sG0)}, {S(sT2)}, {hx(WS_G)}")
op(f"s_add_u32 {S(sT3)}, {S(sG0)}, 4096")
def emit_filler(x):
    if isinstance(x, tuple):
        nb = x[1]
        so = S(sG0) if nb < 2 else S(sT3)
        def st(m):
            op(f"buffer_store_dwordx4 {V(GA+16*nb,4)}, {V(vL16)}, {S(sWS,4)}, {so} offen offset:{(nb%2)*2048}{m}")
            op(f"buffer_store_dwordx4 {V(GA+16*nb+4,4)}, {V(vL16)}, {S(sWS,4)}, {so} offen offset:{(nb%2)*2048+1024}{m}")
        stores_mode(st)
    else:
        op(x)
def stats4():
    s0, s1, q0, q1 = TP, TP+1, TP+2, TP+3
    t0, t1, t2 = 14, 17, 27
    op(f"v_add_f32 {V(s0)}, {V(s0)}, {V(s1)}")
    op(f"v_add_f32 {V(q0)}, {V(q0)}, {V(q1)}")
    halves_sum(s0, t0); halves_sum(q0, t1)
    op(f"v_mul_f32 {V(s0)}, {hx(f2u(-1.0/512))}, {V(s0)}")
    op(f"v_mul_f32 {V(t0)}, {V(s0)}, {V(s0)}")
    op(f"v_mul_f32 {V(q0)}, {hx(f2u(1.0/512))}, {V(q0)}")
    op(f"v_sub_f32 {V(q0)}, {V(q0)}, {V(t0)}")
    op(f"v_max_f32 {V(q0)}, 0, {V(q0)}")
    op(f"v_add_f32 {V(t0)}, {hx(f2u(1e-5))}, {V(q0)}")
    op(f"v_rsq_f32 {V(t1)}, {V(t0)}")
    op(f"v_mul_f32 {V(q0)}, {V(q0)}, {V(t1)}")
    op(f"v_mul_f32 {V(q0)}, {V(q0)}, {V(t1)}")
    op(f"v_add_f32 {V(q0)}, {hx(f2u(1e-5))}, {V(q0)}")
    op(f"v_rsq_f32 {V(q1)}, {V(q0)}")
    op(f"v_mul_f32 {V(t0)}, {V(t0)}, {V(t1)}")
    op(f"v_mul_f32 {V(vR4)}, {V(t1)}, {V(q1)}")
    op(f"v_mul_f32 {V(q0)}, {V(q0)}, {V(q1)}")
    op(f"v_mul_f32 {V(q0)}, {V(q0)}, {V(t0)}")
    split_hi_lo(s0, t0, t1, t2)
    op(f"v_cvt_pk_bf16_f32 {V(SF4)}, {V(s0)}, {V(t1)}")
    op(f"v_cvt_pk_bf16_f32 {V(SF4+1)}, {V(s0)}, {V(q0)}")
    split_hi_lo(q0, t0, t1, t2)
    op(f"v_cvt_pk_bf16_f32 {V(SF4+2)}, {V(t1)}, 0")
    op(f"v_mov_b32 {V(SF4+3)}, 0")
    for k in range(3):
        op(f"v_cndmask_b32 {V(SF4+k)}, 0, {V(SF4+k)}, {S(sLOW,2)}")
iB0 = seq.index((1, 'r')) + 1
iC0 = seq.index((2, 'r')) + 1
fillB = gelu_ops(0) + gelu_ops(1)
fillC = gelu_ops(2)
nB = iC0 - (iB0 + 2)
nC = len(seq) - (iC0 + 2)
for n in range(LA):
    frag_read(n)
for n in range(len(seq)):
    if n + LA < len(seq):
        frag_read(n + LA)
    frag_mfma(n)
    nb, s = seq[n]
    if n < 64:
        x = HB + 4*s
        js = (0, 1) if nb == 0 else (2, 3)
        for j in js:
            op(dot_ones(TP + (j & 1), x+j))
            op(dot_sq(TP + 2 + (j & 1), x+j))
        if n == 63:
            stamp("p4_passA")
            stats4()
    elif iB0 + 2 <= n < iC0:
        k = n - (iB0 + 2)
        for x in fillB[len(fillB)*k//nB : len(fillB)*(k+1)//nB]:
            emit_filler(x)
    elif n >= iC0 + 2:
        k = n - (iC0 + 2)
        for x in fillC[len(fillC)*k//nC : len(fillC)*(k+1)//nC]:
            emit_filler(x)
stamp("p4_mfma")
for x in gelu_ops(3):
    emit_filler(x)
group_signal(3)
stamp("g_signaled")
e.label("L_p4_skip")

if "--wbl2" in sys.argv:
    wave0(lambda: e.raw("    buffer_wbl2 sc1"))
op(f"s_mul_i32 {S(sT3)}, {S(sW)}, 40960")
op(f"s_mul_i32 {S(sT2)}, {S(sW)}, {448*1024}")
wo_like_addr(26, 27, S(sT3), 0)
op(f"s_mul_i32 {S(sT2)}, {S(sW)}, {448*1024}")
for lo, hi in ((0, 20), (20, 28)):
    tok = None
    for i in range(2*lo, 2*hi):
        op(f"s_add_u32 m0, {S(sT3)}, {(i-2*lo)*1024}")
        op(f"s_add_u32 {S(sT1)}, {S(sT2)}, {i*8192}")
        tok = dma(vWD, sW2, S(sT1))
    e.wait_tok(tok)
    for s in range(lo, hi):
        for u in range(2):
            for j in range(2):
                op(f"ds_read_b64_tr_b16 {A(8*s+4*u+2*j,2)}, {V(26+u)} offset:{(s-lo)*2048+j*1024}")
    e.wait(lg=0)
stamp("w2_done")
def mask14():
    op(f"s_mov_b32 {S(sT2)}, 0x3fff")
    op(f"s_mov_b32 {S(sT3)}, 0")
group_wait(3, mask14)
stamp("g_ok")
GB, NG, RT5, ACC5 = 32, 34, 168, 192
op(f"s_mul_i32 {S(sT0)}, {S(sTB)}, 224")
op(f"s_mul_i32 {S(sT1)}, {S(sW)}, 28")
op(f"s_add_u32 {S(sT0)}, {S(sT0)}, {S(sT1)}")
op(f"s_lshl_b32 {S(sT0)}, {S(sT0)}, 10")
op(f"s_add_u32 {S(sT0)}, {S(sT0)}, {hx(WS_G)}")
def g_load(n):
    t, s = divmod(n, 28)
    if s % 4 == 0:
        op(f"s_add_u32 {S(sT4)}, {S(sT0)}, {(t*112+s)*1024}")
    op(f"buffer_load_dwordx4 {V(GB+4*(n%NG),4)}, {V(vL16)}, {S(sWS,4)}, {S(sT4)} offen offset:{(s%4)*1024} sc1")
for n in range(NG):
    g_load(n)
reduce_addrs(0)
for n in range(56):
    t, s = divmod(n, 28)
    for u in range(2):
        d = V(ACC5+32*t+16*u, 16)
        mfma(d, A(8*s+4*u,4), V(GB+4*(n%NG),4), "0" if s == 0 else d)
    if n + NG < 56:
        g_load(n + NG)
    if n == 28 + 4:
        red_write(ACC5, 0)
    if n == 28 + 12:
        e.wait(lg=0)
        e.barrier()
        red_read(RT5, 0)
    if n == 28 + 18:
        red_sum(ACC5, RT5, 0)
        add_packed(ACC5, vRES, RT5)
        add_packed(ACC5, vB2, RT5)
        for k in range(4):
            op(f"v_cvt_pk_bf16_f32 {V(vRES+k)}, {V(ACC5+2*k)}, {V(ACC5+2*k+1)}")
stamp("p5_mfma")
red_write(ACC5, 1)
L_OT = 65536
op(f"v_and_b32 {V(17)}, 31, {V(vL)}")
op(f"v_mul_u32_u24 {V(17)}, 144, {V(17)}")
op(f"v_lshrrev_b32 {V(18)}, 5, {V(vL)}")
op(f"v_lshl_add_u32 {V(17)}, {V(18)}, 3, {V(17)}")
op(f"s_lshl_b32 {S(sT1)}, {S(sW)}, 5")
op(f"s_add_u32 {S(sT1)}, {S(sT1)}, {L_OT}")
op(f"v_add_u32 {V(17)}, {S(sT1)}, {V(17)}")
op(f"ds_write_b64 {V(17)}, {V(vRES,2)}")
op(f"ds_write_b64 {V(17)}, {V(vRES+2,2)} offset:16")
e.wait(lg=0)
e.barrier()
red_read(RT5, 1)
op(f"v_lshrrev_b32 {V(18)}, 3, {V(vL)}")
op(f"v_and_b32 {V(19)}, 7, {V(vL)}")
op(f"v_lshlrev_b32 {V(19)}, 4, {V(19)}")
op(f"v_lshl_add_u32 {V(20)}, {V(18)}, 10, {V(19)}")
op(f"v_mul_u32_u24 {V(18)}, 144, {V(18)}")
op(f"v_add_u32 {V(18)}, {V(18)}, {V(19)}")
op(f"s_mul_i32 {S(sT1)}, {S(sW)}, {16*144}")
op(f"s_add_u32 {S(sT1)}, {S(sT1)}, {L_OT}")
op(f"v_add_u32 {V(18)}, {S(sT1)}, {V(18)}")
op(f"s_lshl_b32 {S(sT0)}, {S(sTB)}, 16")
op(f"s_lshl_b32 {S(sT1)}, {S(sW)}, 14")
op(f"s_add_u32 {S(sT0)}, {S(sT0)}, {S(sT1)}")
op(f"s_lshl_b32 {S(sT1)}, {S(sHQ)}, 7")
op(f"s_add_u32 {S(sT0)}, {S(sT0)}, {S(sT1)}")
op(f"s_add_u32 {S(sT1)}, {S(sT0)}, 8192")
red_sum(ACC5, RT5, 1)
add_packed(ACC5+32, vRES+4, RT5)
add_packed(ACC5+32, vB2, RT5)
for k in range(4):
    op(f"v_cvt_pk_bf16_f32 {V(vRES+4+k)}, {V(ACC5+32+2*k)}, {V(ACC5+32+2*k+1)}")
op(f"ds_write_b64 {V(17)}, {V(vRES+4,2)} offset:{32*144}")
op(f"ds_write_b64 {V(17)}, {V(vRES+6,2)} offset:{32*144+16}")
e.wait(lg=0)
e.barrier()
op(f"ds_read_b128 {V(32,4)}, {V(18)}")
op(f"ds_read_b128 {V(36,4)}, {V(18)} offset:{8*144}")
op(f"buffer_store_dwordx4 {V(32,4)}, {V(20)}, {S(sOUT,4)}, {S(sT0)} offen")
op(f"buffer_store_dwordx4 {V(36,4)}, {V(20)}, {S(sOUT,4)}, {S(sT1)} offen")
if PROF:
    e.wait(vm=0)
    stamp("end")
    op(f"s_memtime {S(sPA,2)}")
    e.wait(lg=0)
    op(f"v_writelane_b32 {V(vST)}, {S(sPA)}, 61")
    op(f"s_lshl_b32 {S(sT0)}, {S(sG)}, 4")
    op(f"s_add_u32 {S(sT0)}, {S(sT0)}, {S(sM)}")
    op(f"s_lshl_b32 {S(sT0)}, {S(sT0)}, 2")
    op(f"s_add_u32 {S(sT0)}, {S(sT0)}, {S(sW)}")
    op(f"s_lshl_b32 {S(sT0)}, {S(sT0)}, 8")
    op(f"s_add_u32 {S(sT0)}, {S(sT0)}, {hx(WS_PROF)}")
    op(f"v_writelane_b32 {V(vST)}, {S(sFAST)}, 62")
    op(f"v_writelane_b32 {V(vST)}, {S(sXCC)}, 63")
    op(f"v_lshlrev_b32 {V(17)}, 2, {V(vL)}")
    op(f"buffer_store_dword {V(vST)}, {V(17)}, {S(sWS,4)}, {S(sT0)} offen")
e.label("L_end")
op("s_endpgm")

hdr = open("cdna_kernels/" + NAME + ".s.ref").read().split("; Override launch")[0]
txt = hdr
txt += "; One persistent launch: 256 workgroups (one per CU), five phases handed over through d_ws.\n"
txt += f"; @launch grid=(256,1,1) block=(256,1,1) lds={LDS_BYTES}\n"
txt += f""".amdgcn_target "amdgcn-amd-amdhsa--gfx950"
.text
.globl {KERNEL}
.p2align 8
.type {KERNEL},@function
{KERNEL}:
"""
txt += e.text()
txt += f"""L_code_end:
.section .rodata,"a"
.p2align 6
.amdhsa_kernel {KERNEL}
  .amdhsa_next_free_vgpr 512
  .amdhsa_next_free_sgpr 102
  .amdhsa_accum_offset 256
  .amdhsa_group_segment_fixed_size 0
  .amdhsa_kernarg_size 88
  .amdhsa_user_sgpr_count 2
  .amdhsa_user_sgpr_kernarg_segment_ptr 1
  .amdhsa_system_sgpr_workgroup_id_x 1
  .amdhsa_float_denorm_mode_32 3
.end_amdhsa_kernel
"""
out = [a for a in sys.argv[1:] if not a.startswith("--")]
open(out[0] if out else "out.s", "w").write(txt)
print("instructions", e.n_ins, "nops", e.n_nop, file=sys.stderr)
if PROF:
    open("stamps.txt", "w").write("\n".join(stamp_names) + "\n")
```

```python
import sys, math, struct
from emit import Emitter, V, A, S, interleave

NAME = "sequential_preLN__sliding_block__mixer_channel_mlp__prompt"
PROF = "--prof" in sys.argv
SLOW = "--slow" in sys.argv
CYC = "--cyc" in sys.argv
TLBW = "--notlb" not in sys.argv
PFL2 = "--pfw2" in sys.argv
SCOUT = "--noscout" not in sys.argv
PFW1 = "--pfw1" in sys.argv

def f2u(x):
    return struct.unpack("<I", struct.pack("<f", x))[0]
def hx(x):
    return f"0x{x & 0xffffffff:x}"

WS_E, WS_CEN, WS_GF, WS_HALO = 0x0, 0x400, 0x1000, 0x2000
WS_K, WS_V, WS_O, WS_H, WS_G = 0x10000, 0x210000, 0x410000, 0x610000, 0x810000
WS_ST = 0xF20000
WS_PROF = 0xFB0000
WS_SIZE = 0x1000000
L_X, L_RING, L_MISC = 0, 65536, 147456
L_EX = L_RING + 2 * 16384
L_QX = L_RING + 3 * 16384 + 4096
L_CQ = L_RING + 3 * 16384
L_R3 = 131072
L_CT = 131072 + 6144
L_SR = 161792
ct_off = lambda nb: (nb >> 1) * 8192 + (nb & 1) * 1024
L_WOS = 131072
L_S2 = 131072
LDS_BYTES = 163840
sX, sWQ, sWO, sW1, sW2, sWS, sOUT, sB1, sB2 = 8, 12, 16, 20, 24, 28, 32, 36, 40
sDBG = 6
sW, sG, sM, sTB, sHQ, sXCC, sBASE, sTHI, sFAST, sELO = range(44, 54)
sT0, sT1, sT2, sT3, sT4, sT5 = range(54, 60)
sWOFF, sP, sT_ = 60, 61, 62
sONES = 63
sCM = 64
sCW, sCX = 64, 72
sLOW = 96
sM16 = 98
sPA, sPB = 100, 4
vL, vL16, vRES, vB2, vST, vTLO, vTHI = 0, 1, 2, 10, 16, 14, 15

e = Emitter()
op = e.op
stamp_n = [0]
stamp_names = []

def stamp(name, pair=None):
    if not PROF:
        return
    pair = sPA if pair is None else pair
    i = stamp_n[0]; stamp_n[0] += 1
    stamp_names.append(name)
    op(f"{'s_memtime' if CYC else 's_memrealtime'} {S(pair,2)}")
    e.wait(lg=0)
    op(f"v_writelane_b32 {V(vST)}, {S(pair)}, {i}")

def srd(dst, src, size):
    op(f"s_mov_b32 {S(dst)}, {S(src)}")
    op(f"s_and_b32 {S(dst+1)}, {S(src+1)}, 0xffff")
    op(f"s_mov_b32 {S(dst+2)}, {hx(size)}")
    op(f"s_mov_b32 {S(dst+3)}, 0x20000")

def dma(voff, srdreg, soff, imm=0, mods=""):
    o = f" offset:{imm}" if imm else ""
    return op(f"buffer_load_dwordx4 {V(voff)}, {S(srdreg,4)}, {soff} offen{o}{mods} lds")

def mfma(d, a, b, c):
    op(f"v_mfma_f32_32x32x16_bf16 {d}, {a}, {b}, {c}")

def halves_sum(r, tmp):
    op(f"v_mov_b32 {V(tmp)}, {V(r)}")
    op(f"v_permlane32_swap_b32 {V(r)}, {V(tmp)}")
    op(f"v_add_f32 {V(r)}, {V(r)}, {V(tmp)}")

def split_hi_lo(val, hi_pk, lo, tmp):
    op(f"v_cvt_pk_bf16_f32 {V(hi_pk)}, {V(val)}, {V(val)}")
    op(f"v_and_b32 {V(tmp)}, 0xffff0000, {V(hi_pk)}")
    op(f"v_sub_f32 {V(lo)}, {V(val)}, {V(tmp)}")

def poll(voff, soff, need_mask, lo_expect, span, tlo, thi, code):
    L = e.fresh("poll"); D = e.fresh("polldone"); T = e.fresh("pollto")
    op(f"s_mov_b32 {S(sT5)}, 0x40000")
    e.wait(vm=0, lg=0)
    e.loop_label(L)
    op(f"buffer_load_dwordx2 {V(tlo,2)}, {V(voff)}, {S(sWS,4)}, {soff} offen sc1")
    e.wait(vm=0)
    op(f"v_subrev_u32 {V(tlo)}, {lo_expect}, {V(tlo)}")
    op(f"v_cmp_eq_u32 vcc, {thi}, {V(tlo+1)}")
    op(f"v_cmp_gt_u32 {S(sPA,2)}, {span}, {V(tlo)}")
    op(f"s_and_b64 vcc, vcc, {S(sPA,2)}")
    op(f"s_andn2_b64 {S(sPA,2)}, {need_mask}, vcc")
    op(f"s_cbranch_scc0 {D}")
    op(f"s_sub_u32 {S(sT5)}, {S(sT5)}, 1")
    op(f"s_cbranch_scc1 {T}")
    op(f"s_branch {L}")
    e.label(T)
    op(f"v_mov_b32 {V(tlo)}, {code}")
    op(f"v_mov_b32 {V(tlo+1)}, 0")
    op(f"global_store_dword {V(tlo+1)}, {V(tlo)}, {S(sDBG,2)}")
    e.wait(vm=0)
    e.label(D)

def stores_mode(fn):
    F = e.fresh("fast"); D = e.fresh("stdone")
    op(f"s_cmp_eq_u32 {S(sFAST)}, 1")
    op(f"s_cbranch_scc1 {F}")
    fn(" sc1")
    op(f"s_branch {D}")
    e.label(F)
    fn("")
    e.label(D)

def wave0(fn):
    D = e.fresh("w0")
    op(f"s_cmp_lg_u32 {S(sW)}, 0")
    op(f"s_cbranch_scc1 {D}")
    fn()
    e.label(D)

def group_signal(phase):
    e.wait(vm=0)
    e.barrier()
    def f():
        op(f"s_add_u32 {S(sT0)}, {S(sBASE)}, {8+phase}")
        op(f"v_mov_b32 {V(18)}, {S(sT0)}")
        op(f"v_mov_b32 {V(19)}, {S(sTHI)}")
        op(f"s_lshl_b32 {S(sT1)}, {S(sG)}, 7")
        op(f"s_lshl_b32 {S(sT2)}, {S(sM)}, 3")
        op(f"s_add_u32 {S(sT1)}, {S(sT1)}, {S(sT2)}")
        op(f"s_add_u32 {S(sT1)}, {S(sT1)}, {hx(WS_GF)}")
        op(f"v_mov_b32 {V(17)}, 0")
        op("s_mov_b64 exec, 1")
        stores_mode(lambda m: op(f"buffer_store_dwordx2 {V(18,2)}, {V(17)}, {S(sWS,4)}, {S(sT1)} offen{m}"))
        op("s_mov_b64 exec, -1")
    wave0(f)

def group_wait(phase, mask_fn):
    def f():
        mask_fn()
        op(f"v_and_b32 {V(17)}, 15, {V(vL)}")
        op(f"v_lshlrev_b32 {V(17)}, 3, {V(17)}")
        op(f"s_lshl_b32 {S(sT1)}, {S(sG)}, 7")
        op(f"s_add_u32 {S(sT1)}, {S(sT1)}, {hx(WS_GF)}")
        op(f"s_add_u32 {S(sT0)}, {S(sBASE)}, {8+phase}")
        poll(17, S(sT1), S(sT2,2), S(sT0), 4-phase, 18, S(sTHI), 0x100+phase)
    wave0(f)
    e.barrier()

from collections import deque
sBG = 3
bg = deque()
def tick(n=1):
    for _ in range(n):
        if bg:
            bg.popleft()()
def drain():
    while bg:
        bg.popleft()()

KERNEL = NAME + "_kernel"
op("s_cmp_ge_u32 s2, 0x100")
op("s_cbranch_scc1 L_end")
op("s_load_dwordx16 s[44:59], s[0:1], 0")
op("s_load_dwordx4 s[60:63], s[0:1], 64")
op("s_load_dwordx2 s[4:5], s[0:1], 80")
op("s_getpc_b64 s[92:93]")
e.label("L_pc")
op("v_and_b32 v17, 15, v0")
op("v_lshrrev_b32 v18, 6, v0")
op("v_lshl_add_u32 v17, v18, 4, v17")
op("s_lshr_b32 s97, s2, 3")
op("s_lshl_b32 s96, s97, 4")
op("v_and_b32 v19, 3, v0")
op("v_lshl_add_u32 v19, v18, 2, v19")
op("v_add_u32 v19, s96, v19")
op("v_add_u32 v19, 64, v19")
op("v_and_b32 v18, 16, v0")
op("v_cmp_eq_u32 vcc, 0, v18")
op(f"s_sub_u32 s92, s92, L_pc-{KERNEL}")
op("s_subb_u32 s93, s93, 0")
op("v_cndmask_b32 v17, v19, v17, vcc")
op("v_lshlrev_b32 v17, 7, v17")
op(f"v_min_u32 v17, L_code_end-{KERNEL}-4, v17")
op("s_mov_b64 exec, 0xfffff")
op("global_load_dword v242, v17, s[92:93]")
op("s_mov_b64 exec, -1")
vXD0, vXD1, vWD0, vWD1 = 192, 193, 194, 195
vXR = 196
vWRe, vWRo, vWReH, vWRoH = 200, 201, 202, 203
vWD = 20
op(f"v_lshrrev_b32 {V(17)}, 6, v0")
op(f"v_and_b32 {V(vL)}, 63, v0")
op(f"v_readfirstlane_b32 s3, {V(17)}")
op(f"v_lshlrev_b32 {V(vL16)}, 4, {V(vL)}")
if PROF:
    op(f"v_mov_b32 {V(vST)}, 0")
op(f"v_lshrrev_b32 {V(17)}, 3, {V(vL)}")
op(f"v_lshrrev_b32 {V(18)}, 4, {V(vL)}")
op(f"v_and_b32 {V(19)}, 7, {V(vL)}")
op(f"v_xor_b32 {V(vXD0)}, {V(19)}, {V(18)}")
op(f"v_lshlrev_b32 {V(vXD0)}, 4, {V(vXD0)}")
op(f"v_lshl_add_u32 {V(vXD0)}, {V(17)}, 10, {V(vXD0)}")
op(f"v_and_b32 {V(18)}, 1, {V(18)}")
op(f"v_lshlrev_b32 {V(18)}, 2, {V(18)}")
op(f"v_xor_b32 {V(19)}, {V(19)}, {V(18)}")
op(f"v_lshlrev_b32 {V(19)}, 4, {V(19)}")
op(f"v_mul_u32_u24 {V(vWD0)}, 3072, {V(17)}")
op(f"v_add_u32 {V(vWD0)}, {V(vWD0)}, {V(19)}")
op(f"v_lshl_add_u32 {V(vWD)}, {V(17)}, 10, {V(19)}")
op("s_lshr_b32 s97, s2, 3")
op("s_and_b32 s96, s2, 7")
op("s_lshl_b32 s96, s96, 1")
op("s_lshr_b32 s98, s97, 4")
op("s_add_u32 s96, s96, s98")
op("s_and_b32 s98, s97, 15")
op("s_lshr_b32 s99, s98, 3")
op("s_lshl_b32 s100, s96, 1")
op("s_add_u32 s99, s99, s100")
op("s_and_b32 s100, s98, 7")
op("s_and_b32 s101, s99, 3")
op("s_lshl_b32 s101, s101, 1")
op("s_add_u32 s101, s101, s100")
op("s_lshl_b32 s64, s99, 16")
op("s_lshl_b32 s65, s3, 14")
op("s_add_u32 s64, s64, s65")
op(f"v_add_u32 {V(vXD0)}, s64, {V(vXD0)}")
op(f"v_xor_b32 {V(vXD1)}, 64, {V(vXD0)}")
op(f"v_add_u32 {V(vXD1)}, {8192-1024}, {V(vXD1)}")
op(f"s_mul_i32 s64, s3, {16*3072}")
op("s_lshl_b32 s65, s100, 7")
op("s_add_u32 s64, s64, s65")
op(f"v_add_u32 {V(vWD0)}, s64, {V(vWD0)}")
op(f"v_add_u32 {V(vWD1)}, {8*3072-1024}, {V(vWD0)}")
op(f"v_add_u32 {V(vWD)}, s65, {V(vWD)}")
def chunk_offs(i):
    op(f"s_add_u32 s2, s101, {i}")
    op("s_and_b32 s2, s2, 7")
    op(f"s_lshl_b32 {S(sCX+i)}, s2, 7")
    op(f"s_mul_i32 {S(sCW+i)}, s2, {64*3072}")
for i in range(8):
    chunk_offs(i)
e.wait(lg=0)
stamp("t0", 88)
op("s_mov_b32 s0, s3")
srd(sX, 44, 2048*1024)
srd(sWQ, 46, 512*3072)
op(f"s_lshl_b32 s1, s0, 11")

xtok, itok = {}, {}
def x_acts(i, woff):
    def a0():
        op(f"s_add_u32 m0, {woff}, {L_X + i*8192}")
        dma(vXD0, sX, S(sCX+i))
    def a1():
        xtok[i] = dma(vXD1, sX, S(sCX+i), 1024)
    return [a0, a1]
def item_acts(it, woff):
    slot = it % 5
    acts = []
    for sg in range(2):
        ch, seg = (it, 1 + sg) if it < 8 else (2*(it-8) + sg, 0)
        def a0(sg=sg, ch=ch, seg=seg):
            op(f"s_add_u32 m0, {woff}, {L_RING + slot*16384 + sg*8192}")
            op(f"s_add_u32 {S(sBG)}, {S(sCW+ch)}, {seg*1024}")
            dma(vWD0, sWQ, S(sBG))
        def a1():
            itok[it] = dma(vWD1, sWQ, S(sBG), 1024)
        acts += [a0, a1]
    return acts
for a in x_acts(0, "s1") + item_acts(0, "s1"):
    a()
pro = []
class Rec:
    def __enter__(self):
        global op
        self.old = op
        op = lambda t: pro.append(t)
    def __exit__(self, *a):
        global op
        op = self.old
aK, aV, aQ, aR = 32, 48, 64, 80
XF, WF = 96, 112
sx0, sx1, sq0, sq1, cK0, cK1, cV0, cV1 = range(144, 152)
SF, CFK, CFV, RF, ONF, OCF = 160, 164, 168, 172, 176, 204
aKT, aVT = 0, 40
MK = 22
def tr_base128(dst, half_mul, tmp):
    op(f"v_bfe_u32 {V(tmp)}, {V(vL)}, 2, 2")
    op(f"v_lshlrev_b32 {V(dst)}, 7, {V(tmp)}")
    op(f"v_lshrrev_b32 {V(tmp)}, 1, {V(tmp)}")
    op(f"v_lshl_add_u32 {V(dst)}, {V(tmp)}, 6, {V(dst)}")
    op(f"v_bfe_u32 {V(tmp)}, {V(vL)}, 4, 1")
    op(f"v_lshl_add_u32 {V(dst)}, {V(tmp)}, 5, {V(dst)}")
    op(f"v_and_b32 {V(tmp)}, 3, {V(vL)}")
    op(f"v_lshl_add_u32 {V(dst)}, {V(tmp)}, 3, {V(dst)}")
    op(f"v_lshrrev_b32 {V(tmp)}, 5, {V(vL)}")
    op(f"v_lshl_add_u32 {V(dst)}, {V(tmp)}, {half_mul}, {V(dst)}")
with Rec():
    srd(sWS, 4, WS_SIZE)
    op(f"s_add_u32 s4, s99, 1")
    op(f"v_add_u32 {V(18)}, s4, {V(vL)}")
    op(f"v_lshrrev_b32 {V(18)}, 1, {V(18)}")
    op(f"v_min_u32 {V(18)}, 15, {V(18)}")
    op(f"v_mov_b32 {V(19)}, s96")
    op(f"v_cmp_gt_u32 vcc, 4, {V(vL)}")
    srd(sWO, 48, 512*1024)
    op(f"v_cndmask_b32 {V(18)}, {V(19)}, {V(18)}, vcc")
    op(f"v_lshlrev_b32 {V(18)}, 3, {V(18)}")
    op(f"buffer_load_dwordx2 {V(vTLO,2)}, {V(18)}, {S(sWS,4)}, 0 offen sc1")
    srd(sW1, 52, 512*3584)
    srd(sB1, 54, 1792*2)
    srd(sW2, 56, 1792*1024)
    srd(sB2, 58, 1024)
    srd(sOUT, 60, 2048*1024)
    op(f"s_mov_b64 {S(sDBG,2)}, s[62:63]")
    op(f"s_mov_b32 {S(sW)}, s0")
    op(f"s_mov_b32 {S(sG)}, s96")
    op(f"s_mov_b32 {S(sM)}, s98")
    op(f"s_mov_b32 {S(sTB)}, s99")
    op(f"s_mov_b32 {S(sHQ)}, s100")
    op(f"s_mov_b32 {S(sWOFF)}, s1")
    op(f"s_lshr_b32 {S(sP)}, {S(sW)}, 1")
    op(f"s_and_b32 {S(sT_)}, {S(sW)}, 1")
    op(f"s_mov_b32 {S(sONES)}, 0x3f803f80")
    op(f"s_sub_u32 s0, s100, s101")
    op(f"s_and_b32 s0, s0, 7")
    op(f"s_lshl_b32 s0, s0, 13")
    op(f"s_xor_b32 {S(sT3)}, {S(sP)}, {S(sT_)}")
    op(f"v_and_b32 {V(17)}, 31, {V(vL)}")
    op(f"v_lshrrev_b32 {V(18)}, 5, {V(vL)}")
    op(f"v_bfe_u32 {V(32)}, {V(vL)}, 1, 3")
    op(f"v_xor_b32 {V(32)}, {V(32)}, {V(18)}")
    op(f"v_lshlrev_b32 {V(32)}, 4, {V(32)}")
    op(f"v_lshl_add_u32 {V(32)}, {V(17)}, 7, {V(32)}")
    op(f"s_lshl_b32 {S(sT1)}, {S(sT_)}, 12")
    op(f"v_add_u32 {V(32)}, {S(sT1)}, {V(32)}")
    op(f"s_lshl_b32 {S(sT1)}, {S(sT3)}, 5")
    op(f"v_xor_b32 {V(32)}, {S(sT1)}, {V(32)}")
    for s_ in range(4):
        op(f"v_xor_b32 {V(vXR+s_)}, {s_<<5}, {V(32)}")
    tr_base128(33, 10, 34)
    op(f"s_lshl_b32 {S(sT1)}, {S(sP)}, 6")
    op(f"v_xor_b32 {V(33)}, {S(sT1)}, {V(33)}")
    op(f"v_add_u32 {V(33)}, {L_RING}, {V(33)}")
    op(f"s_lshl_b32 {S(sT1)}, {S(sT3)}, 11")
    op(f"v_add_u32 {V(vWRe)}, {S(sT1)}, {V(33)}")
    op(f"v_subrev_u32 {V(vWRo)}, {S(sT1)}, {V(33)}")
    op(f"v_add_u32 {V(vWReH)}, 0x10000, {V(vWRe)}")
    op(f"v_add_u32 {V(vWRoH)}, 0x10000, {V(vWRo)}")
    op(f"s_mov_b32 {S(sLOW)}, -1")
    op(f"s_mov_b32 {S(sLOW+1)}, 0")
    op(f"s_mov_b32 {S(sM16)}, 0xffff")
    op(f"s_mov_b32 {S(sM16+1)}, 0xffff")
    op(f"s_getreg_b32 {S(sXCC)}, hwreg(HW_REG_XCC_ID, 0, 4)")
    for r in list(range(144, 152)) + [SF+2, SF+3, CFK+2, CFK+3, CFV+2, CFV+3, RF+1, RF+2, RF+3, ONF+1, ONF+2, ONF+3]:
        op(f"v_mov_b32 {V(r)}, 0")
    op(f"v_mov_b32 {V(ONF)}, {S(sONES)}")
    op(f"v_lshlrev_b32 {V(18)}, 2, {V(18)}")
    op(f"v_sub_u32 {V(17)}, {V(17)}, {V(18)}")
    op(f"v_mov_b32 {V(18)}, 0xffff")
    op(f"v_mov_b32 {V(19)}, 0xffff0000")
    for i in range(8):
        c0 = 8*((2*i) >> 2) + ((2*i) & 3)
        op(f"v_cmp_le_i32 vcc, {c0}, {V(17)}")
        op(f"v_cmp_le_i32 {S(sPA,2)}, {c0+1}, {V(17)}")
        op(f"v_cndmask_b32 {V(32)}, 0, {V(18)}, vcc")
        op(f"v_cndmask_b32 {V(MK+i)}, 0, {V(19)}, {S(sPA,2)}")
        op(f"v_or_b32 {V(MK+i)}, {V(MK+i)}, {V(32)}")
    op(f"v_mov_b32 {V(32)}, 0x3afe3f80")
    op(f"v_cndmask_b32 {V(RF)}, 0, {V(32)}, {S(sLOW,2)}")
    op("s_nop 0")
    for k_ in range(5):
        mfma(A(aVT+16*k_,16), V(RF,4), V(ONF,4), "0")
acts = x_acts(1, "s1") + item_acts(1, "s1")
nper = 6
k = 0
masked = False
due = 0
for i, t in enumerate(pro):
    if t.startswith("LABEL"):
        e.label(t.split()[1])
    else:
        op(t)
    if t.startswith("s_mov_b64 exec"):
        masked = not t.endswith("-1")
    if (i + 1) % nper == 0:
        due += 1
    if due and k < len(acts) and not masked and not t.startswith(("s_getpc", "LABEL", "s_sub_u32 s100")):
        acts[k](); k += 1; due -= 1
for f in acts[k:]:
    f()
stamp("start")
if PROF:
    pass

def w_read_ops(it, sg, s, d):
    slot = it % 5
    base = (vWRe if s % 2 == 0 else vWRo) if slot < 4 else (vWReH if s % 2 == 0 else vWRoH)
    off = (slot % 4) * 16384 + sg*8192 + s*2048
    return [f"ds_read_b64_tr_b16 {V(d,2)}, {V(base)} offset:{off}",
            f"ds_read_b64_tr_b16 {V(d+2,2)}, {V(base)} offset:{off+512}"]
def x_read_op(ch, s, d):
    return f"ds_read_b128 {V(d,4)}, {V(vXR+s)} offset:{L_X + ch*8192}"
def dot_ones(acc, r):
    return f"v_dot2c_f32_bf16 {V(acc)}, {S(sONES)}, {V(r)}"
def dot_sq(acc, r):
    return f"v_dot2c_f32_bf16 {V(acc)}, {V(r)}, {V(r)}"

def late_loads():
    if SCOUT:
        op(f"s_lshl_b32 {S(sT1)}, {S(sG)}, 4")
        op(f"s_add_u32 {S(sT1)}, {S(sT1)}, {S(sM)}")
        op(f"s_lshl_b32 {S(sT1)}, {S(sT1)}, 2")
        op(f"s_add_u32 {S(sT1)}, {S(sT1)}, {S(sW)}")
        op(f"v_lshlrev_b32 {V(17)}, 7, {V(vL)}")
        op(f"s_mul_i32 {S(sT2)}, {S(sT1)}, {14*128}")
        op(f"s_mov_b64 exec, 0x3fff")
        op(f"buffer_load_dword {V(243)}, {V(17)}, {S(sW1,4)}, {S(sT2)} offen")
        op(f"buffer_load_dword {V(244)}, {V(17)}, {S(sW2,4)}, {S(sT2)} offen")
        op("s_mov_b64 exec, -1")
def small_loads():
    op(f"v_lshrrev_b32 {V(17)}, 5, {V(vL)}")
    op(f"v_lshlrev_b32 {V(17)}, 3, {V(17)}")
    op(f"s_lshl_b32 {S(sT1)}, {S(sHQ)}, 7")
    op(f"s_lshl_b32 {S(sT2)}, {S(sW)}, 5")
    op(f"s_add_u32 {S(sT1)}, {S(sT1)}, {S(sT2)}")
    op(f"buffer_load_dwordx2 {V(vB2,2)}, {V(17)}, {S(sB2,4)}, {S(sT1)} offen")
    op(f"buffer_load_dwordx2 {V(vB2+2,2)}, {V(17)}, {S(sB2,4)}, {S(sT1)} offen offset:16")
    if TLBW:
        op(f"v_lshlrev_b32 {V(17)}, 21, {V(vL)}")
        op(f"v_add_u32 {V(17)}, 0xc000, {V(17)}")
        op(f"s_mov_b64 exec, 0xff")
        op(f"buffer_load_dword {V(241)}, {V(17)}, {S(sWS,4)}, 0 offen")
        op(f"s_mov_b64 exec, 1")
        op(f"buffer_load_dword {V(240)}, {V(vL)}, {S(sOUT,4)}, 0 offen")
        op("s_mov_b64 exec, -1")
    if SCOUT:
        op(f"s_lshl_b32 {S(sT1)}, {S(sG)}, 4")
        op(f"s_add_u32 {S(sT1)}, {S(sT1)}, {S(sM)}")
        op(f"s_lshl_b32 {S(sT1)}, {S(sT1)}, 2")
        op(f"s_add_u32 {S(sT1)}, {S(sT1)}, {S(sW)}")
        op(f"v_lshlrev_b32 {V(17)}, 7, {V(vL)}")
        op(f"s_lshl_b32 {S(sT1)}, {S(sT1)}, 9")
        op(f"s_mov_b64 exec, 0xf")
        op(f"buffer_load_dword {V(245)}, {V(17)}, {S(sWO,4)}, {S(sT1)} offen")
        op("s_mov_b64 exec, -1")
def spread(lst, k, n):
    return lst[len(lst)*k//n : len(lst)*(k+1)//n]
def record(fn):
    global op
    old = op; lst = []
    op = lambda t: lst.append(t)
    fn()
    op = old
    return lst
def l2_warm(srdreg, lines_per_wg, k, vPF=239):
    per_wave = lines_per_wg // 4
    op(f"s_and_b32 {S(sT1)}, {S(sG)}, 1")
    op(f"s_lshl_b32 {S(sT1)}, {S(sT1)}, 4")
    op(f"s_add_u32 {S(sT1)}, {S(sT1)}, {S(sM)}")
    op(f"s_lshl_b32 {S(sT1)}, {S(sT1)}, 2")
    op(f"s_add_u32 {S(sT1)}, {S(sT1)}, {S(sW)}")
    op(f"s_mul_i32 {S(sT1)}, {S(sT1)}, {per_wave*128}")
    op(f"v_add_u32 {V(17)}, {64*k}, {V(vL)}")
    op(f"v_min_u32 {V(17)}, {per_wave-1}, {V(17)}")
    op(f"v_lshlrev_b32 {V(17)}, 7, {V(17)}")
    op(f"buffer_load_dword {V(vPF)}, {V(17)}, {S(srdreg,4)}, {S(sT1)} offen")
import os
XK = os.environ.get("XK", "")
def kv_reads(it, s):
    if "r" in XK and it > 0: return
    e.ops([x_read_op(it, s, XF+4*s)] + w_read_ops(it, 0, s, WF+4*s) + w_read_ops(it, 1, s, WF+16+4*s))
def mK(s, first=False):
    mfma(V(aK,16), V(WF+4*s,4), V(XF+4*s,4), "0" if first else V(aK,16))
def mV(s, first=False):
    mfma(V(aV,16), V(XF+4*s,4), V(WF+16+4*s,4), "0" if first else V(aV,16))
def kv_dots(mid=None):
    if "d" in XK:
        if mid: mid(); mid()
        return
    for s in (1, 3):
        x = XF+4*s; k = WF+4*s; v = WF+16+4*s
        for j in range(4):
            op(dot_ones(sx0 if j % 2 == 0 else sx1, x+j))
            op(dot_sq(sq0 if j % 2 == 0 else sq1, x+j))
            op(dot_ones(cK0 if j % 2 == 0 else cK1, k+j))
            op(dot_ones(cV0 if j % 2 == 0 else cV1, v+j))
        if mid: mid()
for it in range(8):
    e.wait_tok(xtok[it], itok[it])
    if it == 0:
        op(f"v_add_u32 {V(vTHI)}, 0x9e3779b9, {V(vTHI)}")
        op(f"v_readlane_b32 {S(sELO)}, {V(vTLO)}, 4")
        op(f"v_add_u32 {V(vTLO)}, 1, {V(vTLO)}")
        op(f"v_lshlrev_b32 {V(vTLO)}, 4, {V(vTLO)}")
        op(f"v_readlane_b32 {S(sTHI)}, {V(vTHI)}, 4")
        op(f"v_readlane_b32 {S(sBASE)}, {V(vTLO)}, 4")
    e.wait(lg=0)
    e.barrier()
    stamp(f"it{it}")
    if it == 0 and PROF:
        op(f"s_memtime {S(sPA,2)}")
        e.wait(lg=0)
        op(f"v_writelane_b32 {V(vST)}, {S(sPA)}, 60")
    if "m" in XK:
        xtok[it+3] = itok[it+3] = itok[11] = None
    else:
        if it == 0:
            bg.extend(x_acts(2, S(sWOFF)) + item_acts(2, S(sWOFF)))
        if it + 3 < 8:
            bg.extend(x_acts(it+3, S(sWOFF)))
        bg.extend(item_acts(it+3, S(sWOFF)))
        if it == 7:
            bg.extend(item_acts(11, S(sWOFF)))
    if it > 0: mK(3)
    kv_reads(it, 0)
    if it > 0: mV(3)
    kv_reads(it, 2)
    tick(1)
    if it > 0:
        kv_dots(tick)
    else:
        def census():
            op(f"s_add_u32 {S(sT0)}, {S(sBASE)}, {S(sXCC)}")
            op(f"v_mov_b32 {V(18)}, {S(sT0)}")
            op(f"v_mov_b32 {V(19)}, {S(sTHI)}")
            op(f"s_lshl_b32 {S(sT1)}, {S(sG)}, 7")
            op(f"s_lshl_b32 {S(sT2)}, {S(sM)}, 3")
            op(f"s_add_u32 {S(sT1)}, {S(sT1)}, {S(sT2)}")
            op(f"v_mov_b32 {V(17)}, 0")
            op("s_mov_b64 exec, 1")
            op(f"buffer_store_dwordx2 {V(18,2)}, {V(17)}, {S(sWS,4)}, {S(sT1)} offen offset:{WS_CEN} sc1")
            op("s_mov_b64 exec, -1")
        tick(3)
        wave0(census)
        tick(3)
    mK(0, it == 0); kv_reads(it, 1)
    mV(0, it == 0); kv_reads(it, 3)
    mK(2); tick(1)
    mV(2)
    if it in (0, 7): tick(1)
    if it == 5: small_loads()
    mK(1); tick(1)
    mV(1); tick(1)
    if it in (0, 7):
        drain()
    assert not bg
stamp("p1_kvloop")

vMU, vT0, vT1, vT2 = 152, 153, 154, 155
vR = 156
EXV, EXP = 184, 188
vVS, vKW, vVW, vVR = 180, 181, 182, 183
vCX = 17
kv_dots()
mK(3)
op(f"v_add_f32 {V(EXV)}, {V(cK0)}, {V(cK1)}")
op(f"v_add_f32 {V(EXV+1)}, {V(cV0)}, {V(cV1)}")
op(f"v_add_f32 {V(EXV+2)}, {V(sx0)}, {V(sx1)}")
op(f"v_add_f32 {V(EXV+3)}, {V(sq0)}, {V(sq1)}")
for k in range(4):
    op(f"v_mov_b32 {V(EXP+k)}, {V(EXV+k)}")
mV(3)
op(f"s_lshl_b32 {S(sT1)}, {S(sW)}, 10")
op(f"s_add_u32 {S(sT1)}, {S(sT1)}, {L_MISC}")
for k in range(4):
    op(f"v_permlane32_swap_b32 {V(EXV+k)}, {V(EXP+k)}")
op(f"v_add_u32 {V(vCX)}, {S(sT1)}, {V(vL16)}")
for k in range(4):
    op(f"v_add_f32 {V(EXV+k)}, {V(EXV+k)}, {V(EXP+k)}")
op(f"ds_write_b128 {V(vCX)}, {V(EXV,4)}")
op(f"v_xor_b32 {V(18)}, 1024, {V(vCX)}")
op(f"v_xor_b32 {V(19)}, 2048, {V(vCX)}")
op(f"v_bfe_u32 {V(vT0)}, {V(vL)}, 4, 1")
op(f"v_lshrrev_b32 {V(vT1)}, 5, {V(vL)}")
op(f"v_and_b32 {V(vVR)}, 15, {V(vL)}")
op(f"v_lshlrev_b32 {V(vVR)}, 4, {V(vVR)}")
op(f"v_lshl_add_u32 {V(vVR)}, {V(vT1)}, 8, {V(vVR)}")
op(f"v_lshl_add_u32 {V(vVS)}, {V(vT0)}, 16, {V(vVR)}")
op(f"v_lshl_add_u32 {V(vVW)}, {V(vT0)}, 11, {V(vVR)}")
op(f"s_lshl_b32 {S(sT0)}, {S(sHQ)}, 1")
op(f"s_add_u32 {S(sT0)}, {S(sT0)}, {S(sP)}")
op(f"s_lshl_b32 {S(sT0)}, {S(sT0)}, 7")
op(f"s_lshl_b32 {S(sT1)}, {S(sTB)}, 1")
op(f"s_add_u32 {S(sT0)}, {S(sT0)}, {S(sT1)}")
op(f"s_add_u32 {S(sT0)}, {S(sT0)}, {S(sT_)}")
e.wait(lg=0)
e.barrier()
op(f"ds_read_b64 {V(EXP+2,2)}, {V(19)} offset:8")
op(f"ds_read_b64 {V(EXP,2)}, {V(18)}")
op(f"s_lshl_b32 {S(sT0)}, {S(sT0)}, 10")
op(f"s_add_u32 {S(sT1)}, {S(sT0)}, {hx(WS_K)}")
op(f"s_add_u32 {S(sT2)}, {S(sT0)}, {hx(WS_K + 65536)}")
op(f"s_add_u32 {S(sT3)}, {S(sT0)}, {hx(WS_V)}")
op(f"s_lshl_b32 s4, {S(sP)}, 12")
op(f"s_lshl_b32 s5, {S(sT_)}, 10")
op(f"s_add_u32 s4, s4, s5")
op(f"s_add_u32 s4, s4, {L_EX}")
op(f"v_add_u32 {V(vKW)}, s4, {V(vL16)}")
op(f"v_add_u32 {V(vVW)}, s4, {V(vVW)}")
op(f"v_add_f32 {V(EXV+2)}, {V(EXV+2)}, {V(EXP+2)}")
op(f"v_add_f32 {V(EXV+3)}, {V(EXV+3)}, {V(EXP+3)}")
op(f"v_mul_f32 {V(vMU)}, {hx(f2u(-1.0/512))}, {V(EXV+2)}")
op(f"v_add_f32 {V(EXV)}, {V(EXV)}, {V(EXP)}")
split_hi_lo(vMU, vT0, vT1, vT2)
op(f"v_cvt_pk_bf16_f32 {V(SF)}, {V(vMU)}, {V(vT1)}")
op(f"v_and_b32 {V(SF+1)}, 0xffff, {V(vT0)}")
split_hi_lo(EXV, CFK, vT1, vT2)
op(f"v_cndmask_b32 {V(SF)}, 0, {V(SF)}, {S(sLOW,2)}")
op(f"v_cndmask_b32 {V(SF+1)}, 0, {V(SF+1)}, {S(sLOW,2)}")
op(f"v_cvt_pk_bf16_f32 {V(CFK+1)}, {V(vT1)}, 0")
op(f"v_add_f32 {V(EXV+1)}, {V(EXV+1)}, {V(EXP+1)}")
op(f"v_mul_f32 {V(vT0)}, {hx(f2u(1.0/512))}, {V(EXV+3)}")
mfma(V(aK,16), V(CFK,4), V(SF,4), V(aK,16))
op(f"v_fma_f32 {V(vT0)}, -{V(vMU)}, {V(vMU)}, {V(vT0)}")
op(f"v_max_f32 {V(vT0)}, 0, {V(vT0)}")
op(f"v_add_f32 {V(vT0)}, {hx(f2u(1e-5))}, {V(vT0)}")
op(f"v_rsq_f32 {V(vR)}, {V(vT0)}")
split_hi_lo(EXV+1, CFV, vT1, vT2)
op(f"v_cvt_pk_bf16_f32 {V(CFV+1)}, {V(vT1)}, 0")
split_hi_lo(vR, vT0, vT1, vT2)
mfma(V(aV,16), V(SF,4), V(CFV,4), V(aV,16))
op(f"v_cvt_pk_bf16_f32 {V(RF)}, {V(vR)}, {V(vT1)}")
op(f"v_cndmask_b32 {V(RF)}, 0, {V(RF)}, {S(sLOW,2)}")
op(f"v_mul_f32 {V(vR+1)}, {hx(f2u(0.25*math.log2(math.e)))}, {V(vR)}")
KP, VP = 96, 104
for i in range(3):
    op(f"v_mul_f32 {V(aK+i)}, {V(aK+i)}, {V(vR)}")
mfma(V(aR,16), V(RF,4), V(ONF,4), "0")
for h in range(2):
    for i in range(3 if h == 0 else 0, 8):
        op(f"v_mul_f32 {V(aK+8*h+i)}, {V(aK+8*h+i)}, {V(vR)}")
    for i in range(4):
        op(f"v_cvt_pk_bf16_f32 {V(KP+4*h+i)}, {V(aK+8*h+2*i)}, {V(aK+8*h+2*i+1)}")
    op(f"buffer_store_dwordx4 {V(KP+4*h,4)}, {V(vL16)}, {S(sWS,4)}, {S(sT1+h)} offen sc1")
for h in range(2):
    for i in range(4):
        op(f"v_pk_mul_f32 {V(aV+8*h+2*i,2)}, {V(aV+8*h+2*i,2)}, {V(aR+8*h+2*i,2)}")
    for i in range(4):
        op(f"v_cvt_pk_bf16_f32 {V(VP+4*h+i)}, {V(aV+8*h+2*i)}, {V(aV+8*h+2*i+1)}")
    kvtok = op(f"buffer_store_dwordx4 {V(VP+4*h,4)}, {V(vVS)}, {S(sWS,4)}, {S(sT3)} offen offset:{512*h} sc1")
stamp("kv_stored")
e.wait_tok(itok[11])
e.barrier()

QB = [(112, 128), (204, 220)]
def q_reads(c):
    xb, wb = QB[c % 2]
    o = []
    for s in range(4):
        o += [x_read_op(c, s, xb+4*s)] + w_read_ops(8 + c//2, c % 2, s, wb+4*s)
    return o
e.ops(q_reads(0))
late_loads()
if PFW1:
    for k in range(2):
        l2_warm(sW1, 448, k, 240+k)
op(f"ds_write_b128 {V(vKW)}, {V(KP,4)}")
op(f"ds_write_b128 {V(vKW)}, {V(KP+4,4)} offset:2048")
op(f"ds_write_b128 {V(vVW)}, {V(VP,4)} offset:8192")
op(f"ds_write_b128 {V(vVW)}, {V(VP+4,4)} offset:{8192+512}")
cQ0, cQ1 = 144, 145
op(f"v_mov_b32 {V(cQ0)}, 0")
op(f"v_mov_b32 {V(cQ1)}, 0")
vWDk = [vWD, 236, 237, 238]
vW1 = [21, 189, 190, 191]
vTR0, vTR1 = 30, 31
WO = 192
sWO_L, sWO_R, sW4K = 0, 2, 1
def wo_like_addr(dst0, dst1, base_sreg, base_imm, tmp=19):
    tr_base128(dst0, 9, tmp)
    op(f"s_lshl_b32 {S(sT1)}, {S(sP)}, 6")
    op(f"s_lshl_b32 {S(sT2)}, {S(sT_)}, 5")
    op(f"s_or_b32 {S(sT1)}, {S(sT1)}, {S(sT2)}")
    op(f"v_xor_b32 {V(dst0)}, {S(sT1)}, {V(dst0)}")
    op(f"s_add_u32 {S(sT1)}, {base_sreg}, {base_imm}")
    op(f"v_add_u32 {V(dst0)}, {S(sT1)}, {V(dst0)}")
    op(f"v_xor_b32 {V(dst1)}, 64, {V(dst0)}")
def w1_addr_rest():
    for k in range(1, 4):
        op(f"v_add_u32 {V(vW1[k])}, {k*(4*3584-1024)}, {V(vW1[0])}")
def side_a():
    op(f"v_and_b32 {V(vT0)}, 31, {V(vL)}")
    op(f"v_bfe_u32 {V(vT1)}, {V(vL)}, 1, 3")
    op(f"s_lshl_b32 {S(sT1)}, {S(sW)}, 1")
    op(f"v_xor_b32 {V(vT1)}, {S(sT1)}, {V(vT1)}")
    op(f"v_lshlrev_b32 {V(vT1)}, 4, {V(vT1)}")
    op(f"v_lshl_add_u32 {V(vT1)}, {V(vT0)}, 7, {V(vT1)}")
    op(f"v_lshrrev_b32 {V(vT0)}, 5, {V(vL)}")
    op(f"v_lshl_add_u32 {V(vT1)}, {V(vT0)}, 3, {V(vT1)}")
    op(f"v_add_u32 {V(vT1)}, s0, {V(vT1)}")
    op(f"v_xor_b32 {V(vT2)}, 16, {V(vT1)}")
    for t in range(2):
        op(f"ds_read_b64 {V(vRES+4*t,2)}, {V(vT1)} offset:{L_X + t*4096}")
        op(f"ds_read_b64 {V(vRES+4*t+2,2)}, {V(vT2)} offset:{L_X + t*4096}")
    for k in range(1, 4):
        op(f"v_add_u32 {V(vWDk[k])}, {k*(8192-1024)}, {V(vWD)}")
    op(f"s_lshl_b32 {S(sWO_L)}, {S(sW)}, 13")
    op(f"s_lshl_b32 {S(sWO_R)}, {S(sW)}, 17")
    op(f"s_lshl_b32 {S(sW4K)}, {S(sW)}, 12")
    op(f"s_add_u32 {S(sT1)}, {S(sTB)}, 1")
    op(f"v_add_u32 {V(148)}, {S(sT1)}, {V(vL)}")
    op(f"v_cmp_gt_u32 vcc, 32, {V(148)}")
    op(f"v_cmp_gt_u32 s[4:5], 4, {V(vL)}")
    op(f"v_lshlrev_b32 {V(148)}, 3, {V(148)}")
    op(f"v_add_u32 {V(148)}, {S(sHQ)}, {V(148)}")
    op(f"v_lshlrev_b32 {V(148)}, 4, {V(148)}")
    op(f"v_add_u32 {V(148)}, {V(148)}, {V(vL)}")
    op(f"v_lshlrev_b32 {V(148)}, 3, {V(148)}")
    op(f"v_add_u32 {V(vTLO)}, 15, {V(vTLO)}")
    op(f"s_and_b64 s[4:5], s[4:5], vcc")
    op(f"v_and_b32 {V(149)}, 15, {V(vL)}")
    op(f"v_lshlrev_b32 {V(149)}, 3, {V(149)}")
def side_b():
    wo_like_addr(vTR0, vTR1, S(sWO_L), L_WOS)
    op(f"v_lshrrev_b32 {V(17)}, 4, {V(vL)}")
    op(f"v_lshlrev_b32 {V(18)}, 2, {V(17)}")
    op(f"v_and_b32 {V(19)}, 15, {V(vL)}")
    op(f"v_xor_b32 {V(18)}, {V(18)}, {V(19)}")
    op(f"v_lshlrev_b32 {V(18)}, 4, {V(18)}")
    op(f"v_mul_u32_u24 {V(vW1[0])}, 3584, {V(17)}")
    op(f"v_add_u32 {V(vW1[0])}, {V(vW1[0])}, {V(18)}")
    op(f"s_mul_i32 {S(sT1)}, {S(sW)}, {16*3584}")
    op(f"s_min_u32 {S(sT2)}, {S(sM)}, 13")
    op(f"s_lshl_b32 {S(sT2)}, {S(sT2)}, 8")
    op(f"s_add_u32 {S(sT1)}, {S(sT1)}, {S(sT2)}")
    op(f"v_add_u32 {V(vW1[0])}, {S(sT1)}, {V(vW1[0])}")
    for r in range(16):
        c0 = 8*(r >> 2) + (r & 3)
        op(f"s_mov_b32 {S(sCM+2*r)}, {hx(0xffffffff << c0)}")
        op(f"s_mov_b32 {S(sCM+2*r+1)}, {hx(0xffffffff << (c0+4))}")
    op(f"v_lshlrev_b32 {V(vCX)}, 2, {V(vL)}")
    op(f"s_lshl_b32 {S(sT1)}, {S(sW)}, 8")
    op(f"s_add_u32 {S(sT1)}, {S(sT1)}, {L_CQ}")
    op(f"v_add_u32 {V(vCX)}, {S(sT1)}, {V(vCX)}")
    op(f"v_add_u32 {V(vKW)}, {L_QX - L_EX}, {V(vKW)}")
    op(f"v_and_b32 {V(150)}, 3, {V(vL)}")
    op(f"v_lshlrev_b32 {V(150)}, 3, {V(150)}")
    op(f"s_lshl_b32 {S(sT4)}, {S(sTB)}, 3")
    op(f"s_add_u32 {S(sT4)}, {S(sT4)}, {S(sHQ)}")
    op(f"s_lshl_b32 {S(sT4)}, {S(sT4)}, 7")
    op(f"s_add_u32 {S(sT4)}, {S(sT4)}, {hx(WS_HALO)}")
sideA = record(side_a); sideB = record(side_b)
def stage_acts(srdreg, lds_sreg, lds_imm, row_sreg, row_imm, n, toks):
    acts = []
    for i in range(n):
        def a(i=i):
            if i % 4 == 0:
                op(f"s_add_u32 m0, {lds_sreg}, {lds_imm + i*1024}")
                op(f"s_add_u32 {S(sBG)}, {row_sreg}, {row_imm + i*8192}")
            toks.append(dma(vWDk[i % 4], srdreg, S(sBG), (i % 4)*1024))
        acts.append(a)
    return acts
wo1, wo2 = [], []
for c in range(8):
    xb, wb = QB[c % 2]
    nxt = q_reads(c+1) if c < 7 else []
    for s in range(4):
        mfma(V(aQ,16), V(wb+4*s,4), V(xb+4*s,4), "0" if (c == 0 and s == 0) else V(aQ,16))
        e.ops(nxt[3*s:3*s+3])
        if c < 3:
            e.ops(spread(sideA, 4*c+s, 12))
        elif c >= 4:
            e.ops(spread(sideB, 4*(c-4)+s, 16))
        if c >= 4 and s % 2 == 1:
            tick(1)
    for s in (1, 3):
        for j in range(4):
            op(dot_ones(cQ0 if j % 2 == 0 else cQ1, wb+4*s+j))
    if c == 3:
        e.wait_tok(kvtok)
        e.barrier()
        def halo_flags():
            D = e.fresh("nohalo")
            op("s_cmp_eq_u64 s[4:5], 0")
            op(f"s_cbranch_scc1 {D}")
            op("s_mov_b64 exec, s[4:5]")
            op(f"s_mov_b32 {S(sT1)}, {hx(WS_HALO)}")
            op(f"buffer_store_dwordx2 {V(vTLO,2)}, {V(148)}, {S(sWS,4)}, {S(sT1)} offen sc1")
            op("s_mov_b64 exec, -1")
            e.label(D)
        wave0(halo_flags)
        stamp("halo_sent")
        op(f"s_lshl_b32 {S(sT1)}, {S(sG)}, 7")
        op(f"buffer_load_dwordx2 {V(146,2)}, {V(149)}, {S(sWS,4)}, {S(sT1)} offen offset:{WS_CEN} sc1")
        bg.extend(stage_acts(sWO, S(sWO_L), L_WOS, S(sWO_R), 0, 8, wo1))
drain()
stamp("q_loop")
op(f"v_add_f32 {V(cQ0)}, {V(cQ0)}, {V(cQ1)}")
halves_sum(cQ0, vT0)
op(f"ds_write_b32 {V(vCX)}, {V(cQ0)}")
op(f"v_xor_b32 {V(vCX)}, 256, {V(vCX)}")
e.wait(lg=0)
e.barrier()
op(f"ds_read_b32 {V(cQ1)}, {V(vCX)}")
op(f"s_add_u32 {S(sT0)}, {S(sBASE)}, {S(sXCC)}")
op(f"v_cmp_eq_u32 vcc, {S(sT0)}, {V(146)}")
op(f"v_cmp_eq_u32 {S(sPA,2)}, {S(sTHI)}, {V(147)}")
op(f"s_and_b64 vcc, vcc, {S(sPA,2)}")
op(f"s_cmp_eq_u64 vcc, -1")
op(f"s_cselect_b32 {S(sFAST)}, {0 if SLOW else 1}, 0")
op(f"v_add_f32 {V(cQ0)}, {V(cQ0)}, {V(cQ1)}")
split_hi_lo(cQ0, CFK, vT1, vT2)
op(f"v_cvt_pk_bf16_f32 {V(CFK+1)}, {V(vT1)}, 0")
mfma(V(aQ,16), V(CFK,4), V(SF,4), V(aQ,16))
def tr_step_ops(dstf, s_local, a0=vTR0, a1=vTR1):
    return [f"ds_read_b64_tr_b16 {dstf(4*u+2*j)}, {V((a0, a1)[u])} offset:{s_local*2048+j*1024}" for u in range(2) for j in range(2)]
e.wait_tok(wo1[-1])
for s in range(3):
    e.ops(tr_step_ops(lambda o: V(WO+8*s+o, 2), s))
for i in range(8):
    op(f"v_pk_mul_f32 {V(aQ+2*i,2)}, {V(aQ+2*i,2)}, {V(vR,2)} op_sel:[0,1] op_sel_hi:[1,1]")
for i in range(8):
    op(f"v_cvt_pk_bf16_f32 {V(KP+i)}, {V(aQ+2*i)}, {V(aQ+2*i+1)}")
op(f"ds_write_b128 {V(vKW)}, {V(KP,4)}")
op(f"ds_write_b128 {V(vKW)}, {V(KP+4,4)} offset:2048")
e.ops(tr_step_ops(lambda o: V(WO+24+o, 2), 3))
wave0(lambda: op(f"buffer_load_dwordx2 {V(148,2)}, {V(150)}, {S(sWS,4)}, {S(sT4)} offen sc1"))
Q0 = 32
op(f"s_lshl_b32 {S(sT1)}, {S(sW)}, 11")
op(f"v_add_u32 {V(17)}, {S(sT1)}, {V(vL16)}")
op(f"v_add_u32 {V(18)}, {L_QX}, {V(17)}")
op(f"v_add_u32 {V(17)}, {L_EX}, {V(17)}")
op(f"s_add_u32 {S(sT1)}, {S(sT1)}, {L_EX + 8192}")
op(f"v_add_u32 {V(19)}, {S(sT1)}, {V(vVR)}")
w1_addr_rest()
e.wait(lg=0)
wo2acts = stage_acts(sWO, S(sWO_L), L_WOS, S(sWO_R), 8*8192, 8, wo2)
for f in wo2acts[:4]: f()
e.barrier()
for t in range(2):
    op(f"ds_read_b128 {V(Q0+4*t,4)}, {V(18)} offset:{t*1024}")
    op(f"ds_read_b128 {A(aKT+4*(8+t),4)}, {V(17)} offset:{t*1024}")
op(f"s_mov_b64 exec, {S(sM16,2)}")
for t in range(2):
    for st in range(2):
        op(f"ds_read_b128 {A(aVT+8*(8+t)+4*st,4)}, {V(19)} offset:{t*1024+st*512}")
op("s_mov_b64 exec, -1")
for f in wo2acts[4:]: f()
def w1_acts(G):
    acts = []
    for k in range(4):
        def a(k=k):
            if k == 0:
                op(f"s_add_u32 m0, {S(sW4K)}, {G*16384}")
                op(f"s_mov_b32 {S(sBG)}, {G*64*3584}")
            dma(vW1[k], sW1, S(sBG), k*1024)
        acts.append(a)
    return acts
op(f"s_lshl_b32 {S(sT0)}, {S(sHQ)}, 2")
op(f"s_add_u32 {S(sT0)}, {S(sT0)}, {S(sW)}")
op(f"s_lshl_b32 {S(sT0)}, {S(sT0)}, 6")
op(f"s_lshl_b32 {S(sT1)}, {S(sTB)}, 1")
op(f"s_add_u32 {S(sT0)}, {S(sT0)}, {S(sT1)}")
op(f"s_lshl_b32 {S(sT0)}, {S(sT0)}, 10")
op(f"s_add_u32 s4, {S(sT0)}, {hx(WS_K - 8192)}")
op(f"s_add_u32 s5, {S(sT0)}, {hx(WS_K - 4096)}")
sVA, sVB = 60, 49
op(f"s_add_u32 {S(sVB)}, {S(sT0)}, {hx(WS_V - 4096)}")
op(f"s_add_u32 {S(sVA)}, {S(sT0)}, {hx(WS_V - 8192)}")
NM = [40, 56]; MG = [72, 88]; SB = [104, 120, 136]; OA = [152, 168]
mx = [184, 185, 186, 187]
vNEG = 188
Kt = lambda j: A(aKT+4*j, 4)
Vt = lambda j, st: A(aVT+8*j+4*st, 4)
Qt = lambda i: V(Q0+4*i, 4)
op(f"v_mov_b32 {V(vNEG)}, 0xff800000")
for r in mx:
    op(f"v_mov_b32 {V(r)}, {V(vNEG)}")
def max_ops(i, b):
    return [f"v_max3_f32 {V(mx[2*i+(k&1)])}, {V(mx[2*i+(k&1)])}, {V(b+2*k)}, {V(b+2*k+1)}" for k in range(8)]
units = [(1, 8)] + [(i, j) for j in range(7, 1, -1) for i in range(2)] + [(0, 1), (1, 1), (0, 0)]
exit_at = {1: 1, 5: 2, 9: 3, 13: 4}
def s_mfma(n):
    i, j = units[n]
    mfma(V(SB[n % 3],16), Kt(j), Qt(i), "0")
s_mfma(0)
mfma(V(MG[0],16), Kt(8), Qt(0), "0")
mfma(V(MG[1],16), Kt(9), Qt(1), "0")
e.wait(lg=0)
stamp("q_done")
def halo_wait():
    D = e.fresh("haloearly")
    op(f"s_min_u32 {S(sT1)}, {S(sTB)}, 4")
    op(f"s_lshl_b32 {S(sT2)}, 1, {S(sT1)}")
    op(f"s_sub_u32 {S(sT2)}, {S(sT2)}, 1")
    op(f"s_mov_b32 {S(sT3)}, 0")
    op(f"s_add_u32 {S(sT1)}, {S(sBASE)}, 15")
    op(f"v_cmp_eq_u32 vcc, {S(sT1)}, {V(148)}")
    op(f"v_cmp_eq_u32 {S(sPA,2)}, {S(sTHI)}, {V(149)}")
    op(f"s_and_b64 vcc, vcc, {S(sPA,2)}")
    op(f"s_andn2_b64 {S(sPA,2)}, {S(sT2,2)}, vcc")
    op(f"s_cbranch_scc0 {D}")
    poll(150, S(sT4), S(sT2,2), S(sT1), 1, 18, S(sTHI), 0x100)
    e.label(D)
wave0(halo_wait)
e.barrier()
stamp("halo_ok")
for j in range(7, -1, -1):
    op(f"buffer_load_dwordx4 {A(aKT+4*j,4)}, {V(vL16)}, {S(sWS,4)}, {'s4' if j < 4 else 's5'} offen offset:{(j%4)*1024} sc1")
def v_loads(js):
    op(f"s_mov_b64 exec, {S(sM16,2)}")
    for j in js:
        for st in range(2):
            op(f"buffer_load_dwordx4 {A(aVT+8*j+4*st,4)}, {V(vVR)}, {S(sWS,4)}, {S(sVA if j < 4 else sVB)} offen offset:{(j%4)*1024+st*512} sc1")
    op("s_mov_b64 exec, -1")
e.ops(max_ops(1, SB[0]))
v_loads((7,))
s_mfma(1); s_mfma(2)
for n in range(1, len(units)):
    if n in exit_at:
        op(f"s_cmp_lt_u32 {S(sTB)}, {exit_at[n]}")
        op(f"s_cbranch_scc1 L_p1_short{exit_at[n]}")
    i, j = units[n]
    if n + 2 < len(units):
        s_mfma(n+2)
    if n == 3: v_loads((6,))
    if n == 6: v_loads((5,))
    if n == 8: v_loads((4,))
    if n < 14:
        e.ops(max_ops(i, SB[n % 3]))
    else:
        for r in range(16):
            op(f"v_cndmask_b32 {V(MG[i]+r)}, {V(SB[n%3]+r)}, {V(MG[i]+r)}, {S(sCM+2*r,2)}")
op("s_branch L_p1_join")
for k in range(1, 5):
    e.label(f"L_p1_short{k}")
for i in range(2):
    for r in range(16):
        op(f"v_cndmask_b32 {V(MG[i]+r)}, {V(vNEG)}, {V(MG[i]+r)}, {S(sCM+2*r,2)}")
e.label("L_p1_join")
e.ops(interleave(max_ops(0, MG[0]), max_ops(1, MG[1])))
for i in range(2):
    op(f"v_max_f32 {V(mx[2*i])}, {V(mx[2*i])}, {V(mx[2*i+1])}")
for i in range(2):
    op(f"v_mov_b32 {V(mx[2*i+1])}, {V(mx[2*i])}")
op("s_nop 0")
for i in range(2):
    op(f"v_permlane32_swap_b32 {V(mx[2*i])}, {V(mx[2*i+1])}")
for i in range(2):
    op(f"v_max_f32 {V(mx[2*i])}, {V(mx[2*i])}, {V(mx[2*i+1])}")
for i in range(2):
    op(f"v_sub_f32 {V(NM[i])}, 0, {V(mx[2*i])}")
    op(f"v_sub_f32 {V(NM[i]+1)}, 0, {V(mx[2*i])}")
for i in range(2):
    for k in range(1, 8):
        op(f"v_pk_mov_b32 {V(NM[i]+2*k,2)}, {V(NM[i],2)}, {V(NM[i],2)} op_sel:[0,1]")
stamp("att_p1")
full = units[:14]
def exp_cvt(b):
    o = []
    for k in range(8):
        o.append(f"v_exp_f32 {V(b+2*k)}, {V(b+2*k)}")
        o.append(f"v_exp_f32 {V(b+2*k+1)}, {V(b+2*k+1)}")
        if k >= 1:
            o.append(f"v_cvt_pk_bf16_f32 {V(b+k-1)}, {V(b+2*k-2)}, {V(b+2*k-1)}")
    o.append("NOP")
    o.append(f"v_cvt_pk_bf16_f32 {V(b+7)}, {V(b+14)}, {V(b+15)}")
    return o
def run_with(valu, inserts):
    for k, t in enumerate(valu):
        for f in inserts.get(k, []):
            f()
        if t != "NOP":
            op(t)
def s2(n):
    i, j = full[n]
    mfma(V(SB[n % 3],16), Kt(j), Qt(i), V(NM[i],16))
def pv(i, j, b, first=False):
    return [lambda: mfma(V(OA[i],16), Vt(j,0), V(b,4), "0" if first else V(OA[i],16)),
            lambda: mfma(V(OA[i],16), Vt(j,1), V(b+4,4), V(OA[i],16))]
for i in range(2):
    for k in range(8):
        op(f"v_pk_add_f32 {V(MG[i]+2*k,2)}, {V(MG[i]+2*k,2)}, {V(NM[i],2)}")
sS2L, sS2R = 0, 2
w2tok = {}
def w2_round_dma(r):
    w2tok[r] = []
    return stage_acts(sW2, S(sS2L), L_S2, S(sS2R), r*6*8192, 6, w2tok[r])
wotr = {}
def bg_list():
    L = [a for G in range(8) for a in w1_acts(G)]
    def wo_tr(s):
        def f():
            if s == 0: e.wait_tok(wo2[-1])
            for t in tr_step_ops(lambda o: V(WO+32+8*s+o, 2), s):
                wotr[s] = op(t)
        return f
    L[0:0] = [lambda: v_loads((3,)), lambda: v_loads((2,)), wo_tr(0), lambda: v_loads((1,)), wo_tr(1), lambda: v_loads((0,)), wo_tr(2), wo_tr(3)]
    if PFL2:
        L[0:0] = [lambda: l2_warm(sW2, 448, 0, 18), lambda: l2_warm(sW2, 448, 1, 188)]
    def first():
        global vWDk
        e.wait_tok(wotr[3])
        op(f"s_mul_i32 {S(sS2R)}, {S(sW)}, {448*1024}")
        vWDk = [vWD, 15, 14, 19]
        for k in range(1, 4):
            op(f"v_add_u32 {V(vWDk[k])}, {k*(8192-1024)}, {V(vWD)}")
        d0[0]()
    d0 = w2_round_dma(0)
    return L + [first] + d0[1:]
bg.extend(bg_list())
nbg = len(bg)
def split_ops(i):
    return [f"v_and_b32 {V(MG[i]+8+k)}, {V(MG[i]+k)}, {V(MK+k)}" for k in range(8)] + \
           [f"v_xor_b32 {V(MG[i]+k)}, {V(MG[i]+k)}, {V(MG[i]+8+k)}" for k in range(8)]
run_with(exp_cvt(MG[0]) + split_ops(0), {1: [lambda: s2(0)], 6: [lambda: s2(1)], 12: [tick], 20: [tick], 30: [tick]})
p0 = pv(0, 8, MG[0]+8, first=True)
run_with(exp_cvt(MG[1]) + split_ops(1), {2: [p0[0]], 7: [p0[1]], 12: [tick], 20: [tick], 30: [tick]})
pend = pv(1, 9, MG[1]+8, first=True)
done_before = {}
for n in range(len(full)):
    if n in exit_at:
        if pend:
            for f in pend: f()
            pend = None
        done_before[exit_at[n]] = nbg - len(bg)
        op(f"s_cmp_lt_u32 {S(sTB)}, {exit_at[n]}")
        op(f"s_cbranch_scc1 L_p2_short{exit_at[n]}")
    i, j = full[n]
    ins = {}
    if pend:
        ins[2] = [pend[0]]; ins[7] = [pend[1]]
    if n + 2 < len(full):
        ins.setdefault(13, []).append(lambda n=n: s2(n+2))
    for pos in ((4, 10, 16, 22) if n < 2 else (4, 10, 18)):
        ins.setdefault(pos, []).append(tick)
    if n == 13:
        for i2 in range(2):
            q = pv(i2, i2, MG[i2])
            ins.setdefault(12+6*i2, []).append(q[0]); ins.setdefault(15+6*i2, []).append(q[1])
    run_with(exp_cvt(SB[n % 3]), ins)
    pend = pv(i, j, SB[n % 3])
for f in pend: f()
assert not bg, len(bg)
op("s_branch L_p2_done")
save_tok = dict(w2tok)
allacts = bg_list()
for k in range(1, 5):
    e.label(f"L_p2_short{k}")
    lo = done_before[k]; hi = done_before[k+1] if k < 4 else nbg
    for a in allacts[lo:hi]:
        a()
e.wait(vm=0, lg=0)
w2tok.update(save_tok)
e.label("L_p2_done")
stamp("att_p2")
op(f"s_lshl_b32 {S(sT0)}, {S(sTB)}, 6")
op(f"s_lshl_b32 {S(sT1)}, {S(sHQ)}, 2")
op(f"s_add_u32 {S(sT0)}, {S(sT0)}, {S(sT1)}")
op(f"s_add_u32 {S(sT0)}, {S(sT0)}, {S(sW)}")
op(f"s_lshl_b32 {S(sT0)}, {S(sT0)}, 10")
op(f"s_add_u32 {S(sT0)}, {S(sT0)}, {hx(WS_O)}")
op(f"s_add_u32 {S(sT1)}, {S(sT0)}, 32768")
for i in range(2):
    op(f"v_rcp_f32 {V(mx[2*i])}, {V(OA[i]+8)}")
for i in range(2):
    for k in range(4):
        op(f"v_pk_mul_f32 {V(OA[i]+2*k,2)}, {V(OA[i]+2*k,2)}, {V(mx[2*i],2)} op_sel_hi:[1,0]")
    for k in range(4):
        op(f"v_cvt_pk_bf16_f32 {V(OA[i]+8+k)}, {V(OA[i]+2*k)}, {V(OA[i]+2*k+1)}")
def st_o(m):
    op(f"buffer_store_dwordx4 {V(OA[0]+8,4)}, {V(vL16)}, {S(sWS,4)}, {S(sT0)} offen{m}")
    op(f"buffer_store_dwordx4 {V(OA[1]+8,4)}, {V(vL16)}, {S(sWS,4)}, {S(sT1)} offen{m}")
stores_mode(st_o)
vA = 22
op(f"v_and_b32 {V(17)}, 31, {V(vL)}")
op(f"v_lshlrev_b32 {V(17)}, 1, {V(17)}")
op(f"s_min_u32 {S(sT1)}, {S(sM)}, 13")
op(f"s_lshl_b32 {S(sT1)}, {S(sT1)}, 8")
op(f"s_lshl_b32 {S(sT2)}, {S(sW)}, 6")
op(f"s_add_u32 {S(sT1)}, {S(sT1)}, {S(sT2)}")
op(f"buffer_load_ushort {V(14)}, {V(17)}, {S(sB1,4)}, {S(sT1)} offen")
def w1_tr_addr():
    op(f"v_bfe_u32 {V(17)}, {V(vL)}, 2, 2")
    op(f"v_lshlrev_b32 {V(vA)}, 8, {V(17)}")
    op(f"v_lshl_add_u32 {V(vA)}, {V(17)}, 6, {V(vA)}")
    op(f"v_bfe_u32 {V(17)}, {V(vL)}, 4, 1")
    op(f"v_lshl_add_u32 {V(vA)}, {V(17)}, 5, {V(vA)}")
    op(f"v_and_b32 {V(17)}, 3, {V(vL)}")
    op(f"v_lshl_add_u32 {V(vA)}, {V(17)}, 3, {V(vA)}")
    op(f"v_lshrrev_b32 {V(17)}, 5, {V(vL)}")
    op(f"v_lshl_add_u32 {V(vA)}, {V(17)}, 10, {V(vA)}")
w1_tr_addr()
op(f"s_lshl_b32 {S(sT1)}, {S(sW)}, 6")
op(f"v_xor_b32 {V(26)}, {S(sT1)}, {V(vA)}")
op(f"v_add_u32 {V(27)}, 0x10000, {V(26)}")
c0, c1 = 28, 29
op(f"v_mov_b32 {V(c0)}, 0")
op(f"v_mov_b32 {V(c1)}, 0")
vT2a, vT2b = 30, 31
wo_like_addr(vT2a, vT2b, S(sS2L), L_S2)
vWDk = [vWD, 15, 21, 191]
for k in range(2, 4):
    op(f"v_add_u32 {V(vWDk[k])}, {k*(8192-1024)}, {V(vWD)}")
trtok = {}
def w2_round_tr(r):
    o = []
    for s in range(3):
        o += tr_step_ops(lambda k, s=s: A(8*(3*r+s)+k, 2), s, vT2a, vT2b)
    return o
def w2_tr(r):
    trs = w2_round_tr(r)
    def first():
        e.wait_tok(w2tok[r][-1]); e.ops(trs[0:2])
    def last():
        op(trs[10]); trtok[r] = op(trs[11])
    return [first] + [lambda k=k: e.ops(trs[k:k+2]) for k in range(2, 10, 2)] + [last]
def w2_dma(r):
    d = w2_round_dma(r)
    return [lambda: (e.wait_tok(trtok[r-1]), d[0]())] + d[1:]
group_signal(1)
stamp("o_signaled")
def cs_groups(glo, ghi, buf=32):
    for grp in range(glo, ghi + 1):
        if grp < ghi:
            for s in range(4):
                ss = grp*4 + s
                base = 26 if ss < 16 else 27
                for j in range(2):
                    op(f"ds_read_b64_tr_b16 {V(buf+16*(grp%2)+4*s+2*j,2)}, {V(base)} offset:{(ss%16)*4096+j*2048}")
        if grp > glo:
            for k in range(16):
                op(dot_ones(c0 if k % 2 == 0 else c1, buf+16*((grp-1)%2)+k))
for f in w2_tr(0): f()
cs_groups(0, 2)
for f in w2_dma(1): f()
cs_groups(2, 4)
stamp("cs_a")
def mask8():
    op(f"s_and_b32 {S(sT2)}, {S(sM)}, 8")
    op(f"s_lshl_b32 {S(sT2)}, 0xff, {S(sT2)}")
    op(f"s_mov_b32 {S(sT3)}, 0")
group_wait(1, mask8)
stamp("o_ok")

OF, ACC, RT = 32, 96, 160
op(f"s_lshl_b32 {S(sT0)}, {S(sTB)}, 6")
op(f"s_lshl_b32 {S(sT1)}, {S(sW)}, 3")
op(f"s_add_u32 {S(sT0)}, {S(sT0)}, {S(sT1)}")
op(f"s_lshl_b32 {S(sT0)}, {S(sT0)}, 10")
op(f"s_add_u32 {S(sT0)}, {S(sT0)}, {hx(WS_O)}")
def o_load(n):
    t, s = divmod(n, 8)
    if s % 4 == 0:
        op(f"s_add_u32 {S(sT4)}, {S(sT0)}, {t*32768 + s*1024}")
    op(f"buffer_load_dwordx4 {V(OF+4*n,4)}, {V(vL16)}, {S(sWS,4)}, {S(sT4)} offen offset:{(s%4)*1024} sc1")
for n in range(4):
    o_load(n)
fill3 = record(lambda: cs_groups(4, 8, buf=128))
def cf_build():
    op(f"v_add_f32 {V(c0)}, {V(c0)}, {V(c1)}")
    halves_sum(c0, c1)
    split_hi_lo(c0, 128, 129, 17)
    op(f"v_cvt_pk_bf16_f32 {V(129)}, {V(129)}, 0")
    op(f"v_lshl_or_b32 {V(129)}, {V(14)}, 16, {V(129)}")
    op(f"v_mov_b32 {V(130)}, {V(14)}")
    op(f"v_mov_b32 {V(131)}, 0")
    for k in range(4):
        op(f"v_accvgpr_write_b32 {A(224+k)}, {V(128+k)}")
fill3 += record(cf_build)
NP3 = 10
for k in range(6):
    e.ops(spread(fill3, k, 6))
    o_load(4 + k)
for f in w2_tr(1): f()
vRW, vRR = 22, 25
def reduce_addrs(base):
    for q in range(1, 4):
        op(f"s_xor_b32 {S(sT1)}, {S(sW)}, {q}")
        op(f"s_mul_i32 {S(sT1)}, {S(sT1)}, 6144")
        op(f"s_add_u32 {S(sT1)}, {S(sT1)}, {base + (q-1)*2048}")
        op(f"v_add_u32 {V(vRW+q-1)}, {S(sT1)}, {V(vL16)}")
    op(f"s_mul_i32 {S(sT1)}, {S(sW)}, 6144")
    op(f"s_add_u32 {S(sT1)}, {S(sT1)}, {base}")
    op(f"v_add_u32 {V(vRR)}, {S(sT1)}, {V(vL16)}")
def red_write_ops(acc, t, toff):
    o = []
    for q in range(1, 4):
        r = acc + 32*t + 8*q
        o.append(f"ds_write_b128 {V(vRW+q-1)}, {V(r,4)} offset:{toff}")
        o.append(f"ds_write_b128 {V(vRW+q-1)}, {V(r+4,4)} offset:{toff+1024}")
    return o
def red_read_ops(tmp, toff):
    o = []
    for q in range(3):
        o.append(f"ds_read_b128 {V(tmp+8*q,4)}, {V(vRR)} offset:{toff+q*2048}")
        o.append(f"ds_read_b128 {V(tmp+8*q+4,4)}, {V(vRR)} offset:{toff+q*2048+1024}")
    return o
def red_sum_ops(acc, tmp, t, pk):
    r = acc + 32*t
    o = []
    if pk:
        for k in range(4):
            o.append(f"v_pk_add_f32 {V(tmp+2*k,2)}, {V(tmp+2*k,2)}, {V(tmp+8+2*k,2)}")
            o.append(f"v_pk_add_f32 {V(r+2*k,2)}, {V(r+2*k,2)}, {V(tmp+16+2*k,2)}")
        for k in range(4):
            o.append(f"v_pk_add_f32 {V(r+2*k,2)}, {V(r+2*k,2)}, {V(tmp+2*k,2)}")
    else:
        for q in range(3):
            for k in range(8):
                o.append(f"v_add_f32 {V(r+k)}, {V(r+k)}, {V(tmp+8*q+k)}")
    return o
def add_packed_ops(r, pk, tmp, usepk):
    o = []
    for k in range(4):
        o.append(f"v_lshlrev_b32 {V(tmp+2*k)}, 16, {V(pk+k)}")
        o.append(f"v_and_b32 {V(tmp+2*k+1)}, 0xffff0000, {V(pk+k)}")
    if usepk:
        o += [f"v_pk_add_f32 {V(r+2*k,2)}, {V(r+2*k,2)}, {V(tmp+2*k,2)}" for k in range(4)]
    else:
        o += [f"v_add_f32 {V(r+k)}, {V(r+k)}, {V(tmp+k)}" for k in range(8)]
    return o
pre = [f"s_lshl_b32 s4, {S(sTB)}, 6", f"s_lshl_b32 s5, {S(sHQ)}, 2", "s_add_u32 s4, s4, s5", f"s_add_u32 s4, s4, {S(sW)}",
       "s_lshl_b32 s4, s4, 10", f"s_add_u32 s4, s4, {hx(WS_H)}", "s_add_u32 s5, s4, 32768",
       f"s_lshl_b32 {S(sVA)}, {S(sTB)}, 1", f"s_add_u32 {S(sVA)}, {S(sVA)}, {S(sT_)}", f"s_lshl_b32 {S(sVA)}, {S(sVA)}, 11",
       f"s_lshr_b32 {S(sVB)}, {S(sHQ)}, 1", f"s_lshl_b32 {S(sVB)}, {S(sVB)}, 9", f"s_add_u32 {S(sVA)}, {S(sVA)}, {S(sVB)}",
       f"s_and_b32 {S(sVB)}, {S(sHQ)}, 1", f"s_lshl_b32 {S(sVB)}, {S(sVB)}, 3", f"s_add_u32 {S(sVA)}, {S(sVA)}, {S(sVB)}",
       f"s_add_u32 {S(sVA)}, {S(sVA)}, {hx(WS_ST)}"]
pre += record(lambda: reduce_addrs(L_R3))
pre += [f"v_and_b32 {V(26)}, 31, {V(vL)}", f"v_lshlrev_b32 {V(27)}, 3, {V(26)}", f"v_lshlrev_b32 {V(26)}, 4, {V(26)}",
        f"s_lshl_b32 {S(sT1)}, {S(sW)}, 9", f"s_add_u32 {S(sT1)}, {S(sT1)}, {L_SR}", f"v_add_u32 {V(28)}, {S(sT1)}, {V(27)}",
        f"s_lshl_b32 {S(sT1)}, {S(sT_)}, 8", f"s_add_u32 {S(sT1)}, {S(sT1)}, {L_SR}", f"v_add_u32 {V(27)}, {S(sT1)}, {V(27)}"]
rw0 = red_write_ops(ACC, 0, 0)
for n in range(16):
    t, s = divmod(n, 8)
    for u in range(2):
        d = V(ACC+32*t+16*u, 16)
        mfma(d, V(WO+8*s+4*u,4), V(OF+4*n,4), "0" if s == 0 else d)
        if u == 0 and n + NP3 < 16:
            o_load(n + NP3)
        if n < 8:
            e.ops(spread(pre, 2*n+u, 16))
        if n == 8:
            e.ops(add_packed_ops(ACC, vRES, RT, False)[4*u:4*u+4])
        if n == 9 and u == 0:
            e.wait_tok(trtok[1])
            e.barrier()
        if 10 <= n < 13:
            op(rw0[2*(n-10)+u])
        if n == 13 and u == 1:
            e.wait(lg=0)
            e.barrier()
            e.ops(red_read_ops(RT+8, 0))
        if n == 14:
            e.ops([f"v_add_f32 {V(ACC+k)}, {V(ACC+k)}, {V(RT+k)}" for k in range(4*u, 4*u+4)])
        if n == 15:
            e.ops(add_packed_ops(ACC+32, vRES+4, RT, False)[4*u:4*u+4])
e.ops(red_sum_ops(ACC, RT+8, 0, False)[:8])
e.wait(lg=0)
e.barrier()
e.ops(red_write_ops(ACC, 1, 0))
e.ops(red_sum_ops(ACC, RT+8, 0, False)[8:])
for k in range(4):
    op(f"v_cvt_pk_bf16_f32 {V(vRES+k)}, {V(ACC+2*k)}, {V(ACC+2*k+1)}")
for k in range(4):
    op(f"v_pk_add_f32 {V(ACC+32+2*k,2)}, {V(ACC+32+2*k,2)}, {V(RT+2*k,2)}")
e.wait(lg=0)
e.barrier()
stamp("p3_red")
e.ops(red_read_ops(RT+8, 0))
stores_mode(lambda m: op(f"buffer_store_dwordx4 {V(vRES,4)}, {V(vL16)}, {S(sWS,4)}, s4 offen{m}"))
ST3 = 32
for r in range(ST3, ST3+4):
    op(f"v_mov_b32 {V(r)}, 0")
for k in range(4):
    op(dot_ones(ST3, vRES+k))
    op(dot_sq(ST3+1, vRES+k))
e.ops(red_sum_ops(ACC, RT+8, 1, True))
for k in range(4):
    op(f"v_cvt_pk_bf16_f32 {V(vRES+4+k)}, {V(ACC+32+2*k)}, {V(ACC+32+2*k+1)}")
stores_mode(lambda m: op(f"buffer_store_dwordx4 {V(vRES+4,4)}, {V(vL16)}, {S(sWS,4)}, s5 offen{m}"))
for k in range(4):
    op(dot_ones(ST3+2, vRES+4+k))
    op(dot_sq(ST3+3, vRES+4+k))
for k in range(4):
    op(f"v_mov_b32 {V(ST3+4+k)}, {V(ST3+k)}")
op("s_nop 0")
for k in range(4):
    op(f"v_permlane32_swap_b32 {V(ST3+k)}, {V(ST3+4+k)}")
for k in range(4):
    op(f"v_add_f32 {V(ST3+k)}, {V(ST3+k)}, {V(ST3+4+k)}")
op(f"ds_write_b64 {V(28)}, {V(ST3,2)}")
op(f"ds_write_b64 {V(28)}, {V(ST3+2,2)} offset:256")
e.wait(lg=0)
e.barrier()
for k in range(4):
    op(f"ds_read_b64 {V(ST3+8+2*k,2)}, {V(27)} offset:{k*512}")
op(f"s_lshl_b32 {S(sT1)}, {S(sP)}, 13")
op(f"s_lshl_b32 {S(sT2)}, {S(sT_)}, 10")
op(f"s_add_u32 {S(sT1)}, {S(sT1)}, {S(sT2)}")
op(f"s_add_u32 {S(sT1)}, {S(sT1)}, {L_CT}")
op(f"v_add_u32 {V(17)}, {S(sT1)}, {V(vL16)}")
op(f"ds_write_b128 {V(17)}, {A(224,4)}")
op(f"v_pk_add_f32 {V(ST3+8,2)}, {V(ST3+8,2)}, {V(ST3+10,2)}")
op(f"v_pk_add_f32 {V(ST3+12,2)}, {V(ST3+12,2)}, {V(ST3+14,2)}")
op(f"v_pk_add_f32 {V(ST3+8,2)}, {V(ST3+8,2)}, {V(ST3+12,2)}")
op(f"s_mov_b64 exec, {S(sLOW,2)}")
stores_mode(lambda m: op(f"buffer_store_dwordx2 {V(ST3+8,2)}, {V(26)}, {S(sWS,4)}, {S(sVA)} offen{m}"))
op("s_mov_b64 exec, -1")
e.wait(lg=0)
group_signal(2)
stamp("h_signaled")
vWDk = [vWD, 15, 21, 248]
op(f"v_add_u32 {V(vWDk[3])}, {3*(8192-1024)}, {V(vWD)}")
d2 = w2_round_dma(2)
for f in d2: f()
op(f"s_cmp_ge_u32 {S(sM)}, 14")
op("s_cbranch_scc1 L_p4_skip")

w1_tr_addr()
for nb in range(1, 4):
    op(f"v_xor_b32 {V(vA+nb)}, {nb << 6}, {V(vA)}")
HB, GA, RING4 = 32, 160, 224
STV = 208
op(f"s_lshl_b32 s4, {S(sG)}, 2")
op(f"s_add_u32 s4, s4, {S(sW)}")
op(f"s_lshl_b32 s5, s4, 11")
op(f"s_add_u32 s5, s5, {hx(WS_ST)}")
op(f"s_mul_i32 {S(sVB)}, s4, 112")
op(f"s_lshl_b32 s4, s4, 15")
op(f"s_add_u32 {S(sVA)}, s4, {hx(WS_H)}")
sG0, sG1 = 49, 58
op(f"s_lshl_b32 {S(sT1)}, {S(sM)}, 3")
op(f"s_add_u32 {S(sG0)}, {S(sG0)}, {S(sT1)}")
op(f"s_lshl_b32 {S(sG0)}, {S(sG0)}, 10")
op(f"s_add_u32 {S(sG0)}, {S(sG0)}, {hx(WS_G)}")
op(f"s_add_u32 {S(sG1)}, {S(sG0)}, 4096")
vCT = 14
op(f"v_add_u32 {V(vCT)}, {L_CT}, {V(vL16)}")
SF4, vKK, vSG, TP = 244, 18, 26, 252
NS, LA = 5, 4
def mask16():
    op(f"s_mov_b32 {S(sT2)}, 0xffff")
    op(f"s_mov_b32 {S(sT3)}, 0")
seq = []
for s in range(32):
    seq += [(0, s), (1, s)]
NB0 = 12
seq += [(2, s) for s in range(NB0)] + [(0, 'r'), (1, 'r')] + [(2, s) for s in range(NB0, 32)] + [(2, 'r')]
seq += [(3, s) for s in range(32)] + [(3, 'r')]
hi_state = {nb: False for nb in range(4)}
def frag_read(n):
    nb, s = seq[n]
    d = RING4 + 4*(n % NS)
    if s == 'r':
        op(f"ds_read_b128 {V(d,4)}, {V(vCT)} offset:{ct_off(nb)}")
        return
    if s >= 16 and not hi_state[nb]:
        op(f"v_add_u32 {V(vA+nb)}, 0x10000, {V(vA+nb)}")
        hi_state[nb] = True
    op(f"ds_read_b64_tr_b16 {V(d,2)}, {V(vA+nb)} offset:{(s%16)*4096}")
    op(f"ds_read_b64_tr_b16 {V(d+2,2)}, {V(vA+nb)} offset:{(s%16)*4096+2048}")
for n in range(LA):
    frag_read(n)
group_wait(2, mask16)
stamp("h_ok")
def epoch_bump():
    D = e.fresh("nobump")
    op(f"s_cmp_lg_u32 {S(sM)}, 0")
    op(f"s_cbranch_scc1 {D}")
    op(f"s_add_u32 {S(sT1)}, {S(sELO)}, 1")
    op(f"v_mov_b32 {V(18)}, {S(sT1)}")
    op(f"s_lshl_b32 {S(sT1)}, {S(sG)}, 3")
    op(f"v_mov_b32 {V(17)}, 0")
    op("s_mov_b64 exec, 1")
    op(f"buffer_store_dword {V(18)}, {V(17)}, {S(sWS,4)}, {S(sT1)} offen offset:{WS_E} sc1")
    op("s_mov_b64 exec, -1")
    e.label(D)
def h_load(n):
    if n < 32:
        if n % 4 == 0:
            op(f"s_add_u32 s4, {S(sVA)}, {n*1024}")
        op(f"buffer_load_dwordx4 {V(HB+4*n,4)}, {V(vL16)}, {S(sWS,4)}, s4 offen offset:{(n%4)*1024} sc1")
    else:
        k = n - 32
        op(f"buffer_load_dwordx4 {V(STV+4*k,4)}, {V(vL16)}, {S(sWS,4)}, s5 offen offset:{k*1024} sc1")
NPRE = 9
for n in range(NPRE):
    h_load(n)
    if n == 3:
        wave0(epoch_bump)
    if n >= 4:
        pass
for f in w2_tr(2): f()
def frag_mfma(n):
    nb, s = seq[n]
    d = V(GA+16*nb, 16)
    b = V(SF4,4) if s == 'r' else V(HB+4*s,4)
    mfma(d, V(RING4+4*(n % NS),4), b, "0" if s == 0 else d)
def gelu_plain(nb, i):
    a0 = GA + 16*nb; a = a0 + 2*i; T = TP
    o = [f"v_mul_f32 {V(T+k)}, {V(a+k)}, {V(a+k)}" for k in range(2)]
    o += [f"v_fma_f32 {V(T+k)}, {V(T+k)}, {V(vKK+1)}, {V(vKK)}" for k in range(2)]
    o += [f"v_mul_f32 {V(T+k)}, {V(T+k)}, {V(a+k)}" for k in range(2)]
    o += [f"v_exp_f32 {V(T+k)}, {V(T+k)}" for k in range(2)]
    o += [f"v_fma_f32 {V(T+k)}, {V(T+k)}, {V(vSG)}, {V(vSG)}" for k in range(2)]
    o += [f"v_rcp_f32 {V(T+k)}, {V(T+k)}" for k in range(2)]
    o += [f"v_mul_f32 {V(T+k)}, {V(T+k)}, {V(a+k)}" for k in range(2)]
    o.append(f"v_cvt_pk_bf16_f32 {V(a0+i)}, {V(T)}, {V(T+1)}")
    return o
def gelu_pk(items):
    o = []
    for x in range(0, len(items), 2):
        prs = [(GA+16*nb+2*i, TP+2*k, GA+16*nb+i) for k, (nb, i) in enumerate(items[x:x+2])]
        for a, T, d in prs: o.append(f"v_pk_mul_f32 {V(T,2)}, {V(a,2)}, {V(a,2)}")
        for a, T, d in prs: o.append(f"v_pk_fma_f32 {V(T,2)}, {V(T,2)}, {V(vKK,2)}, {V(vKK,2)} op_sel:[0,1,0] op_sel_hi:[1,1,0]")
        for a, T, d in prs: o.append(f"v_pk_mul_f32 {V(T,2)}, {V(T,2)}, {V(a,2)}")
        for a, T, d in prs: o += [f"v_exp_f32 {V(T)}, {V(T)}", f"v_exp_f32 {V(T+1)}, {V(T+1)}"]
        for a, T, d in prs: o.append(f"v_pk_fma_f32 {V(T,2)}, {V(T,2)}, {V(vSG,2)}, {V(vSG,2)} op_sel_hi:[1,0,0]")
        for a, T, d in prs: o += [f"v_rcp_f32 {V(T)}, {V(T)}", f"v_rcp_f32 {V(T+1)}, {V(T+1)}"]
        for a, T, d in prs: o.append(f"v_pk_mul_f32 {V(T,2)}, {V(T,2)}, {V(a,2)}")
        for a, T, d in prs: o.append(f"v_cvt_pk_bf16_f32 {V(d)}, {V(T)}, {V(T+1)}")
    return o
def g_store(nbs):
    def st(m):
        for nb in nbs:
            so = S(sG0) if nb < 2 else S(sG1)
            op(f"buffer_store_dwordx4 {V(GA+16*nb,4)}, {V(vL16)}, {S(sWS,4)}, {so} offen offset:{(nb%2)*2048}{m}")
            op(f"buffer_store_dwordx4 {V(GA+16*nb+4,4)}, {V(vL16)}, {S(sWS,4)}, {so} offen offset:{(nb%2)*2048+1024}{m}")
    stores_mode(st)
C1 = -2.0 * math.log2(math.e) * math.sqrt(2.0/math.pi)
def stats4_ops():
    s0, q0, t0, t1 = TP, TP+1, TP+2, TP+3
    t2, t3 = 17, 27
    o = [f"v_add_f32 {V(s0)}, {V(STV)}, {V(STV+2)}", f"v_add_f32 {V(q0)}, {V(STV+1)}, {V(STV+3)}",
         f"v_add_f32 {V(t0)}, {V(STV+4)}, {V(STV+6)}", f"v_add_f32 {V(t1)}, {V(STV+5)}, {V(STV+7)}",
         f"v_add_f32 {V(s0)}, {V(s0)}, {V(t0)}", f"v_add_f32 {V(q0)}, {V(q0)}, {V(t1)}"]
    o += [f"v_mov_b32 {V(t0)}, {V(s0)}", f"v_mov_b32 {V(t1)}, {V(q0)}", f"v_mov_b32 {V(SF4+3)}, 0",
          f"v_permlane32_swap_b32 {V(s0)}, {V(t0)}", f"v_permlane32_swap_b32 {V(q0)}, {V(t1)}",
          f"v_add_f32 {V(s0)}, {V(s0)}, {V(t0)}", f"v_add_f32 {V(q0)}, {V(q0)}, {V(t1)}",
          f"v_mul_f32 {V(s0)}, {hx(f2u(-1.0/512))}, {V(s0)}",
          f"v_mul_f32 {V(q0)}, {hx(f2u(1.0/512))}, {V(q0)}",
          f"v_fma_f32 {V(q0)}, -{V(s0)}, {V(s0)}, {V(q0)}",
          f"v_max_f32 {V(q0)}, 0, {V(q0)}",
          f"v_add_f32 {V(t0)}, {hx(f2u(1e-5))}, {V(q0)}",
          f"v_rsq_f32 {V(t1)}, {V(t0)}",
          f"v_cvt_pk_bf16_f32 {V(t2)}, {V(s0)}, {V(s0)}",
          f"v_mul_f32 {V(q0)}, {V(q0)}, {V(t1)}",
          f"v_mul_f32 {V(q0)}, {V(q0)}, {V(t1)}",
          f"v_add_f32 {V(q0)}, {hx(f2u(1e-5))}, {V(q0)}",
          f"v_rsq_f32 {V(t3)}, {V(q0)}",
          f"v_mul_f32 {V(t0)}, {V(t0)}, {V(t1)}",
          f"v_and_b32 {V(t2)}, 0xffff0000, {V(t2)}",
          f"v_mul_f32 {V(t1)}, {V(t1)}, {V(t3)}",
          f"v_mul_f32 {V(q0)}, {V(q0)}, {V(t3)}",
          f"v_mul_f32 {V(vSG)}, {V(q0)}, {V(t0)}",
          f"v_sub_f32 {V(t2)}, {V(s0)}, {V(t2)}",
          f"v_cvt_pk_bf16_f32 {V(SF4)}, {V(s0)}, {V(t2)}",
          f"v_cvt_pk_bf16_f32 {V(SF4+1)}, {V(s0)}, {V(vSG)}",
          f"v_and_b32 {V(t2)}, 0xffff0000, {V(SF4+1)}",
          f"v_sub_f32 {V(t2)}, {V(vSG)}, {V(t2)}",
          f"v_cvt_pk_bf16_f32 {V(SF4+2)}, {V(t2)}, 0"]
    o += [f"v_cndmask_b32 {V(SF4+k)}, 0, {V(SF4+k)}, {S(sLOW,2)}" for k in range(3)]
    o += [f"v_mul_f32 {V(vKK)}, {hx(f2u(C1))}, {V(t1)}",
          f"v_mul_f32 {V(t0)}, {V(t1)}, {V(t1)}",
          f"v_mul_f32 {V(t0)}, {hx(f2u(0.044715))}, {V(t0)}",
          f"v_mul_f32 {V(vKK+1)}, {V(vKK)}, {V(t0)}"]
    return o
iA = 64
iR0 = seq.index((0, 'r')); iB0 = seq.index((1, 'r')) + 1
iC0 = seq.index((2, 'r')) + 1
NPL_B, NPL_C = 2, 3
st4 = stats4_ops()
fillB = [x for i in range(NPL_B) for x in gelu_plain(0, i)]
fillC = [x for i in range(NPL_C) for x in gelu_plain(2, i)]
sched = {}
def at(n, acts, step=1):
    for k, f in enumerate(acts):
        sched.setdefault(n + k*step, []).append(f)
at(iA - 8, w2_dma(3))
for k in range(8):
    sched.setdefault(iA + 3 + k, []).append(lambda k=k: e.ops(spread(st4, k, 8)))
at(iB0 + 1, w2_tr(3))
at(iB0 + 10, w2_dma(4))
nB = iC0 - (iB0 + 3)
for k in range(nB):
    sched.setdefault(iB0 + 3 + k, []).append(lambda k=k: e.ops(spread(fillB, k, nB)))
at(iC0 + 12, w2_tr(5))
at(iC0 + 22, w2_dma(6))
nC = len(seq) - (iC0 + 2)
for k in range(nC):
    sched.setdefault(iC0 + 2 + k, []).append(lambda k=k: e.ops(spread(fillC, k, nC)))
def weave(ops_, acts, first, step):
    k = 0
    for i, x in enumerate(ops_):
        if i >= first and (i - first) % step == 0 and k < len(acts):
            acts[k](); k += 1
        op(x)
    for f in acts[k:]:
        f()
for n in range(len(seq)):
    if n == iC0:
        stamp("p4_Bm")
        e.ops(gelu_pk([(0, i) for i in range(NPL_B, 8)]))
        g_store((0,))
        weave(gelu_pk([(1, i) for i in range(8)]), w2_tr(4) + w2_dma(5), 16, 8)
        g_store((1,))
        stamp("p4_B")
    if n + LA < len(seq):
        frag_read(n + LA)
    frag_mfma(n)
    nb, s = seq[n]
    if n < iA and nb == 0 and s + NPRE < 34:
        h_load(s + NPRE)
    for f in sched.get(n, []):
        f()
    if n == iA - 1:
        stamp("p4_passA")
stamp("p4_mfma")
e.ops(gelu_pk([(2, i) for i in range(NPL_C, 8)]))
g_store((2,))
e.ops(gelu_pk([(3, i) for i in range(8)]))
g_store((3,))
e.wait(lg=0)
group_signal(3)
stamp("g_signaled")
op("s_branch L_p5")
e.label("L_p4_skip")
for r in range(2, 6):
    for f in w2_tr(r): f()
    for f in w2_dma(r+1): f()
e.barrier()
e.label("L_p5")

op(f"s_lshl_b32 {S(sT4)}, {S(sW)}, 14")
def stage_rest():
    D = e.fresh("nostage")
    op(f"s_cmp_eq_u32 {S(sW)}, 0")
    op(f"s_cbranch_scc1 {D}")
    for a in stage_acts(sW2, S(sT4), 0, S(sS2R), 42*8192, 14, []):
        a()
    op(f"s_mul_i32 {S(sT0)}, {S(sW)}, 5120")
    op(f"s_sub_u32 {S(sT0)}, {S(sT0)}, 5120")
    op(f"s_lshl_b32 {S(sT1)}, {S(sT0)}, 3")
    for a in stage_acts(sW2, S(sT0), 0, S(sT1), 42*8192, 5, []):
        a()
    e.label(D)
stage_rest()
wo_like_addr(26, 27, S(sT4), 0)
L_R5, L_OT = 65536, 114688
reduce_addrs(L_R5)
GB, NG, RT5, ACC5 = 32, 34, 168, 192
op(f"s_mul_i32 s4, {S(sTB)}, 224")
op(f"s_mul_i32 s5, {S(sW)}, 28")
op(f"s_add_u32 s4, s4, s5")
op(f"s_lshl_b32 s4, s4, 10")
op(f"s_add_u32 s4, s4, {hx(WS_G)}")
stamp("w2_issued")
def mask14():
    op(f"s_mov_b32 {S(sT2)}, 0x3fff")
    op(f"s_mov_b32 {S(sT3)}, 0")
group_wait(3, mask14)
stamp("g_ok")
def g_load(n):
    t, s = divmod(n, 28)
    if s % 4 == 0:
        op(f"s_add_u32 s5, s4, {(t*112+s)*1024}")
    return op(f"buffer_load_dwordx4 {V(GB+4*(n%NG),4)}, {V(vL16)}, {S(sWS,4)}, s5 offen offset:{(s%4)*1024} sc1")
NPRE5 = 12
for n in range(NPRE5):
    g_load(n)
rw = red_write_ops(ACC5, 0, 0)
fin0 = red_sum_ops(ACC5, RT5, 0, False) + add_packed_ops(ACC5, vRES, RT5, False) + add_packed_ops(ACC5, vB2, RT5, False) + \
       [f"v_cvt_pk_bf16_f32 {V(vRES+k)}, {V(ACC5+2*k)}, {V(ACC5+2*k+1)}" for k in range(4)]
otw = [f"v_and_b32 {V(17)}, 31, {V(vL)}", f"v_mul_u32_u24 {V(17)}, 144, {V(17)}", f"v_lshrrev_b32 {V(18)}, 5, {V(vL)}",
       f"v_lshl_add_u32 {V(17)}, {V(18)}, 3, {V(17)}", f"s_lshl_b32 {S(sT1)}, {S(sW)}, 5", f"s_add_u32 {S(sT1)}, {S(sT1)}, {L_OT}",
       f"v_add_u32 {V(17)}, {S(sT1)}, {V(17)}",
       f"v_lshrrev_b32 {V(18)}, 3, {V(vL)}", f"v_and_b32 {V(19)}, 7, {V(vL)}", f"v_lshlrev_b32 {V(19)}, 4, {V(19)}",
       f"v_lshl_add_u32 {V(20)}, {V(18)}, 10, {V(19)}", f"v_mul_u32_u24 {V(18)}, 144, {V(18)}", f"v_add_u32 {V(18)}, {V(18)}, {V(19)}",
       f"s_mul_i32 {S(sT1)}, {S(sW)}, {16*144}", f"s_add_u32 {S(sT1)}, {S(sT1)}, {L_OT}", f"v_add_u32 {V(18)}, {S(sT1)}, {V(18)}",
       f"s_lshl_b32 {S(sT0)}, {S(sTB)}, 16", f"s_lshl_b32 {S(sT1)}, {S(sW)}, 14", f"s_add_u32 {S(sT0)}, {S(sT0)}, {S(sT1)}",
       f"s_lshl_b32 {S(sT1)}, {S(sHQ)}, 7", f"s_add_u32 {S(sT0)}, {S(sT0)}, {S(sT1)}", f"s_add_u32 {S(sT1)}, {S(sT0)}, 8192"]
tr6 = w2_round_tr(6)
for n in range(56):
    t, s = divmod(n, 28)
    for u in range(2):
        d = V(ACC5+32*t+16*u, 16)
        mfma(d, A(8*s+4*u,4), V(GB+4*(n%NG),4), "0" if s == 0 else d)
        if u == 0 and n + NPRE5 < 56:
            g_load(n + NPRE5)
        if n < 3:
            e.ops(tr6[4*n+2*u:4*n+2*u+2])
        if n == 3 and u == 1:
            e.barrier()
        if 4 <= n < 11:
            sl = n - 4
            e.ops(tr_step_ops(lambda k, sl=sl: A(8*(21+sl)+k, 2), sl, 26, 27)[2*u:2*u+2])
        if 34 <= n < 37:
            op(rw[2*(n-34)+u])
        if n == 41 and u == 1:
            e.wait(lg=0)
            e.barrier()
            e.ops(red_read_ops(RT5, 0))
        if 44 <= n < 52:
            e.ops(spread(fin0, 2*(n-44)+u, 16))
        if 28 <= n < 34:
            e.ops(spread(otw, 2*(n-28)+u, 12))
        if n == 52 and u == 0:
            op(f"ds_write_b64 {V(17)}, {V(vRES,2)}")
            op(f"ds_write_b64 {V(17)}, {V(vRES+2,2)} offset:16")
        if n == 54:
            e.ops(add_packed_ops(ACC5+32, vRES+4, RT5, False)[4*u:4*u+4])
        if n == 55:
            e.ops(add_packed_ops(ACC5+32, vB2, RT5+8, False)[4*u:4*u+4])
stamp("p5_mfma")
e.ops(red_write_ops(ACC5, 1, 24576))
for k in range(4):
    op(f"v_pk_add_f32 {V(RT5+2*k,2)}, {V(RT5+2*k,2)}, {V(RT5+8+2*k,2)}")
for k in range(4):
    op(f"v_pk_add_f32 {V(ACC5+32+2*k,2)}, {V(ACC5+32+2*k,2)}, {V(RT5+2*k,2)}")
e.wait(lg=0)
e.barrier()
e.ops(red_read_ops(RT5, 24576))
e.ops(red_sum_ops(ACC5, RT5, 1, True))
for k in range(4):
    op(f"v_cvt_pk_bf16_f32 {V(vRES+4+k)}, {V(ACC5+32+2*k)}, {V(ACC5+32+2*k+1)}")
op(f"ds_write_b64 {V(17)}, {V(vRES+4,2)} offset:{32*144}")
op(f"ds_write_b64 {V(17)}, {V(vRES+6,2)} offset:{32*144+16}")
e.wait(lg=0)
e.barrier()
op(f"ds_read_b128 {V(32,4)}, {V(18)}")
op(f"ds_read_b128 {V(36,4)}, {V(18)} offset:{8*144}")
op(f"buffer_store_dwordx4 {V(32,4)}, {V(20)}, {S(sOUT,4)}, {S(sT0)} offen")
op(f"buffer_store_dwordx4 {V(36,4)}, {V(20)}, {S(sOUT,4)}, {S(sT1)} offen")
if PROF:
    e.wait(vm=0)
    stamp("end")
    op(f"s_memtime {S(sPA,2)}")
    e.wait(lg=0)
    op(f"v_writelane_b32 {V(vST)}, {S(sPA)}, 61")
    op(f"s_lshl_b32 {S(sT0)}, {S(sG)}, 4")
    op(f"s_add_u32 {S(sT0)}, {S(sT0)}, {S(sM)}")
    op(f"s_lshl_b32 {S(sT0)}, {S(sT0)}, 2")
    op(f"s_add_u32 {S(sT0)}, {S(sT0)}, {S(sW)}")
    op(f"s_lshl_b32 {S(sT0)}, {S(sT0)}, 8")
    op(f"s_add_u32 {S(sT0)}, {S(sT0)}, {hx(WS_PROF)}")
    op(f"v_writelane_b32 {V(vST)}, {S(sFAST)}, 62")
    op(f"v_writelane_b32 {V(vST)}, {S(sXCC)}, 63")
    op(f"v_lshlrev_b32 {V(17)}, 2, {V(vL)}")
    op(f"buffer_store_dword {V(vST)}, {V(17)}, {S(sWS,4)}, {S(sT0)} offen")
e.label("L_end")
op("s_endpgm")

hdr = open("cdna_kernels/" + NAME + ".s.ref").read().split("; Override launch")[0]
txt = hdr
txt += "; One persistent launch: 256 workgroups (one per CU), five phases handed over through d_ws.\n"
txt += f"; @launch grid=(256,1,1) block=(256,1,1) lds={LDS_BYTES}\n"
txt += f""".amdgcn_target "amdgcn-amd-amdhsa--gfx950"
.text
.globl {KERNEL}
.p2align 8
.type {KERNEL},@function
{KERNEL}:
"""
txt += e.text()
txt += f"""L_code_end:
.section .rodata,"a"
.p2align 6
.amdhsa_kernel {KERNEL}
  .amdhsa_next_free_vgpr 512
  .amdhsa_next_free_sgpr 102
  .amdhsa_accum_offset 256
  .amdhsa_group_segment_fixed_size 0
  .amdhsa_kernarg_size 88
  .amdhsa_user_sgpr_count 2
  .amdhsa_user_sgpr_kernarg_segment_ptr 1
  .amdhsa_system_sgpr_workgroup_id_x 1
  .amdhsa_float_denorm_mode_32 3
.end_amdhsa_kernel
"""
out = [a for a in sys.argv[1:] if not a.startswith("--")]
open(out[0] if out else "out.s", "w").write(txt)
print("instructions", e.n_ins, "nops", e.n_nop, file=sys.stderr)
if PROF:
    open("stamps.txt", "w").write("\n".join(stamp_names) + "\n")
```

```python
import sys, math, struct
from emit import Emitter, V, A, S, interleave

NAME = "sequential_preLN__sliding_block__mixer_channel_mlp__prompt"
PROF = "--prof" in sys.argv
SLOW = "--slow" in sys.argv
CYC = "--cyc" in sys.argv
TLBW = "--notlb" not in sys.argv
PFL2 = "--pfw2" in sys.argv
SCOUT = "--noscout" not in sys.argv
PFW1 = "--pfw1" in sys.argv

def f2u(x):
    return struct.unpack("<I", struct.pack("<f", x))[0]
def hx(x):
    return f"0x{x & 0xffffffff:x}"

WS_E, WS_CEN, WS_GF, WS_HALO = 0x0, 0x400, 0x1000, 0x2000
WS_K, WS_V, WS_O, WS_H, WS_G = 0x10000, 0x210000, 0x410000, 0x610000, 0x810000
WS_ST = 0xF20000
WS_PROF = 0xFB0000
WS_SIZE = 0x1000000
L_X, L_RING, L_MISC = 0, 65536, 147456
L_EX = L_RING + 2 * 16384
L_QX = L_RING + 3 * 16384 + 4096
L_CQ = L_RING + 3 * 16384
L_R3 = 131072
L_CT = 131072 + 6144
L_SR = 161792
ct_off = lambda nb: (nb >> 1) * 8192 + (nb & 1) * 1024
L_WOS = 131072
L_S2 = 131072
LDS_BYTES = 163840
sX, sWQ, sWO, sW1, sW2, sWS, sOUT, sB1, sB2 = 8, 12, 16, 20, 24, 28, 32, 36, 40
sDBG = 6
sW, sG, sM, sTB, sHQ, sXCC, sBASE, sTHI, sFAST, sELO = range(44, 54)
sT0, sT1, sT2, sT3, sT4, sT5 = range(54, 60)
sWOFF, sP, sT_ = 60, 61, 62
sONES = 63
sCM = 64
sCW, sCX = 64, 72
sLOW = 96
sM16 = 98
sPA, sPB = 100, 4
vL, vL16, vRES, vB2, vST, vTLO, vTHI = 0, 1, 2, 10, 16, 14, 15

e = Emitter()
op = e.op
stamp_n = [0]
stamp_names = []

def stamp(name, pair=None):
    if not PROF:
        return
    pair = sPA if pair is None else pair
    i = stamp_n[0]; stamp_n[0] += 1
    stamp_names.append(name)
    op(f"{'s_memtime' if CYC else 's_memrealtime'} {S(pair,2)}")
    e.wait(lg=0)
    op(f"v_writelane_b32 {V(vST)}, {S(pair)}, {i}")

def srd(dst, src, size):
    op(f"s_mov_b32 {S(dst)}, {S(src)}")
    op(f"s_and_b32 {S(dst+1)}, {S(src+1)}, 0xffff")
    op(f"s_mov_b32 {S(dst+2)}, {hx(size)}")
    op(f"s_mov_b32 {S(dst+3)}, 0x20000")

def dma(voff, srdreg, soff, imm=0, mods=""):
    o = f" offset:{imm}" if imm else ""
    return op(f"buffer_load_dwordx4 {V(voff)}, {S(srdreg,4)}, {soff} offen{o}{mods} lds")

def mfma(d, a, b, c):
    op(f"v_mfma_f32_32x32x16_bf16 {d}, {a}, {b}, {c}")

def halves_sum(r, tmp):
    op(f"v_mov_b32 {V(tmp)}, {V(r)}")
    op(f"v_permlane32_swap_b32 {V(r)}, {V(tmp)}")
    op(f"v_add_f32 {V(r)}, {V(r)}, {V(tmp)}")

def split_hi_lo(val, hi_pk, lo, tmp):
    op(f"v_cvt_pk_bf16_f32 {V(hi_pk)}, {V(val)}, {V(val)}")
    op(f"v_and_b32 {V(tmp)}, 0xffff0000, {V(hi_pk)}")
    op(f"v_sub_f32 {V(lo)}, {V(val)}, {V(tmp)}")

def poll(voff, soff, need_mask, lo_expect, span, tlo, thi, code):
    L = e.fresh("poll"); D = e.fresh("polldone"); T = e.fresh("pollto")
    op(f"s_mov_b32 {S(sT5)}, 0x40000")
    e.wait(vm=0, lg=0)
    e.loop_label(L)
    op(f"buffer_load_dwordx2 {V(tlo,2)}, {V(voff)}, {S(sWS,4)}, {soff} offen sc1")
    e.wait(vm=0)
    op(f"v_subrev_u32 {V(tlo)}, {lo_expect}, {V(tlo)}")
    op(f"v_cmp_eq_u32 vcc, {thi}, {V(tlo+1)}")
    op(f"v_cmp_gt_u32 {S(sPA,2)}, {span}, {V(tlo)}")
    op(f"s_and_b64 vcc, vcc, {S(sPA,2)}")
    op(f"s_andn2_b64 {S(sPA,2)}, {need_mask}, vcc")
    op(f"s_cbranch_scc0 {D}")
    op(f"s_sub_u32 {S(sT5)}, {S(sT5)}, 1")
    op(f"s_cbranch_scc1 {T}")
    op(f"s_branch {L}")
    e.label(T)
    op(f"v_mov_b32 {V(tlo)}, {code}")
    op(f"v_mov_b32 {V(tlo+1)}, 0")
    op(f"global_store_dword {V(tlo+1)}, {V(tlo)}, {S(sDBG,2)}")
    e.wait(vm=0)
    e.label(D)

WT = (sys.argv[sys.argv.index("--wt")+1] if "--wt" in sys.argv else "")
def stores_mode(fn, cls="f"):
    if cls in WT:
        fn(" sc1")
        return
    F = e.fresh("fast"); D = e.fresh("stdone")
    op(f"s_cmp_eq_u32 {S(sFAST)}, 1")
    op(f"s_cbranch_scc1 {F}")
    fn(" sc1")
    op(f"s_branch {D}")
    e.label(F)
    fn("")
    e.label(D)

def wave0(fn):
    D = e.fresh("w0")
    op(f"s_cmp_lg_u32 {S(sW)}, 0")
    op(f"s_cbranch_scc1 {D}")
    fn()
    e.label(D)

def group_signal(phase):
    e.wait(vm=0)
    e.barrier()
    def f():
        op(f"s_add_u32 {S(sT0)}, {S(sBASE)}, {8+phase}")
        op(f"v_mov_b32 {V(18)}, {S(sT0)}")
        op(f"v_mov_b32 {V(19)}, {S(sTHI)}")
        op(f"s_lshl_b32 {S(sT1)}, {S(sG)}, 7")
        op(f"s_lshl_b32 {S(sT2)}, {S(sM)}, 3")
        op(f"s_add_u32 {S(sT1)}, {S(sT1)}, {S(sT2)}")
        op(f"s_add_u32 {S(sT1)}, {S(sT1)}, {hx(WS_GF)}")
        op(f"v_mov_b32 {V(17)}, 0")
        op("s_mov_b64 exec, 1")
        stores_mode(lambda m: op(f"buffer_store_dwordx2 {V(18,2)}, {V(17)}, {S(sWS,4)}, {S(sT1)} offen{m}"))
        op("s_mov_b64 exec, -1")
    wave0(f)

def group_wait(phase, mask_fn):
    def f():
        mask_fn()
        op(f"v_and_b32 {V(17)}, 15, {V(vL)}")
        op(f"v_lshlrev_b32 {V(17)}, 3, {V(17)}")
        op(f"s_lshl_b32 {S(sT1)}, {S(sG)}, 7")
        op(f"s_add_u32 {S(sT1)}, {S(sT1)}, {hx(WS_GF)}")
        op(f"s_add_u32 {S(sT0)}, {S(sBASE)}, {8+phase}")
        poll(17, S(sT1), S(sT2,2), S(sT0), 4-phase, 18, S(sTHI), 0x100+phase)
    wave0(f)
    e.barrier()

from collections import deque
sBG = 3
bg = deque()
def tick(n=1):
    for _ in range(n):
        if bg:
            bg.popleft()()
def drain():
    while bg:
        bg.popleft()()

KERNEL = NAME + "_kernel"
op("s_cmp_ge_u32 s2, 0x100")
op("s_cbranch_scc1 L_end")
op("s_load_dwordx16 s[44:59], s[0:1], 0")
op("s_load_dwordx4 s[60:63], s[0:1], 64")
op("s_load_dwordx2 s[4:5], s[0:1], 80")
op("s_getpc_b64 s[92:93]")
e.label("L_pc")
op("v_and_b32 v17, 15, v0")
op("v_lshrrev_b32 v18, 6, v0")
op("v_lshl_add_u32 v17, v18, 4, v17")
op("s_lshr_b32 s97, s2, 3")
op("s_lshl_b32 s96, s97, 4")
op("v_and_b32 v19, 3, v0")
op("v_lshl_add_u32 v19, v18, 2, v19")
op("v_add_u32 v19, s96, v19")
op("v_add_u32 v19, 64, v19")
op("v_and_b32 v18, 16, v0")
op("v_cmp_eq_u32 vcc, 0, v18")
op(f"s_sub_u32 s92, s92, L_pc-{KERNEL}")
op("s_subb_u32 s93, s93, 0")
op("v_cndmask_b32 v17, v19, v17, vcc")
op("v_lshlrev_b32 v17, 7, v17")
op(f"v_min_u32 v17, L_code_end-{KERNEL}-4, v17")
op("s_mov_b64 exec, 0xfffff")
op("global_load_dword v242, v17, s[92:93]")
op("s_mov_b64 exec, -1")
vXD0, vXD1, vWD0, vWD1 = 192, 193, 194, 195
vXR = 196
vWRe, vWRo, vWReH, vWRoH = 200, 201, 202, 203
vWD = 20
op(f"v_lshrrev_b32 {V(17)}, 6, v0")
op(f"v_and_b32 {V(vL)}, 63, v0")
op(f"v_readfirstlane_b32 s3, {V(17)}")
op(f"v_lshlrev_b32 {V(vL16)}, 4, {V(vL)}")
if PROF:
    op(f"v_mov_b32 {V(vST)}, 0")
op(f"v_lshrrev_b32 {V(17)}, 3, {V(vL)}")
op(f"v_lshrrev_b32 {V(18)}, 4, {V(vL)}")
op(f"v_and_b32 {V(19)}, 7, {V(vL)}")
op(f"v_xor_b32 {V(vXD0)}, {V(19)}, {V(18)}")
op(f"v_lshlrev_b32 {V(vXD0)}, 4, {V(vXD0)}")
op(f"v_lshl_add_u32 {V(vXD0)}, {V(17)}, 10, {V(vXD0)}")
op(f"v_and_b32 {V(18)}, 1, {V(18)}")
op(f"v_lshlrev_b32 {V(18)}, 2, {V(18)}")
op(f"v_xor_b32 {V(19)}, {V(19)}, {V(18)}")
op(f"v_lshlrev_b32 {V(19)}, 4, {V(19)}")
op(f"v_mul_u32_u24 {V(vWD0)}, 3072, {V(17)}")
op(f"v_add_u32 {V(vWD0)}, {V(vWD0)}, {V(19)}")
op(f"v_lshl_add_u32 {V(vWD)}, {V(17)}, 10, {V(19)}")
op("s_lshr_b32 s97, s2, 3")
op("s_and_b32 s96, s2, 7")
op("s_lshl_b32 s96, s96, 1")
op("s_lshr_b32 s98, s97, 4")
op("s_add_u32 s96, s96, s98")
op("s_and_b32 s98, s97, 15")
op("s_lshr_b32 s99, s98, 3")
op("s_lshl_b32 s100, s96, 1")
op("s_add_u32 s99, s99, s100")
op("s_and_b32 s100, s98, 7")
op("s_and_b32 s101, s99, 3")
op("s_lshl_b32 s101, s101, 1")
op("s_add_u32 s101, s101, s100")
op("s_lshl_b32 s64, s99, 16")
op("s_lshl_b32 s65, s3, 14")
op("s_add_u32 s64, s64, s65")
op(f"v_add_u32 {V(vXD0)}, s64, {V(vXD0)}")
op(f"v_xor_b32 {V(vXD1)}, 64, {V(vXD0)}")
op(f"v_add_u32 {V(vXD1)}, {8192-1024}, {V(vXD1)}")
op(f"s_mul_i32 s64, s3, {16*3072}")
op("s_lshl_b32 s65, s100, 7")
op("s_add_u32 s64, s64, s65")
op(f"v_add_u32 {V(vWD0)}, s64, {V(vWD0)}")
op(f"v_add_u32 {V(vWD1)}, {8*3072-1024}, {V(vWD0)}")
op(f"v_add_u32 {V(vWD)}, s65, {V(vWD)}")
def chunk_offs(i):
    op(f"s_add_u32 s2, s101, {i}")
    op("s_and_b32 s2, s2, 7")
    op(f"s_lshl_b32 {S(sCX+i)}, s2, 7")
    op(f"s_mul_i32 {S(sCW+i)}, s2, {64*3072}")
for i in range(8):
    chunk_offs(i)
e.wait(lg=0)
stamp("t0", 88)
op("s_mov_b32 s0, s3")
srd(sX, 44, 2048*1024)
srd(sWQ, 46, 512*3072)
op(f"s_lshl_b32 s1, s0, 11")

xtok, itok = {}, {}
def x_acts(i, woff):
    def a0():
        op(f"s_add_u32 m0, {woff}, {L_X + i*8192}")
        dma(vXD0, sX, S(sCX+i))
    def a1():
        xtok[i] = dma(vXD1, sX, S(sCX+i), 1024)
    return [a0, a1]
def item_acts(it, woff):
    slot = it % 5
    acts = []
    for sg in range(2):
        ch, seg = (it, 1 + sg) if it < 8 else (2*(it-8) + sg, 0)
        def a0(sg=sg, ch=ch, seg=seg):
            op(f"s_add_u32 m0, {woff}, {L_RING + slot*16384 + sg*8192}")
            op(f"s_add_u32 {S(sBG)}, {S(sCW+ch)}, {seg*1024}")
            dma(vWD0, sWQ, S(sBG))
        def a1():
            itok[it] = dma(vWD1, sWQ, S(sBG), 1024)
        acts += [a0, a1]
    return acts
for a in x_acts(0, "s1") + item_acts(0, "s1"):
    a()
pro = []
class Rec:
    def __enter__(self):
        global op
        self.old = op
        op = lambda t: pro.append(t)
    def __exit__(self, *a):
        global op
        op = self.old
aK, aV, aQ, aR = 32, 48, 64, 80
XF, WF = 96, 112
sx0, sx1, sq0, sq1, cK0, cK1, cV0, cV1 = range(144, 152)
SF, CFK, CFV, RF, ONF, OCF = 160, 164, 168, 172, 176, 204
aKT, aVT = 0, 40
MK = 22
def tr_base128(dst, half_mul, tmp):
    op(f"v_bfe_u32 {V(tmp)}, {V(vL)}, 2, 2")
    op(f"v_lshlrev_b32 {V(dst)}, 7, {V(tmp)}")
    op(f"v_lshrrev_b32 {V(tmp)}, 1, {V(tmp)}")
    op(f"v_lshl_add_u32 {V(dst)}, {V(tmp)}, 6, {V(dst)}")
    op(f"v_bfe_u32 {V(tmp)}, {V(vL)}, 4, 1")
    op(f"v_lshl_add_u32 {V(dst)}, {V(tmp)}, 5, {V(dst)}")
    op(f"v_and_b32 {V(tmp)}, 3, {V(vL)}")
    op(f"v_lshl_add_u32 {V(dst)}, {V(tmp)}, 3, {V(dst)}")
    op(f"v_lshrrev_b32 {V(tmp)}, 5, {V(vL)}")
    op(f"v_lshl_add_u32 {V(dst)}, {V(tmp)}, {half_mul}, {V(dst)}")
with Rec():
    srd(sWS, 4, WS_SIZE)
    op(f"s_add_u32 s4, s99, 1")
    op(f"v_add_u32 {V(18)}, s4, {V(vL)}")
    op(f"v_lshrrev_b32 {V(18)}, 1, {V(18)}")
    op(f"v_min_u32 {V(18)}, 15, {V(18)}")
    op(f"v_mov_b32 {V(19)}, s96")
    op(f"v_cmp_gt_u32 vcc, 4, {V(vL)}")
    srd(sWO, 48, 512*1024)
    op(f"v_cndmask_b32 {V(18)}, {V(19)}, {V(18)}, vcc")
    op(f"v_lshlrev_b32 {V(18)}, 3, {V(18)}")
    op(f"buffer_load_dwordx2 {V(vTLO,2)}, {V(18)}, {S(sWS,4)}, 0 offen sc1")
    srd(sW1, 52, 512*3584)
    srd(sB1, 54, 1792*2)
    srd(sW2, 56, 1792*1024)
    srd(sB2, 58, 1024)
    srd(sOUT, 60, 2048*1024)
    op(f"s_mov_b64 {S(sDBG,2)}, s[62:63]")
    op(f"s_mov_b32 {S(sW)}, s0")
    op(f"s_mov_b32 {S(sG)}, s96")
    op(f"s_mov_b32 {S(sM)}, s98")
    op(f"s_mov_b32 {S(sTB)}, s99")
    op(f"s_mov_b32 {S(sHQ)}, s100")
    op(f"s_mov_b32 {S(sWOFF)}, s1")
    op(f"s_lshr_b32 {S(sP)}, {S(sW)}, 1")
    op(f"s_and_b32 {S(sT_)}, {S(sW)}, 1")
    op(f"s_mov_b32 {S(sONES)}, 0x3f803f80")
    op(f"s_sub_u32 s0, s100, s101")
    op(f"s_and_b32 s0, s0, 7")
    op(f"s_lshl_b32 s0, s0, 13")
    op(f"s_xor_b32 {S(sT3)}, {S(sP)}, {S(sT_)}")
    op(f"v_and_b32 {V(17)}, 31, {V(vL)}")
    op(f"v_lshrrev_b32 {V(18)}, 5, {V(vL)}")
    op(f"v_bfe_u32 {V(32)}, {V(vL)}, 1, 3")
    op(f"v_xor_b32 {V(32)}, {V(32)}, {V(18)}")
    op(f"v_lshlrev_b32 {V(32)}, 4, {V(32)}")
    op(f"v_lshl_add_u32 {V(32)}, {V(17)}, 7, {V(32)}")
    op(f"s_lshl_b32 {S(sT1)}, {S(sT_)}, 12")
    op(f"v_add_u32 {V(32)}, {S(sT1)}, {V(32)}")
    op(f"s_lshl_b32 {S(sT1)}, {S(sT3)}, 5")
    op(f"v_xor_b32 {V(32)}, {S(sT1)}, {V(32)}")
    for s_ in range(4):
        op(f"v_xor_b32 {V(vXR+s_)}, {s_<<5}, {V(32)}")
    tr_base128(33, 10, 34)
    op(f"s_lshl_b32 {S(sT1)}, {S(sP)}, 6")
    op(f"v_xor_b32 {V(33)}, {S(sT1)}, {V(33)}")
    op(f"v_add_u32 {V(33)}, {L_RING}, {V(33)}")
    op(f"s_lshl_b32 {S(sT1)}, {S(sT3)}, 11")
    op(f"v_add_u32 {V(vWRe)}, {S(sT1)}, {V(33)}")
    op(f"v_subrev_u32 {V(vWRo)}, {S(sT1)}, {V(33)}")
    op(f"v_add_u32 {V(vWReH)}, 0x10000, {V(vWRe)}")
    op(f"v_add_u32 {V(vWRoH)}, 0x10000, {V(vWRo)}")
    op(f"s_mov_b32 {S(sLOW)}, -1")
    op(f"s_mov_b32 {S(sLOW+1)}, 0")
    op(f"s_mov_b32 {S(sM16)}, 0xffff")
    op(f"s_mov_b32 {S(sM16+1)}, 0xffff")
    op(f"s_getreg_b32 {S(sXCC)}, hwreg(HW_REG_XCC_ID, 0, 4)")
    for r in list(range(144, 152)) + [SF+2, SF+3, CFK+2, CFK+3, CFV+2, CFV+3, RF+1, RF+2, RF+3, ONF+1, ONF+2, ONF+3]:
        op(f"v_mov_b32 {V(r)}, 0")
    op(f"v_mov_b32 {V(ONF)}, {S(sONES)}")
    op(f"v_lshlrev_b32 {V(18)}, 2, {V(18)}")
    op(f"v_sub_u32 {V(17)}, {V(17)}, {V(18)}")
    op(f"v_mov_b32 {V(18)}, 0xffff")
    op(f"v_mov_b32 {V(19)}, 0xffff0000")
    for i in range(8):
        c0 = 8*((2*i) >> 2) + ((2*i) & 3)
        op(f"v_cmp_le_i32 vcc, {c0}, {V(17)}")
        op(f"v_cmp_le_i32 {S(sPA,2)}, {c0+1}, {V(17)}")
        op(f"v_cndmask_b32 {V(32)}, 0, {V(18)}, vcc")
        op(f"v_cndmask_b32 {V(MK+i)}, 0, {V(19)}, {S(sPA,2)}")
        op(f"v_or_b32 {V(MK+i)}, {V(MK+i)}, {V(32)}")
    op(f"v_mov_b32 {V(32)}, 0x3afe3f80")
    op(f"v_cndmask_b32 {V(RF)}, 0, {V(32)}, {S(sLOW,2)}")
    op("s_nop 0")
    for k_ in range(5):
        mfma(A(aVT+16*k_,16), V(RF,4), V(ONF,4), "0")
acts = x_acts(1, "s1") + item_acts(1, "s1")
nper = 6
k = 0
masked = False
due = 0
for i, t in enumerate(pro):
    if t.startswith("LABEL"):
        e.label(t.split()[1])
    else:
        op(t)
    if t.startswith("s_mov_b64 exec"):
        masked = not t.endswith("-1")
    if (i + 1) % nper == 0:
        due += 1
    if due and k < len(acts) and not masked and not t.startswith(("s_getpc", "LABEL", "s_sub_u32 s100")):
        acts[k](); k += 1; due -= 1
for f in acts[k:]:
    f()
stamp("start")
if PROF:
    pass

def w_read_ops(it, sg, s, d):
    slot = it % 5
    base = (vWRe if s % 2 == 0 else vWRo) if slot < 4 else (vWReH if s % 2 == 0 else vWRoH)
    off = (slot % 4) * 16384 + sg*8192 + s*2048
    return [f"ds_read_b64_tr_b16 {V(d,2)}, {V(base)} offset:{off}",
            f"ds_read_b64_tr_b16 {V(d+2,2)}, {V(base)} offset:{off+512}"]
def x_read_op(ch, s, d):
    return f"ds_read_b128 {V(d,4)}, {V(vXR+s)} offset:{L_X + ch*8192}"
def dot_ones(acc, r):
    return f"v_dot2c_f32_bf16 {V(acc)}, {S(sONES)}, {V(r)}"
def dot_sq(acc, r):
    return f"v_dot2c_f32_bf16 {V(acc)}, {V(r)}, {V(r)}"

def late_loads():
    if SCOUT:
        op(f"s_lshl_b32 {S(sT1)}, {S(sG)}, 4")
        op(f"s_add_u32 {S(sT1)}, {S(sT1)}, {S(sM)}")
        op(f"s_lshl_b32 {S(sT1)}, {S(sT1)}, 2")
        op(f"s_add_u32 {S(sT1)}, {S(sT1)}, {S(sW)}")
        op(f"v_lshlrev_b32 {V(17)}, 7, {V(vL)}")
        op(f"s_mul_i32 {S(sT2)}, {S(sT1)}, {14*128}")
        op(f"s_mov_b64 exec, 0x3fff")
        op(f"buffer_load_dword {V(243)}, {V(17)}, {S(sW1,4)}, {S(sT2)} offen")
        op(f"buffer_load_dword {V(244)}, {V(17)}, {S(sW2,4)}, {S(sT2)} offen")
        op("s_mov_b64 exec, -1")
def small_loads():
    op(f"v_lshrrev_b32 {V(17)}, 5, {V(vL)}")
    op(f"v_lshlrev_b32 {V(17)}, 3, {V(17)}")
    op(f"s_lshl_b32 {S(sT1)}, {S(sHQ)}, 7")
    op(f"s_lshl_b32 {S(sT2)}, {S(sW)}, 5")
    op(f"s_add_u32 {S(sT1)}, {S(sT1)}, {S(sT2)}")
    op(f"buffer_load_dwordx2 {V(vB2,2)}, {V(17)}, {S(sB2,4)}, {S(sT1)} offen")
    op(f"buffer_load_dwordx2 {V(vB2+2,2)}, {V(17)}, {S(sB2,4)}, {S(sT1)} offen offset:16")
    if TLBW:
        op(f"v_lshlrev_b32 {V(17)}, 21, {V(vL)}")
        op(f"v_add_u32 {V(17)}, 0xc000, {V(17)}")
        op(f"s_mov_b64 exec, 0xff")
        op(f"buffer_load_dword {V(241)}, {V(17)}, {S(sWS,4)}, 0 offen")
        op(f"s_mov_b64 exec, 1")
        op(f"buffer_load_dword {V(240)}, {V(vL)}, {S(sOUT,4)}, 0 offen")
        op("s_mov_b64 exec, -1")
    if SCOUT:
        op(f"s_lshl_b32 {S(sT1)}, {S(sG)}, 4")
        op(f"s_add_u32 {S(sT1)}, {S(sT1)}, {S(sM)}")
        op(f"s_lshl_b32 {S(sT1)}, {S(sT1)}, 2")
        op(f"s_add_u32 {S(sT1)}, {S(sT1)}, {S(sW)}")
        op(f"v_lshlrev_b32 {V(17)}, 7, {V(vL)}")
        op(f"s_lshl_b32 {S(sT1)}, {S(sT1)}, 9")
        op(f"s_mov_b64 exec, 0xf")
        op(f"buffer_load_dword {V(245)}, {V(17)}, {S(sWO,4)}, {S(sT1)} offen")
        op("s_mov_b64 exec, -1")
def spread(lst, k, n):
    return lst[len(lst)*k//n : len(lst)*(k+1)//n]
def record(fn):
    global op
    old = op; lst = []
    op = lambda t: lst.append(t)
    fn()
    op = old
    return lst
def l2_warm(srdreg, lines_per_wg, k, vPF=239):
    per_wave = lines_per_wg // 4
    op(f"s_and_b32 {S(sT1)}, {S(sG)}, 1")
    op(f"s_lshl_b32 {S(sT1)}, {S(sT1)}, 4")
    op(f"s_add_u32 {S(sT1)}, {S(sT1)}, {S(sM)}")
    op(f"s_lshl_b32 {S(sT1)}, {S(sT1)}, 2")
    op(f"s_add_u32 {S(sT1)}, {S(sT1)}, {S(sW)}")
    op(f"s_mul_i32 {S(sT1)}, {S(sT1)}, {per_wave*128}")
    op(f"v_add_u32 {V(17)}, {64*k}, {V(vL)}")
    op(f"v_min_u32 {V(17)}, {per_wave-1}, {V(17)}")
    op(f"v_lshlrev_b32 {V(17)}, 7, {V(17)}")
    op(f"buffer_load_dword {V(vPF)}, {V(17)}, {S(srdreg,4)}, {S(sT1)} offen")
import os
XK = os.environ.get("XK", "")
def kv_reads(it, s):
    if "r" in XK and it > 0: return
    e.ops([x_read_op(it, s, XF+4*s)] + w_read_ops(it, 0, s, WF+4*s) + w_read_ops(it, 1, s, WF+16+4*s))
def mK(s, first=False):
    mfma(V(aK,16), V(WF+4*s,4), V(XF+4*s,4), "0" if first else V(aK,16))
def mV(s, first=False):
    mfma(V(aV,16), V(XF+4*s,4), V(WF+16+4*s,4), "0" if first else V(aV,16))
def kv_dots(mid=None):
    if "d" in XK:
        if mid: mid(); mid()
        return
    for s in (1, 3):
        x = XF+4*s; k = WF+4*s; v = WF+16+4*s
        for j in range(4):
            op(dot_ones(sx0 if j % 2 == 0 else sx1, x+j))
            op(dot_sq(sq0 if j % 2 == 0 else sq1, x+j))
            op(dot_ones(cK0 if j % 2 == 0 else cK1, k+j))
            op(dot_ones(cV0 if j % 2 == 0 else cV1, v+j))
        if mid: mid()
for it in range(8):
    e.wait_tok(xtok[it], itok[it])
    if it == 0:
        op(f"v_add_u32 {V(vTHI)}, 0x9e3779b9, {V(vTHI)}")
        op(f"v_readlane_b32 {S(sELO)}, {V(vTLO)}, 4")
        op(f"v_add_u32 {V(vTLO)}, 1, {V(vTLO)}")
        op(f"v_lshlrev_b32 {V(vTLO)}, 4, {V(vTLO)}")
        op(f"v_readlane_b32 {S(sTHI)}, {V(vTHI)}, 4")
        op(f"v_readlane_b32 {S(sBASE)}, {V(vTLO)}, 4")
    e.wait(lg=0)
    e.barrier()
    stamp(f"it{it}")
    if it == 0 and PROF:
        op(f"s_memtime {S(sPA,2)}")
        e.wait(lg=0)
        op(f"v_writelane_b32 {V(vST)}, {S(sPA)}, 60")
    if "m" in XK:
        xtok[it+3] = itok[it+3] = itok[11] = None
    else:
        if it == 0:
            bg.extend(x_acts(2, S(sWOFF)) + item_acts(2, S(sWOFF)))
        if it + 3 < 8:
            bg.extend(x_acts(it+3, S(sWOFF)))
        bg.extend(item_acts(it+3, S(sWOFF)))
        if it == 7:
            bg.extend(item_acts(11, S(sWOFF)))
    if it > 0: mK(3)
    kv_reads(it, 0)
    if it > 0: mV(3)
    kv_reads(it, 2)
    tick(1)
    if it > 0:
        kv_dots(tick)
    else:
        def census():
            op(f"s_add_u32 {S(sT0)}, {S(sBASE)}, {S(sXCC)}")
            op(f"v_mov_b32 {V(18)}, {S(sT0)}")
            op(f"v_mov_b32 {V(19)}, {S(sTHI)}")
            op(f"s_lshl_b32 {S(sT1)}, {S(sG)}, 7")
            op(f"s_lshl_b32 {S(sT2)}, {S(sM)}, 3")
            op(f"s_add_u32 {S(sT1)}, {S(sT1)}, {S(sT2)}")
            op(f"v_mov_b32 {V(17)}, 0")
            op("s_mov_b64 exec, 1")
            op(f"buffer_store_dwordx2 {V(18,2)}, {V(17)}, {S(sWS,4)}, {S(sT1)} offen offset:{WS_CEN} sc1")
            op("s_mov_b64 exec, -1")
        tick(3)
        wave0(census)
        tick(3)
    mK(0, it == 0); kv_reads(it, 1)
    mV(0, it == 0); kv_reads(it, 3)
    mK(2); tick(1)
    mV(2)
    if it in (0, 7): tick(1)
    if it == 5: small_loads()
    mK(1); tick(1)
    mV(1); tick(1)
    if it in (0, 7):
        drain()
    assert not bg
stamp("p1_kvloop")

vMU, vT0, vT1, vT2 = 152, 153, 154, 155
vR = 156
EXV, EXP = 184, 188
vVS, vKW, vVW, vVR = 180, 181, 182, 183
vCX = 17
kv_dots()
mK(3)
op(f"v_add_f32 {V(EXV)}, {V(cK0)}, {V(cK1)}")
op(f"v_add_f32 {V(EXV+1)}, {V(cV0)}, {V(cV1)}")
op(f"v_add_f32 {V(EXV+2)}, {V(sx0)}, {V(sx1)}")
op(f"v_add_f32 {V(EXV+3)}, {V(sq0)}, {V(sq1)}")
for k in range(4):
    op(f"v_mov_b32 {V(EXP+k)}, {V(EXV+k)}")
mV(3)
op(f"s_lshl_b32 {S(sT1)}, {S(sW)}, 10")
op(f"s_add_u32 {S(sT1)}, {S(sT1)}, {L_MISC}")
for k in range(4):
    op(f"v_permlane32_swap_b32 {V(EXV+k)}, {V(EXP+k)}")
op(f"v_add_u32 {V(vCX)}, {S(sT1)}, {V(vL16)}")
for k in range(4):
    op(f"v_add_f32 {V(EXV+k)}, {V(EXV+k)}, {V(EXP+k)}")
op(f"ds_write_b128 {V(vCX)}, {V(EXV,4)}")
op(f"v_xor_b32 {V(18)}, 1024, {V(vCX)}")
op(f"v_xor_b32 {V(19)}, 2048, {V(vCX)}")
op(f"v_bfe_u32 {V(vT0)}, {V(vL)}, 4, 1")
op(f"v_lshrrev_b32 {V(vT1)}, 5, {V(vL)}")
op(f"v_and_b32 {V(vVR)}, 15, {V(vL)}")
op(f"v_lshlrev_b32 {V(vVR)}, 4, {V(vVR)}")
op(f"v_lshl_add_u32 {V(vVR)}, {V(vT1)}, 8, {V(vVR)}")
op(f"v_lshl_add_u32 {V(vVS)}, {V(vT0)}, 16, {V(vVR)}")
op(f"v_lshl_add_u32 {V(vVW)}, {V(vT0)}, 11, {V(vVR)}")
op(f"s_lshl_b32 {S(sT0)}, {S(sHQ)}, 1")
op(f"s_add_u32 {S(sT0)}, {S(sT0)}, {S(sP)}")
op(f"s_lshl_b32 {S(sT0)}, {S(sT0)}, 7")
op(f"s_lshl_b32 {S(sT1)}, {S(sTB)}, 1")
op(f"s_add_u32 {S(sT0)}, {S(sT0)}, {S(sT1)}")
op(f"s_add_u32 {S(sT0)}, {S(sT0)}, {S(sT_)}")
e.wait(lg=0)
e.barrier()
op(f"ds_read_b64 {V(EXP+2,2)}, {V(19)} offset:8")
op(f"ds_read_b64 {V(EXP,2)}, {V(18)}")
op(f"s_lshl_b32 {S(sT0)}, {S(sT0)}, 10")
op(f"s_add_u32 {S(sT1)}, {S(sT0)}, {hx(WS_K)}")
op(f"s_add_u32 {S(sT2)}, {S(sT0)}, {hx(WS_K + 65536)}")
op(f"s_add_u32 {S(sT3)}, {S(sT0)}, {hx(WS_V)}")
op(f"s_lshl_b32 s4, {S(sP)}, 12")
op(f"s_lshl_b32 s5, {S(sT_)}, 10")
op(f"s_add_u32 s4, s4, s5")
op(f"s_add_u32 s4, s4, {L_EX}")
op(f"v_add_u32 {V(vKW)}, s4, {V(vL16)}")
op(f"v_add_u32 {V(vVW)}, s4, {V(vVW)}")
op(f"v_add_f32 {V(EXV+2)}, {V(EXV+2)}, {V(EXP+2)}")
op(f"v_add_f32 {V(EXV+3)}, {V(EXV+3)}, {V(EXP+3)}")
op(f"v_mul_f32 {V(vMU)}, {hx(f2u(-1.0/512))}, {V(EXV+2)}")
op(f"v_add_f32 {V(EXV)}, {V(EXV)}, {V(EXP)}")
split_hi_lo(vMU, vT0, vT1, vT2)
op(f"v_cvt_pk_bf16_f32 {V(SF)}, {V(vMU)}, {V(vT1)}")
op(f"v_and_b32 {V(SF+1)}, 0xffff, {V(vT0)}")
split_hi_lo(EXV, CFK, vT1, vT2)
op(f"v_cndmask_b32 {V(SF)}, 0, {V(SF)}, {S(sLOW,2)}")
op(f"v_cndmask_b32 {V(SF+1)}, 0, {V(SF+1)}, {S(sLOW,2)}")
op(f"v_cvt_pk_bf16_f32 {V(CFK+1)}, {V(vT1)}, 0")
op(f"v_add_f32 {V(EXV+1)}, {V(EXV+1)}, {V(EXP+1)}")
op(f"v_mul_f32 {V(vT0)}, {hx(f2u(1.0/512))}, {V(EXV+3)}")
mfma(V(aK,16), V(CFK,4), V(SF,4), V(aK,16))
op(f"v_fma_f32 {V(vT0)}, -{V(vMU)}, {V(vMU)}, {V(vT0)}")
op(f"v_max_f32 {V(vT0)}, 0, {V(vT0)}")
op(f"v_add_f32 {V(vT0)}, {hx(f2u(1e-5))}, {V(vT0)}")
op(f"v_rsq_f32 {V(vR)}, {V(vT0)}")
split_hi_lo(EXV+1, CFV, vT1, vT2)
op(f"v_cvt_pk_bf16_f32 {V(CFV+1)}, {V(vT1)}, 0")
split_hi_lo(vR, vT0, vT1, vT2)
mfma(V(aV,16), V(SF,4), V(CFV,4), V(aV,16))
op(f"v_cvt_pk_bf16_f32 {V(RF)}, {V(vR)}, {V(vT1)}")
op(f"v_cndmask_b32 {V(RF)}, 0, {V(RF)}, {S(sLOW,2)}")
op(f"v_mul_f32 {V(vR+1)}, {hx(f2u(0.25*math.log2(math.e)))}, {V(vR)}")
KP, VP = 96, 104
for i in range(3):
    op(f"v_mul_f32 {V(aK+i)}, {V(aK+i)}, {V(vR)}")
mfma(V(aR,16), V(RF,4), V(ONF,4), "0")
for h in range(2):
    for i in range(3 if h == 0 else 0, 8):
        op(f"v_mul_f32 {V(aK+8*h+i)}, {V(aK+8*h+i)}, {V(vR)}")
    for i in range(4):
        op(f"v_cvt_pk_bf16_f32 {V(KP+4*h+i)}, {V(aK+8*h+2*i)}, {V(aK+8*h+2*i+1)}")
    op(f"buffer_store_dwordx4 {V(KP+4*h,4)}, {V(vL16)}, {S(sWS,4)}, {S(sT1+h)} offen sc1")
for h in range(2):
    for i in range(4):
        op(f"v_pk_mul_f32 {V(aV+8*h+2*i,2)}, {V(aV+8*h+2*i,2)}, {V(aR+8*h+2*i,2)}")
    for i in range(4):
        op(f"v_cvt_pk_bf16_f32 {V(VP+4*h+i)}, {V(aV+8*h+2*i)}, {V(aV+8*h+2*i+1)}")
    kvtok = op(f"buffer_store_dwordx4 {V(VP+4*h,4)}, {V(vVS)}, {S(sWS,4)}, {S(sT3)} offen offset:{512*h} sc1")
stamp("kv_stored")
e.wait_tok(itok[11])
e.barrier()

QB = [(112, 128), (204, 220)]
def q_reads(c):
    xb, wb = QB[c % 2]
    o = []
    for s in range(4):
        o += [x_read_op(c, s, xb+4*s)] + w_read_ops(8 + c//2, c % 2, s, wb+4*s)
    return o
e.ops(q_reads(0))
late_loads()
if PFW1:
    for k in range(2):
        l2_warm(sW1, 448, k, 240+k)
op(f"ds_write_b128 {V(vKW)}, {V(KP,4)}")
op(f"ds_write_b128 {V(vKW)}, {V(KP+4,4)} offset:2048")
op(f"ds_write_b128 {V(vVW)}, {V(VP,4)} offset:8192")
op(f"ds_write_b128 {V(vVW)}, {V(VP+4,4)} offset:{8192+512}")
cQ0, cQ1 = 144, 145
op(f"v_mov_b32 {V(cQ0)}, 0")
op(f"v_mov_b32 {V(cQ1)}, 0")
vWDk = [vWD, 236, 237, 238]
vW1 = [21, 189, 190, 191]
vTR0, vTR1 = 30, 31
WO = 192
sWO_L, sWO_R, sW4K = 0, 2, 1
def wo_like_addr(dst0, dst1, base_sreg, base_imm, tmp=19):
    tr_base128(dst0, 9, tmp)
    op(f"s_lshl_b32 {S(sT1)}, {S(sP)}, 6")
    op(f"s_lshl_b32 {S(sT2)}, {S(sT_)}, 5")
    op(f"s_or_b32 {S(sT1)}, {S(sT1)}, {S(sT2)}")
    op(f"v_xor_b32 {V(dst0)}, {S(sT1)}, {V(dst0)}")
    op(f"s_add_u32 {S(sT1)}, {base_sreg}, {base_imm}")
    op(f"v_add_u32 {V(dst0)}, {S(sT1)}, {V(dst0)}")
    op(f"v_xor_b32 {V(dst1)}, 64, {V(dst0)}")
def w1_addr_rest():
    for k in range(1, 4):
        op(f"v_add_u32 {V(vW1[k])}, {k*(4*3584-1024)}, {V(vW1[0])}")
def side_a():
    op(f"v_and_b32 {V(vT0)}, 31, {V(vL)}")
    op(f"v_bfe_u32 {V(vT1)}, {V(vL)}, 1, 3")
    op(f"s_lshl_b32 {S(sT1)}, {S(sW)}, 1")
    op(f"v_xor_b32 {V(vT1)}, {S(sT1)}, {V(vT1)}")
    op(f"v_lshlrev_b32 {V(vT1)}, 4, {V(vT1)}")
    op(f"v_lshl_add_u32 {V(vT1)}, {V(vT0)}, 7, {V(vT1)}")
    op(f"v_lshrrev_b32 {V(vT0)}, 5, {V(vL)}")
    op(f"v_lshl_add_u32 {V(vT1)}, {V(vT0)}, 3, {V(vT1)}")
    op(f"v_add_u32 {V(vT1)}, s0, {V(vT1)}")
    op(f"v_xor_b32 {V(vT2)}, 16, {V(vT1)}")
    for t in range(2):
        op(f"ds_read_b64 {V(vRES+4*t,2)}, {V(vT1)} offset:{L_X + t*4096}")
        op(f"ds_read_b64 {V(vRES+4*t+2,2)}, {V(vT2)} offset:{L_X + t*4096}")
    for k in range(1, 4):
        op(f"v_add_u32 {V(vWDk[k])}, {k*(8192-1024)}, {V(vWD)}")
    op(f"s_lshl_b32 {S(sWO_L)}, {S(sW)}, 13")
    op(f"s_lshl_b32 {S(sWO_R)}, {S(sW)}, 17")
    op(f"s_lshl_b32 {S(sW4K)}, {S(sW)}, 12")
    op(f"s_add_u32 {S(sT1)}, {S(sTB)}, 1")
    op(f"v_add_u32 {V(148)}, {S(sT1)}, {V(vL)}")
    op(f"v_cmp_gt_u32 vcc, 32, {V(148)}")
    op(f"v_cmp_gt_u32 s[4:5], 4, {V(vL)}")
    op(f"v_lshlrev_b32 {V(148)}, 3, {V(148)}")
    op(f"v_add_u32 {V(148)}, {S(sHQ)}, {V(148)}")
    op(f"v_lshlrev_b32 {V(148)}, 4, {V(148)}")
    op(f"v_add_u32 {V(148)}, {V(148)}, {V(vL)}")
    op(f"v_lshlrev_b32 {V(148)}, 3, {V(148)}")
    op(f"v_add_u32 {V(vTLO)}, 15, {V(vTLO)}")
    op(f"s_and_b64 s[4:5], s[4:5], vcc")
    op(f"v_and_b32 {V(149)}, 15, {V(vL)}")
    op(f"v_lshlrev_b32 {V(149)}, 3, {V(149)}")
def side_b():
    wo_like_addr(vTR0, vTR1, S(sWO_L), L_WOS)
    op(f"v_lshrrev_b32 {V(17)}, 4, {V(vL)}")
    op(f"v_lshlrev_b32 {V(18)}, 2, {V(17)}")
    op(f"v_and_b32 {V(19)}, 15, {V(vL)}")
    op(f"v_xor_b32 {V(18)}, {V(18)}, {V(19)}")
    op(f"v_lshlrev_b32 {V(18)}, 4, {V(18)}")
    op(f"v_mul_u32_u24 {V(vW1[0])}, 3584, {V(17)}")
    op(f"v_add_u32 {V(vW1[0])}, {V(vW1[0])}, {V(18)}")
    op(f"s_mul_i32 {S(sT1)}, {S(sW)}, {16*3584}")
    op(f"s_min_u32 {S(sT2)}, {S(sM)}, 13")
    op(f"s_lshl_b32 {S(sT2)}, {S(sT2)}, 8")
    op(f"s_add_u32 {S(sT1)}, {S(sT1)}, {S(sT2)}")
    op(f"v_add_u32 {V(vW1[0])}, {S(sT1)}, {V(vW1[0])}")
    for r in range(16):
        c0 = 8*(r >> 2) + (r & 3)
        op(f"s_mov_b32 {S(sCM+2*r)}, {hx(0xffffffff << c0)}")
        op(f"s_mov_b32 {S(sCM+2*r+1)}, {hx(0xffffffff << (c0+4))}")
    op(f"v_lshlrev_b32 {V(vCX)}, 2, {V(vL)}")
    op(f"s_lshl_b32 {S(sT1)}, {S(sW)}, 8")
    op(f"s_add_u32 {S(sT1)}, {S(sT1)}, {L_CQ}")
    op(f"v_add_u32 {V(vCX)}, {S(sT1)}, {V(vCX)}")
    op(f"v_add_u32 {V(vKW)}, {L_QX - L_EX}, {V(vKW)}")
    op(f"v_and_b32 {V(150)}, 3, {V(vL)}")
    op(f"v_lshlrev_b32 {V(150)}, 3, {V(150)}")
    op(f"s_lshl_b32 {S(sT4)}, {S(sTB)}, 3")
    op(f"s_add_u32 {S(sT4)}, {S(sT4)}, {S(sHQ)}")
    op(f"s_lshl_b32 {S(sT4)}, {S(sT4)}, 7")
    op(f"s_add_u32 {S(sT4)}, {S(sT4)}, {hx(WS_HALO)}")
sideA = record(side_a); sideB = record(side_b)
def stage_acts(srdreg, lds_sreg, lds_imm, row_sreg, row_imm, n, toks):
    acts = []
    for i in range(n):
        def a(i=i):
            if i % 4 == 0:
                op(f"s_add_u32 m0, {lds_sreg}, {lds_imm + i*1024}")
                op(f"s_add_u32 {S(sBG)}, {row_sreg}, {row_imm + i*8192}")
            toks.append(dma(vWDk[i % 4], srdreg, S(sBG), (i % 4)*1024))
        acts.append(a)
    return acts
wo1, wo2 = [], []
for c in range(8):
    xb, wb = QB[c % 2]
    nxt = q_reads(c+1) if c < 7 else []
    for s in range(4):
        mfma(V(aQ,16), V(wb+4*s,4), V(xb+4*s,4), "0" if (c == 0 and s == 0) else V(aQ,16))
        e.ops(nxt[3*s:3*s+3])
        if c < 3:
            e.ops(spread(sideA, 4*c+s, 12))
        elif c >= 4:
            e.ops(spread(sideB, 4*(c-4)+s, 16))
        if c >= 4 and s % 2 == 1:
            tick(1)
    for s in (1, 3):
        for j in range(4):
            op(dot_ones(cQ0 if j % 2 == 0 else cQ1, wb+4*s+j))
    if c == 3:
        e.wait_tok(kvtok)
        e.barrier()
        def halo_flags():
            D = e.fresh("nohalo")
            op("s_cmp_eq_u64 s[4:5], 0")
            op(f"s_cbranch_scc1 {D}")
            op("s_mov_b64 exec, s[4:5]")
            op(f"s_mov_b32 {S(sT1)}, {hx(WS_HALO)}")
            op(f"buffer_store_dwordx2 {V(vTLO,2)}, {V(148)}, {S(sWS,4)}, {S(sT1)} offen sc1")
            op("s_mov_b64 exec, -1")
            e.label(D)
        wave0(halo_flags)
        stamp("halo_sent")
        op(f"s_lshl_b32 {S(sT1)}, {S(sG)}, 7")
        op(f"buffer_load_dwordx2 {V(146,2)}, {V(149)}, {S(sWS,4)}, {S(sT1)} offen offset:{WS_CEN} sc1")
        bg.extend(stage_acts(sWO, S(sWO_L), L_WOS, S(sWO_R), 0, 8, wo1))
drain()
stamp("q_loop")
op(f"v_add_f32 {V(cQ0)}, {V(cQ0)}, {V(cQ1)}")
halves_sum(cQ0, vT0)
op(f"ds_write_b32 {V(vCX)}, {V(cQ0)}")
op(f"v_xor_b32 {V(vCX)}, 256, {V(vCX)}")
e.wait(lg=0)
e.barrier()
op(f"ds_read_b32 {V(cQ1)}, {V(vCX)}")
op(f"s_add_u32 {S(sT0)}, {S(sBASE)}, {S(sXCC)}")
op(f"v_cmp_eq_u32 vcc, {S(sT0)}, {V(146)}")
op(f"v_cmp_eq_u32 {S(sPA,2)}, {S(sTHI)}, {V(147)}")
op(f"s_and_b64 vcc, vcc, {S(sPA,2)}")
op(f"s_cmp_eq_u64 vcc, -1")
op(f"s_cselect_b32 {S(sFAST)}, {0 if SLOW else 1}, 0")
op(f"v_add_f32 {V(cQ0)}, {V(cQ0)}, {V(cQ1)}")
split_hi_lo(cQ0, CFK, vT1, vT2)
op(f"v_cvt_pk_bf16_f32 {V(CFK+1)}, {V(vT1)}, 0")
mfma(V(aQ,16), V(CFK,4), V(SF,4), V(aQ,16))
def tr_step_ops(dstf, s_local, a0=vTR0, a1=vTR1):
    return [f"ds_read_b64_tr_b16 {dstf(4*u+2*j)}, {V((a0, a1)[u])} offset:{s_local*2048+j*1024}" for u in range(2) for j in range(2)]
e.wait_tok(wo1[-1])
for s in range(3):
    e.ops(tr_step_ops(lambda o: V(WO+8*s+o, 2), s))
for i in range(8):
    op(f"v_pk_mul_f32 {V(aQ+2*i,2)}, {V(aQ+2*i,2)}, {V(vR,2)} op_sel:[0,1] op_sel_hi:[1,1]")
for i in range(8):
    op(f"v_cvt_pk_bf16_f32 {V(KP+i)}, {V(aQ+2*i)}, {V(aQ+2*i+1)}")
op(f"ds_write_b128 {V(vKW)}, {V(KP,4)}")
op(f"ds_write_b128 {V(vKW)}, {V(KP+4,4)} offset:2048")
e.ops(tr_step_ops(lambda o: V(WO+24+o, 2), 3))
wave0(lambda: op(f"buffer_load_dwordx2 {V(148,2)}, {V(150)}, {S(sWS,4)}, {S(sT4)} offen sc1"))
Q0 = 32
op(f"s_lshl_b32 {S(sT1)}, {S(sW)}, 11")
op(f"v_add_u32 {V(17)}, {S(sT1)}, {V(vL16)}")
op(f"v_add_u32 {V(18)}, {L_QX}, {V(17)}")
op(f"v_add_u32 {V(17)}, {L_EX}, {V(17)}")
op(f"s_add_u32 {S(sT1)}, {S(sT1)}, {L_EX + 8192}")
op(f"v_add_u32 {V(19)}, {S(sT1)}, {V(vVR)}")
w1_addr_rest()
e.wait(lg=0)
wo2acts = stage_acts(sWO, S(sWO_L), L_WOS, S(sWO_R), 8*8192, 8, wo2)
for f in wo2acts[:4]: f()
e.barrier()
for t in range(2):
    op(f"ds_read_b128 {V(Q0+4*t,4)}, {V(18)} offset:{t*1024}")
    op(f"ds_read_b128 {A(aKT+4*(8+t),4)}, {V(17)} offset:{t*1024}")
op(f"s_mov_b64 exec, {S(sM16,2)}")
for t in range(2):
    for st in range(2):
        op(f"ds_read_b128 {A(aVT+8*(8+t)+4*st,4)}, {V(19)} offset:{t*1024+st*512}")
op("s_mov_b64 exec, -1")
for f in wo2acts[4:]: f()
def w1_acts(G):
    acts = []
    for k in range(4):
        def a(k=k):
            if k == 0:
                op(f"s_add_u32 m0, {S(sW4K)}, {G*16384}")
                op(f"s_mov_b32 {S(sBG)}, {G*64*3584}")
            dma(vW1[k], sW1, S(sBG), k*1024)
        acts.append(a)
    return acts
op(f"s_lshl_b32 {S(sT0)}, {S(sHQ)}, 2")
op(f"s_add_u32 {S(sT0)}, {S(sT0)}, {S(sW)}")
op(f"s_lshl_b32 {S(sT0)}, {S(sT0)}, 6")
op(f"s_lshl_b32 {S(sT1)}, {S(sTB)}, 1")
op(f"s_add_u32 {S(sT0)}, {S(sT0)}, {S(sT1)}")
op(f"s_lshl_b32 {S(sT0)}, {S(sT0)}, 10")
op(f"s_add_u32 s4, {S(sT0)}, {hx(WS_K - 8192)}")
op(f"s_add_u32 s5, {S(sT0)}, {hx(WS_K - 4096)}")
sVA, sVB = 60, 49
op(f"s_add_u32 {S(sVB)}, {S(sT0)}, {hx(WS_V - 4096)}")
op(f"s_add_u32 {S(sVA)}, {S(sT0)}, {hx(WS_V - 8192)}")
NM = [40, 56]; MG = [72, 88]; SB = [104, 120, 136]; OA = [152, 168]
mx = [184, 185, 186, 187]
vNEG = 188
Kt = lambda j: A(aKT+4*j, 4)
Vt = lambda j, st: A(aVT+8*j+4*st, 4)
Qt = lambda i: V(Q0+4*i, 4)
op(f"v_mov_b32 {V(vNEG)}, 0xff800000")
for r in mx:
    op(f"v_mov_b32 {V(r)}, {V(vNEG)}")
def max_ops(i, b):
    return [f"v_max3_f32 {V(mx[2*i+(k&1)])}, {V(mx[2*i+(k&1)])}, {V(b+2*k)}, {V(b+2*k+1)}" for k in range(8)]
units = [(1, 8)] + [(i, j) for j in range(7, 1, -1) for i in range(2)] + [(0, 1), (1, 1), (0, 0)]
exit_at = {1: 1, 5: 2, 9: 3, 13: 4}
def s_mfma(n):
    i, j = units[n]
    mfma(V(SB[n % 3],16), Kt(j), Qt(i), "0")
s_mfma(0)
mfma(V(MG[0],16), Kt(8), Qt(0), "0")
mfma(V(MG[1],16), Kt(9), Qt(1), "0")
e.wait(lg=0)
stamp("q_done")
def halo_wait():
    D = e.fresh("haloearly")
    op(f"s_min_u32 {S(sT1)}, {S(sTB)}, 4")
    op(f"s_lshl_b32 {S(sT2)}, 1, {S(sT1)}")
    op(f"s_sub_u32 {S(sT2)}, {S(sT2)}, 1")
    op(f"s_mov_b32 {S(sT3)}, 0")
    op(f"s_add_u32 {S(sT1)}, {S(sBASE)}, 15")
    op(f"v_cmp_eq_u32 vcc, {S(sT1)}, {V(148)}")
    op(f"v_cmp_eq_u32 {S(sPA,2)}, {S(sTHI)}, {V(149)}")
    op(f"s_and_b64 vcc, vcc, {S(sPA,2)}")
    op(f"s_andn2_b64 {S(sPA,2)}, {S(sT2,2)}, vcc")
    op(f"s_cbranch_scc0 {D}")
    poll(150, S(sT4), S(sT2,2), S(sT1), 1, 18, S(sTHI), 0x100)
    e.label(D)
wave0(halo_wait)
e.barrier()
stamp("halo_ok")
for j in range(7, -1, -1):
    op(f"buffer_load_dwordx4 {A(aKT+4*j,4)}, {V(vL16)}, {S(sWS,4)}, {'s4' if j < 4 else 's5'} offen offset:{(j%4)*1024} sc1")
def v_loads(js):
    op(f"s_mov_b64 exec, {S(sM16,2)}")
    for j in js:
        for st in range(2):
            op(f"buffer_load_dwordx4 {A(aVT+8*j+4*st,4)}, {V(vVR)}, {S(sWS,4)}, {S(sVA if j < 4 else sVB)} offen offset:{(j%4)*1024+st*512} sc1")
    op("s_mov_b64 exec, -1")
e.ops(max_ops(1, SB[0]))
v_loads((7,))
s_mfma(1); s_mfma(2)
for n in range(1, len(units)):
    if n in exit_at:
        op(f"s_cmp_lt_u32 {S(sTB)}, {exit_at[n]}")
        op(f"s_cbranch_scc1 L_p1_short{exit_at[n]}")
    i, j = units[n]
    if n + 2 < len(units):
        s_mfma(n+2)
    if n == 3: v_loads((6,))
    if n == 6: v_loads((5,))
    if n == 8: v_loads((4,))
    if n < 14:
        e.ops(max_ops(i, SB[n % 3]))
    else:
        for r in range(16):
            op(f"v_cndmask_b32 {V(MG[i]+r)}, {V(SB[n%3]+r)}, {V(MG[i]+r)}, {S(sCM+2*r,2)}")
op("s_branch L_p1_join")
for k in range(1, 5):
    e.label(f"L_p1_short{k}")
for i in range(2):
    for r in range(16):
        op(f"v_cndmask_b32 {V(MG[i]+r)}, {V(vNEG)}, {V(MG[i]+r)}, {S(sCM+2*r,2)}")
e.label("L_p1_join")
e.ops(interleave(max_ops(0, MG[0]), max_ops(1, MG[1])))
for i in range(2):
    op(f"v_max_f32 {V(mx[2*i])}, {V(mx[2*i])}, {V(mx[2*i+1])}")
for i in range(2):
    op(f"v_mov_b32 {V(mx[2*i+1])}, {V(mx[2*i])}")
op("s_nop 0")
for i in range(2):
    op(f"v_permlane32_swap_b32 {V(mx[2*i])}, {V(mx[2*i+1])}")
for i in range(2):
    op(f"v_max_f32 {V(mx[2*i])}, {V(mx[2*i])}, {V(mx[2*i+1])}")
for i in range(2):
    op(f"v_sub_f32 {V(NM[i])}, 0, {V(mx[2*i])}")
    op(f"v_sub_f32 {V(NM[i]+1)}, 0, {V(mx[2*i])}")
for i in range(2):
    for k in range(1, 8):
        op(f"v_pk_mov_b32 {V(NM[i]+2*k,2)}, {V(NM[i],2)}, {V(NM[i],2)} op_sel:[0,1]")
stamp("att_p1")
full = units[:14]
def exp_cvt(b):
    o = []
    for k in range(8):
        o.append(f"v_exp_f32 {V(b+2*k)}, {V(b+2*k)}")
        o.append(f"v_exp_f32 {V(b+2*k+1)}, {V(b+2*k+1)}")
        if k >= 1:
            o.append(f"v_cvt_pk_bf16_f32 {V(b+k-1)}, {V(b+2*k-2)}, {V(b+2*k-1)}")
    o.append("NOP")
    o.append(f"v_cvt_pk_bf16_f32 {V(b+7)}, {V(b+14)}, {V(b+15)}")
    return o
def run_with(valu, inserts):
    for k, t in enumerate(valu):
        for f in inserts.get(k, []):
            f()
        if t != "NOP":
            op(t)
def s2(n):
    i, j = full[n]
    mfma(V(SB[n % 3],16), Kt(j), Qt(i), V(NM[i],16))
def pv(i, j, b, first=False):
    return [lambda: mfma(V(OA[i],16), Vt(j,0), V(b,4), "0" if first else V(OA[i],16)),
            lambda: mfma(V(OA[i],16), Vt(j,1), V(b+4,4), V(OA[i],16))]
for i in range(2):
    for k in range(8):
        op(f"v_pk_add_f32 {V(MG[i]+2*k,2)}, {V(MG[i]+2*k,2)}, {V(NM[i],2)}")
sS2L, sS2R = 0, 2
w2tok = {}
def w2_round_dma(r):
    w2tok[r] = []
    return stage_acts(sW2, S(sS2L), L_S2, S(sS2R), r*6*8192, 6, w2tok[r])
wotr = {}
def bg_list():
    L = [a for G in range(8) for a in w1_acts(G)]
    def wo_tr(s):
        def f():
            if s == 0: e.wait_tok(wo2[-1])
            for t in tr_step_ops(lambda o: V(WO+32+8*s+o, 2), s):
                wotr[s] = op(t)
        return f
    L[0:0] = [lambda: v_loads((3,)), lambda: v_loads((2,)), wo_tr(0), lambda: v_loads((1,)), wo_tr(1), lambda: v_loads((0,)), wo_tr(2), wo_tr(3)]
    if PFL2:
        L[0:0] = [lambda: l2_warm(sW2, 448, 0, 18), lambda: l2_warm(sW2, 448, 1, 188)]
    def first():
        global vWDk
        e.wait_tok(wotr[3])
        op(f"s_mul_i32 {S(sS2R)}, {S(sW)}, {448*1024}")
        vWDk = [vWD, 15, 14, 19]
        for k in range(1, 4):
            op(f"v_add_u32 {V(vWDk[k])}, {k*(8192-1024)}, {V(vWD)}")
        d0[0]()
    d0 = w2_round_dma(0)
    return L + [first] + d0[1:]
bg.extend(bg_list())
nbg = len(bg)
def split_ops(i):
    return [f"v_and_b32 {V(MG[i]+8+k)}, {V(MG[i]+k)}, {V(MK+k)}" for k in range(8)] + \
           [f"v_xor_b32 {V(MG[i]+k)}, {V(MG[i]+k)}, {V(MG[i]+8+k)}" for k in range(8)]
run_with(exp_cvt(MG[0]) + split_ops(0), {1: [lambda: s2(0)], 6: [lambda: s2(1)], 12: [tick], 20: [tick], 30: [tick]})
p0 = pv(0, 8, MG[0]+8, first=True)
run_with(exp_cvt(MG[1]) + split_ops(1), {2: [p0[0]], 7: [p0[1]], 12: [tick], 20: [tick], 30: [tick]})
pend = pv(1, 9, MG[1]+8, first=True)
done_before = {}
for n in range(len(full)):
    if n in exit_at:
        if pend:
            for f in pend: f()
            pend = None
        done_before[exit_at[n]] = nbg - len(bg)
        op(f"s_cmp_lt_u32 {S(sTB)}, {exit_at[n]}")
        op(f"s_cbranch_scc1 L_p2_short{exit_at[n]}")
    i, j = full[n]
    ins = {}
    if pend:
        ins[2] = [pend[0]]; ins[7] = [pend[1]]
    if n + 2 < len(full):
        ins.setdefault(13, []).append(lambda n=n: s2(n+2))
    for pos in ((4, 10, 16, 22) if n < 2 else (4, 10, 18)):
        ins.setdefault(pos, []).append(tick)
    if n == 13:
        for i2 in range(2):
            q = pv(i2, i2, MG[i2])
            ins.setdefault(12+6*i2, []).append(q[0]); ins.setdefault(15+6*i2, []).append(q[1])
    run_with(exp_cvt(SB[n % 3]), ins)
    pend = pv(i, j, SB[n % 3])
for f in pend: f()
assert not bg, len(bg)
op("s_branch L_p2_done")
save_tok = dict(w2tok)
allacts = bg_list()
for k in range(1, 5):
    e.label(f"L_p2_short{k}")
    lo = done_before[k]; hi = done_before[k+1] if k < 4 else nbg
    for a in allacts[lo:hi]:
        a()
e.wait(vm=0, lg=0)
w2tok.update(save_tok)
e.label("L_p2_done")
stamp("att_p2")
op(f"s_lshl_b32 {S(sT0)}, {S(sTB)}, 6")
op(f"s_lshl_b32 {S(sT1)}, {S(sHQ)}, 2")
op(f"s_add_u32 {S(sT0)}, {S(sT0)}, {S(sT1)}")
op(f"s_add_u32 {S(sT0)}, {S(sT0)}, {S(sW)}")
op(f"s_lshl_b32 {S(sT0)}, {S(sT0)}, 10")
op(f"s_add_u32 {S(sT0)}, {S(sT0)}, {hx(WS_O)}")
op(f"s_add_u32 {S(sT1)}, {S(sT0)}, 32768")
for i in range(2):
    op(f"v_rcp_f32 {V(mx[2*i])}, {V(OA[i]+8)}")
for i in range(2):
    for k in range(4):
        op(f"v_pk_mul_f32 {V(OA[i]+2*k,2)}, {V(OA[i]+2*k,2)}, {V(mx[2*i],2)} op_sel_hi:[1,0]")
    for k in range(4):
        op(f"v_cvt_pk_bf16_f32 {V(OA[i]+8+k)}, {V(OA[i]+2*k)}, {V(OA[i]+2*k+1)}")
def st_o(m):
    op(f"buffer_store_dwordx4 {V(OA[0]+8,4)}, {V(vL16)}, {S(sWS,4)}, {S(sT0)} offen{m}")
    op(f"buffer_store_dwordx4 {V(OA[1]+8,4)}, {V(vL16)}, {S(sWS,4)}, {S(sT1)} offen{m}")
stores_mode(st_o, "o")
vA = 22
op(f"v_and_b32 {V(17)}, 31, {V(vL)}")
op(f"v_lshlrev_b32 {V(17)}, 1, {V(17)}")
op(f"s_min_u32 {S(sT1)}, {S(sM)}, 13")
op(f"s_lshl_b32 {S(sT1)}, {S(sT1)}, 8")
op(f"s_lshl_b32 {S(sT2)}, {S(sW)}, 6")
op(f"s_add_u32 {S(sT1)}, {S(sT1)}, {S(sT2)}")
op(f"buffer_load_ushort {V(14)}, {V(17)}, {S(sB1,4)}, {S(sT1)} offen")
def w1_tr_addr():
    op(f"v_bfe_u32 {V(17)}, {V(vL)}, 2, 2")
    op(f"v_lshlrev_b32 {V(vA)}, 8, {V(17)}")
    op(f"v_lshl_add_u32 {V(vA)}, {V(17)}, 6, {V(vA)}")
    op(f"v_bfe_u32 {V(17)}, {V(vL)}, 4, 1")
    op(f"v_lshl_add_u32 {V(vA)}, {V(17)}, 5, {V(vA)}")
    op(f"v_and_b32 {V(17)}, 3, {V(vL)}")
    op(f"v_lshl_add_u32 {V(vA)}, {V(17)}, 3, {V(vA)}")
    op(f"v_lshrrev_b32 {V(17)}, 5, {V(vL)}")
    op(f"v_lshl_add_u32 {V(vA)}, {V(17)}, 10, {V(vA)}")
w1_tr_addr()
op(f"s_lshl_b32 {S(sT1)}, {S(sW)}, 6")
op(f"v_xor_b32 {V(26)}, {S(sT1)}, {V(vA)}")
op(f"v_add_u32 {V(27)}, 0x10000, {V(26)}")
c0, c1 = 28, 29
op(f"v_mov_b32 {V(c0)}, 0")
op(f"v_mov_b32 {V(c1)}, 0")
vT2a, vT2b = 30, 31
wo_like_addr(vT2a, vT2b, S(sS2L), L_S2)
vWDk = [vWD, 15, 21, 191]
for k in range(2, 4):
    op(f"v_add_u32 {V(vWDk[k])}, {k*(8192-1024)}, {V(vWD)}")
trtok = {}
def w2_round_tr(r):
    o = []
    for s in range(3):
        o += tr_step_ops(lambda k, s=s: A(8*(3*r+s)+k, 2), s, vT2a, vT2b)
    return o
def w2_tr(r):
    trs = w2_round_tr(r)
    def first():
        e.wait_tok(w2tok[r][-1]); e.ops(trs[0:2])
    def last():
        op(trs[10]); trtok[r] = op(trs[11])
    return [first] + [lambda k=k: e.ops(trs[k:k+2]) for k in range(2, 10, 2)] + [last]
def w2_dma(r):
    d = w2_round_dma(r)
    return [lambda: (e.wait_tok(trtok[r-1]), d[0]())] + d[1:]
group_signal(1)
stamp("o_signaled")
def cs_groups(glo, ghi, buf=32):
    for grp in range(glo, ghi + 1):
        if grp < ghi:
            for s in range(4):
                ss = grp*4 + s
                base = 26 if ss < 16 else 27
                for j in range(2):
                    op(f"ds_read_b64_tr_b16 {V(buf+16*(grp%2)+4*s+2*j,2)}, {V(base)} offset:{(ss%16)*4096+j*2048}")
        if grp > glo:
            for k in range(16):
                op(dot_ones(c0 if k % 2 == 0 else c1, buf+16*((grp-1)%2)+k))
for f in w2_tr(0): f()
cs_groups(0, 2)
for f in w2_dma(1): f()
cs_groups(2, 4)
stamp("cs_a")
def mask8():
    op(f"s_and_b32 {S(sT2)}, {S(sM)}, 8")
    op(f"s_lshl_b32 {S(sT2)}, 0xff, {S(sT2)}")
    op(f"s_mov_b32 {S(sT3)}, 0")
group_wait(1, mask8)
stamp("o_ok")

OF, ACC, RT = 32, 96, 160
op(f"s_lshl_b32 {S(sT0)}, {S(sTB)}, 6")
op(f"s_lshl_b32 {S(sT1)}, {S(sW)}, 3")
op(f"s_add_u32 {S(sT0)}, {S(sT0)}, {S(sT1)}")
op(f"s_lshl_b32 {S(sT0)}, {S(sT0)}, 10")
op(f"s_add_u32 {S(sT0)}, {S(sT0)}, {hx(WS_O)}")
def o_load(n):
    t, s = divmod(n, 8)
    if s % 4 == 0:
        op(f"s_add_u32 {S(sT4)}, {S(sT0)}, {t*32768 + s*1024}")
    op(f"buffer_load_dwordx4 {V(OF+4*n,4)}, {V(vL16)}, {S(sWS,4)}, {S(sT4)} offen offset:{(s%4)*1024} sc1")
for n in range(4):
    o_load(n)
fill3 = record(lambda: cs_groups(4, 8, buf=128))
def cf_build():
    op(f"v_add_f32 {V(c0)}, {V(c0)}, {V(c1)}")
    halves_sum(c0, c1)
    split_hi_lo(c0, 128, 129, 17)
    op(f"v_cvt_pk_bf16_f32 {V(129)}, {V(129)}, 0")
    op(f"v_lshl_or_b32 {V(129)}, {V(14)}, 16, {V(129)}")
    op(f"v_mov_b32 {V(130)}, {V(14)}")
    op(f"v_mov_b32 {V(131)}, 0")
    for k in range(4):
        op(f"v_accvgpr_write_b32 {A(224+k)}, {V(128+k)}")
fill3 += record(cf_build)
NP3 = 10
for k in range(6):
    e.ops(spread(fill3, k, 6))
    o_load(4 + k)
for f in w2_tr(1): f()
vRW, vRR = 22, 25
def reduce_addrs(base):
    for q in range(1, 4):
        op(f"s_xor_b32 {S(sT1)}, {S(sW)}, {q}")
        op(f"s_mul_i32 {S(sT1)}, {S(sT1)}, 6144")
        op(f"s_add_u32 {S(sT1)}, {S(sT1)}, {base + (q-1)*2048}")
        op(f"v_add_u32 {V(vRW+q-1)}, {S(sT1)}, {V(vL16)}")
    op(f"s_mul_i32 {S(sT1)}, {S(sW)}, 6144")
    op(f"s_add_u32 {S(sT1)}, {S(sT1)}, {base}")
    op(f"v_add_u32 {V(vRR)}, {S(sT1)}, {V(vL16)}")
def red_write_ops(acc, t, toff):
    o = []
    for q in range(1, 4):
        r = acc + 32*t + 8*q
        o.append(f"ds_write_b128 {V(vRW+q-1)}, {V(r,4)} offset:{toff}")
        o.append(f"ds_write_b128 {V(vRW+q-1)}, {V(r+4,4)} offset:{toff+1024}")
    return o
def red_read_ops(tmp, toff):
    o = []
    for q in range(3):
        o.append(f"ds_read_b128 {V(tmp+8*q,4)}, {V(vRR)} offset:{toff+q*2048}")
        o.append(f"ds_read_b128 {V(tmp+8*q+4,4)}, {V(vRR)} offset:{toff+q*2048+1024}")
    return o
def red_sum_ops(acc, tmp, t, pk):
    r = acc + 32*t
    o = []
    if pk:
        for k in range(4):
            o.append(f"v_pk_add_f32 {V(tmp+2*k,2)}, {V(tmp+2*k,2)}, {V(tmp+8+2*k,2)}")
            o.append(f"v_pk_add_f32 {V(r+2*k,2)}, {V(r+2*k,2)}, {V(tmp+16+2*k,2)}")
        for k in range(4):
            o.append(f"v_pk_add_f32 {V(r+2*k,2)}, {V(r+2*k,2)}, {V(tmp+2*k,2)}")
    else:
        for q in range(3):
            for k in range(8):
                o.append(f"v_add_f32 {V(r+k)}, {V(r+k)}, {V(tmp+8*q+k)}")
    return o
def add_packed_ops(r, pk, tmp, usepk):
    o = []
    for k in range(4):
        o.append(f"v_lshlrev_b32 {V(tmp+2*k)}, 16, {V(pk+k)}")
        o.append(f"v_and_b32 {V(tmp+2*k+1)}, 0xffff0000, {V(pk+k)}")
    if usepk:
        o += [f"v_pk_add_f32 {V(r+2*k,2)}, {V(r+2*k,2)}, {V(tmp+2*k,2)}" for k in range(4)]
    else:
        o += [f"v_add_f32 {V(r+k)}, {V(r+k)}, {V(tmp+k)}" for k in range(8)]
    return o
pre = [f"s_lshl_b32 s4, {S(sTB)}, 6", f"s_lshl_b32 s5, {S(sHQ)}, 2", "s_add_u32 s4, s4, s5", f"s_add_u32 s4, s4, {S(sW)}",
       "s_lshl_b32 s4, s4, 10", f"s_add_u32 s4, s4, {hx(WS_H)}", "s_add_u32 s5, s4, 32768",
       f"s_lshl_b32 {S(sVA)}, {S(sTB)}, 1", f"s_add_u32 {S(sVA)}, {S(sVA)}, {S(sT_)}", f"s_lshl_b32 {S(sVA)}, {S(sVA)}, 11",
       f"s_lshr_b32 {S(sVB)}, {S(sHQ)}, 1", f"s_lshl_b32 {S(sVB)}, {S(sVB)}, 9", f"s_add_u32 {S(sVA)}, {S(sVA)}, {S(sVB)}",
       f"s_and_b32 {S(sVB)}, {S(sHQ)}, 1", f"s_lshl_b32 {S(sVB)}, {S(sVB)}, 3", f"s_add_u32 {S(sVA)}, {S(sVA)}, {S(sVB)}",
       f"s_add_u32 {S(sVA)}, {S(sVA)}, {hx(WS_ST)}"]
pre += record(lambda: reduce_addrs(L_R3))
pre += [f"v_and_b32 {V(26)}, 31, {V(vL)}", f"v_lshlrev_b32 {V(27)}, 3, {V(26)}", f"v_lshlrev_b32 {V(26)}, 4, {V(26)}",
        f"s_lshl_b32 {S(sT1)}, {S(sW)}, 9", f"s_add_u32 {S(sT1)}, {S(sT1)}, {L_SR}", f"v_add_u32 {V(28)}, {S(sT1)}, {V(27)}",
        f"s_lshl_b32 {S(sT1)}, {S(sT_)}, 8", f"s_add_u32 {S(sT1)}, {S(sT1)}, {L_SR}", f"v_add_u32 {V(27)}, {S(sT1)}, {V(27)}"]
rw0 = red_write_ops(ACC, 0, 0)
for n in range(16):
    t, s = divmod(n, 8)
    for u in range(2):
        d = V(ACC+32*t+16*u, 16)
        mfma(d, V(WO+8*s+4*u,4), V(OF+4*n,4), "0" if s == 0 else d)
        if u == 0 and n + NP3 < 16:
            o_load(n + NP3)
        if n < 8:
            e.ops(spread(pre, 2*n+u, 16))
        if n == 8:
            e.ops(add_packed_ops(ACC, vRES, RT, False)[4*u:4*u+4])
        if n == 9 and u == 0:
            e.wait_tok(trtok[1])
            e.barrier()
        if 10 <= n < 13:
            op(rw0[2*(n-10)+u])
        if n == 13 and u == 1:
            e.wait(lg=0)
            e.barrier()
            e.ops(red_read_ops(RT+8, 0))
        if n == 14:
            e.ops([f"v_add_f32 {V(ACC+k)}, {V(ACC+k)}, {V(RT+k)}" for k in range(4*u, 4*u+4)])
        if n == 15:
            e.ops(add_packed_ops(ACC+32, vRES+4, RT, False)[4*u:4*u+4])
e.ops(red_sum_ops(ACC, RT+8, 0, False)[:8])
e.wait(lg=0)
e.barrier()
e.ops(red_write_ops(ACC, 1, 0))
e.ops(red_sum_ops(ACC, RT+8, 0, False)[8:])
for k in range(4):
    op(f"v_cvt_pk_bf16_f32 {V(vRES+k)}, {V(ACC+2*k)}, {V(ACC+2*k+1)}")
for k in range(4):
    op(f"v_pk_add_f32 {V(ACC+32+2*k,2)}, {V(ACC+32+2*k,2)}, {V(RT+2*k,2)}")
e.wait(lg=0)
e.barrier()
stamp("p3_red")
e.ops(red_read_ops(RT+8, 0))
stores_mode(lambda m: op(f"buffer_store_dwordx4 {V(vRES,4)}, {V(vL16)}, {S(sWS,4)}, s4 offen{m}"), "h")
ST3 = 32
for r in range(ST3, ST3+4):
    op(f"v_mov_b32 {V(r)}, 0")
for k in range(4):
    op(dot_ones(ST3, vRES+k))
    op(dot_sq(ST3+1, vRES+k))
e.ops(red_sum_ops(ACC, RT+8, 1, True))
for k in range(4):
    op(f"v_cvt_pk_bf16_f32 {V(vRES+4+k)}, {V(ACC+32+2*k)}, {V(ACC+32+2*k+1)}")
stores_mode(lambda m: op(f"buffer_store_dwordx4 {V(vRES+4,4)}, {V(vL16)}, {S(sWS,4)}, s5 offen{m}"), "h")
for k in range(4):
    op(dot_ones(ST3+2, vRES+4+k))
    op(dot_sq(ST3+3, vRES+4+k))
for k in range(4):
    op(f"v_mov_b32 {V(ST3+4+k)}, {V(ST3+k)}")
op("s_nop 0")
for k in range(4):
    op(f"v_permlane32_swap_b32 {V(ST3+k)}, {V(ST3+4+k)}")
for k in range(4):
    op(f"v_add_f32 {V(ST3+k)}, {V(ST3+k)}, {V(ST3+4+k)}")
op(f"ds_write_b64 {V(28)}, {V(ST3,2)}")
op(f"ds_write_b64 {V(28)}, {V(ST3+2,2)} offset:256")
e.wait(lg=0)
e.barrier()
for k in range(4):
    op(f"ds_read_b64 {V(ST3+8+2*k,2)}, {V(27)} offset:{k*512}")
op(f"s_lshl_b32 {S(sT1)}, {S(sP)}, 13")
op(f"s_lshl_b32 {S(sT2)}, {S(sT_)}, 10")
op(f"s_add_u32 {S(sT1)}, {S(sT1)}, {S(sT2)}")
op(f"s_add_u32 {S(sT1)}, {S(sT1)}, {L_CT}")
op(f"v_add_u32 {V(17)}, {S(sT1)}, {V(vL16)}")
op(f"ds_write_b128 {V(17)}, {A(224,4)}")
op(f"v_pk_add_f32 {V(ST3+8,2)}, {V(ST3+8,2)}, {V(ST3+10,2)}")
op(f"v_pk_add_f32 {V(ST3+12,2)}, {V(ST3+12,2)}, {V(ST3+14,2)}")
op(f"v_pk_add_f32 {V(ST3+8,2)}, {V(ST3+8,2)}, {V(ST3+12,2)}")
op(f"s_mov_b64 exec, {S(sLOW,2)}")
stores_mode(lambda m: op(f"buffer_store_dwordx2 {V(ST3+8,2)}, {V(26)}, {S(sWS,4)}, {S(sVA)} offen{m}"), "h")
op("s_mov_b64 exec, -1")
e.wait(lg=0)
group_signal(2)
stamp("h_signaled")
vWDk = [vWD, 15, 21, 248]
op(f"v_add_u32 {V(vWDk[3])}, {3*(8192-1024)}, {V(vWD)}")
d2 = w2_round_dma(2)
for f in d2: f()
op(f"s_cmp_ge_u32 {S(sM)}, 14")
op("s_cbranch_scc1 L_p4_skip")

w1_tr_addr()
for nb in range(1, 4):
    op(f"v_xor_b32 {V(vA+nb)}, {nb << 6}, {V(vA)}")
HB, GA, RING4 = 32, 160, 224
STV = 208
op(f"s_lshl_b32 s4, {S(sG)}, 2")
op(f"s_add_u32 s4, s4, {S(sW)}")
op(f"s_lshl_b32 s5, s4, 11")
op(f"s_add_u32 s5, s5, {hx(WS_ST)}")
op(f"s_mul_i32 {S(sVB)}, s4, 112")
op(f"s_lshl_b32 s4, s4, 15")
op(f"s_add_u32 {S(sVA)}, s4, {hx(WS_H)}")
sG0, sG1 = 49, 58
op(f"s_lshl_b32 {S(sT1)}, {S(sM)}, 3")
op(f"s_add_u32 {S(sG0)}, {S(sG0)}, {S(sT1)}")
op(f"s_lshl_b32 {S(sG0)}, {S(sG0)}, 10")
op(f"s_add_u32 {S(sG0)}, {S(sG0)}, {hx(WS_G)}")
op(f"s_add_u32 {S(sG1)}, {S(sG0)}, 4096")
vCT = 14
op(f"v_add_u32 {V(vCT)}, {L_CT}, {V(vL16)}")
SF4, vKK, vSG, TP = 244, 18, 26, 252
NS, LA = 5, 4
def mask16():
    op(f"s_mov_b32 {S(sT2)}, 0xffff")
    op(f"s_mov_b32 {S(sT3)}, 0")
seq = []
for s in range(32):
    seq += [(0, s), (1, s)]
NB0 = 12
seq += [(2, s) for s in range(NB0)] + [(0, 'r'), (1, 'r')] + [(2, s) for s in range(NB0, 32)] + [(2, 'r')]
seq += [(3, s) for s in range(32)] + [(3, 'r')]
hi_state = {nb: False for nb in range(4)}
def frag_read(n):
    nb, s = seq[n]
    d = RING4 + 4*(n % NS)
    if s == 'r':
        op(f"ds_read_b128 {V(d,4)}, {V(vCT)} offset:{ct_off(nb)}")
        return
    if s >= 16 and not hi_state[nb]:
        op(f"v_add_u32 {V(vA+nb)}, 0x10000, {V(vA+nb)}")
        hi_state[nb] = True
    op(f"ds_read_b64_tr_b16 {V(d,2)}, {V(vA+nb)} offset:{(s%16)*4096}")
    op(f"ds_read_b64_tr_b16 {V(d+2,2)}, {V(vA+nb)} offset:{(s%16)*4096+2048}")
for n in range(LA):
    frag_read(n)
group_wait(2, mask16)
stamp("h_ok")
def epoch_bump():
    D = e.fresh("nobump")
    op(f"s_cmp_lg_u32 {S(sM)}, 0")
    op(f"s_cbranch_scc1 {D}")
    op(f"s_add_u32 {S(sT1)}, {S(sELO)}, 1")
    op(f"v_mov_b32 {V(18)}, {S(sT1)}")
    op(f"s_lshl_b32 {S(sT1)}, {S(sG)}, 3")
    op(f"v_mov_b32 {V(17)}, 0")
    op("s_mov_b64 exec, 1")
    op(f"buffer_store_dword {V(18)}, {V(17)}, {S(sWS,4)}, {S(sT1)} offen offset:{WS_E} sc1")
    op("s_mov_b64 exec, -1")
    e.label(D)
def h_load(n):
    if n < 32:
        if n % 4 == 0:
            op(f"s_add_u32 s4, {S(sVA)}, {n*1024}")
        op(f"buffer_load_dwordx4 {V(HB+4*n,4)}, {V(vL16)}, {S(sWS,4)}, s4 offen offset:{(n%4)*1024} sc1")
    else:
        k = n - 32
        op(f"buffer_load_dwordx4 {V(STV+4*k,4)}, {V(vL16)}, {S(sWS,4)}, s5 offen offset:{k*1024} sc1")
NPRE = 9
for n in range(NPRE):
    h_load(n)
    if n == 3:
        wave0(epoch_bump)
    if n >= 4:
        pass
for f in w2_tr(2): f()
def frag_mfma(n):
    nb, s = seq[n]
    d = V(GA+16*nb, 16)
    b = V(SF4,4) if s == 'r' else V(HB+4*s,4)
    mfma(d, V(RING4+4*(n % NS),4), b, "0" if s == 0 else d)
def gelu_plain(nb, i):
    a0 = GA + 16*nb; a = a0 + 2*i; T = TP
    o = [f"v_mul_f32 {V(T+k)}, {V(a+k)}, {V(a+k)}" for k in range(2)]
    o += [f"v_fma_f32 {V(T+k)}, {V(T+k)}, {V(vKK+1)}, {V(vKK)}" for k in range(2)]
    o += [f"v_mul_f32 {V(T+k)}, {V(T+k)}, {V(a+k)}" for k in range(2)]
    o += [f"v_exp_f32 {V(T+k)}, {V(T+k)}" for k in range(2)]
    o += [f"v_fma_f32 {V(T+k)}, {V(T+k)}, {V(vSG)}, {V(vSG)}" for k in range(2)]
    o += [f"v_rcp_f32 {V(T+k)}, {V(T+k)}" for k in range(2)]
    o += [f"v_mul_f32 {V(T+k)}, {V(T+k)}, {V(a+k)}" for k in range(2)]
    o.append(f"v_cvt_pk_bf16_f32 {V(a0+i)}, {V(T)}, {V(T+1)}")
    return o
def gelu_pk(items):
    o = []
    for x in range(0, len(items), 2):
        prs = [(GA+16*nb+2*i, TP+2*k, GA+16*nb+i) for k, (nb, i) in enumerate(items[x:x+2])]
        for a, T, d in prs: o.append(f"v_pk_mul_f32 {V(T,2)}, {V(a,2)}, {V(a,2)}")
        for a, T, d in prs: o.append(f"v_pk_fma_f32 {V(T,2)}, {V(T,2)}, {V(vKK,2)}, {V(vKK,2)} op_sel:[0,1,0] op_sel_hi:[1,1,0]")
        for a, T, d in prs: o.append(f"v_pk_mul_f32 {V(T,2)}, {V(T,2)}, {V(a,2)}")
        for a, T, d in prs: o += [f"v_exp_f32 {V(T)}, {V(T)}", f"v_exp_f32 {V(T+1)}, {V(T+1)}"]
        for a, T, d in prs: o.append(f"v_pk_fma_f32 {V(T,2)}, {V(T,2)}, {V(vSG,2)}, {V(vSG,2)} op_sel_hi:[1,0,0]")
        for a, T, d in prs: o += [f"v_rcp_f32 {V(T)}, {V(T)}", f"v_rcp_f32 {V(T+1)}, {V(T+1)}"]
        for a, T, d in prs: o.append(f"v_pk_mul_f32 {V(T,2)}, {V(T,2)}, {V(a,2)}")
        for a, T, d in prs: o.append(f"v_cvt_pk_bf16_f32 {V(d)}, {V(T)}, {V(T+1)}")
    return o
def g_store(nbs):
    def st(m):
        for nb in nbs:
            so = S(sG0) if nb < 2 else S(sG1)
            op(f"buffer_store_dwordx4 {V(GA+16*nb,4)}, {V(vL16)}, {S(sWS,4)}, {so} offen offset:{(nb%2)*2048}{m}")
            op(f"buffer_store_dwordx4 {V(GA+16*nb+4,4)}, {V(vL16)}, {S(sWS,4)}, {so} offen offset:{(nb%2)*2048+1024}{m}")
    stores_mode(st, "g")
C1 = -2.0 * math.log2(math.e) * math.sqrt(2.0/math.pi)
def stats4_ops():
    s0, q0, t0, t1 = TP, TP+1, TP+2, TP+3
    t2, t3 = 17, 27
    o = [f"v_add_f32 {V(s0)}, {V(STV)}, {V(STV+2)}", f"v_add_f32 {V(q0)}, {V(STV+1)}, {V(STV+3)}",
         f"v_add_f32 {V(t0)}, {V(STV+4)}, {V(STV+6)}", f"v_add_f32 {V(t1)}, {V(STV+5)}, {V(STV+7)}",
         f"v_add_f32 {V(s0)}, {V(s0)}, {V(t0)}", f"v_add_f32 {V(q0)}, {V(q0)}, {V(t1)}"]
    o += [f"v_mov_b32 {V(t0)}, {V(s0)}", f"v_mov_b32 {V(t1)}, {V(q0)}", f"v_mov_b32 {V(SF4+3)}, 0",
          f"v_permlane32_swap_b32 {V(s0)}, {V(t0)}", f"v_permlane32_swap_b32 {V(q0)}, {V(t1)}",
          f"v_add_f32 {V(s0)}, {V(s0)}, {V(t0)}", f"v_add_f32 {V(q0)}, {V(q0)}, {V(t1)}",
          f"v_mul_f32 {V(s0)}, {hx(f2u(-1.0/512))}, {V(s0)}",
          f"v_mul_f32 {V(q0)}, {hx(f2u(1.0/512))}, {V(q0)}",
          f"v_fma_f32 {V(q0)}, -{V(s0)}, {V(s0)}, {V(q0)}",
          f"v_max_f32 {V(q0)}, 0, {V(q0)}",
          f"v_add_f32 {V(t0)}, {hx(f2u(1e-5))}, {V(q0)}",
          f"v_rsq_f32 {V(t1)}, {V(t0)}",
          f"v_cvt_pk_bf16_f32 {V(t2)}, {V(s0)}, {V(s0)}",
          f"v_mul_f32 {V(q0)}, {V(q0)}, {V(t1)}",
          f"v_mul_f32 {V(q0)}, {V(q0)}, {V(t1)}",
          f"v_add_f32 {V(q0)}, {hx(f2u(1e-5))}, {V(q0)}",
          f"v_rsq_f32 {V(t3)}, {V(q0)}",
          f"v_mul_f32 {V(t0)}, {V(t0)}, {V(t1)}",
          f"v_and_b32 {V(t2)}, 0xffff0000, {V(t2)}",
          f"v_mul_f32 {V(t1)}, {V(t1)}, {V(t3)}",
          f"v_mul_f32 {V(q0)}, {V(q0)}, {V(t3)}",
          f"v_mul_f32 {V(vSG)}, {V(q0)}, {V(t0)}",
          f"v_sub_f32 {V(t2)}, {V(s0)}, {V(t2)}",
          f"v_cvt_pk_bf16_f32 {V(SF4)}, {V(s0)}, {V(t2)}",
          f"v_cvt_pk_bf16_f32 {V(SF4+1)}, {V(s0)}, {V(vSG)}",
          f"v_and_b32 {V(t2)}, 0xffff0000, {V(SF4+1)}",
          f"v_sub_f32 {V(t2)}, {V(vSG)}, {V(t2)}",
          f"v_cvt_pk_bf16_f32 {V(SF4+2)}, {V(t2)}, 0"]
    o += [f"v_cndmask_b32 {V(SF4+k)}, 0, {V(SF4+k)}, {S(sLOW,2)}" for k in range(3)]
    o += [f"v_mul_f32 {V(vKK)}, {hx(f2u(C1))}, {V(t1)}",
          f"v_mul_f32 {V(t0)}, {V(t1)}, {V(t1)}",
          f"v_mul_f32 {V(t0)}, {hx(f2u(0.044715))}, {V(t0)}",
          f"v_mul_f32 {V(vKK+1)}, {V(vKK)}, {V(t0)}"]
    return o
iA = 64
iR0 = seq.index((0, 'r')); iB0 = seq.index((1, 'r')) + 1
iC0 = seq.index((2, 'r')) + 1
NPL_B, NPL_C = 2, 3
st4 = stats4_ops()
fillB = [x for i in range(NPL_B) for x in gelu_plain(0, i)]
fillC = [x for i in range(NPL_C) for x in gelu_plain(2, i)]
sched = {}
def at(n, acts, step=1):
    for k, f in enumerate(acts):
        sched.setdefault(n + k*step, []).append(f)
at(iA - 8, w2_dma(3))
for k in range(8):
    sched.setdefault(iA + 3 + k, []).append(lambda k=k: e.ops(spread(st4, k, 8)))
at(iB0 + 1, w2_tr(3))
at(iB0 + 10, w2_dma(4))
nB = iC0 - (iB0 + 3)
for k in range(nB):
    sched.setdefault(iB0 + 3 + k, []).append(lambda k=k: e.ops(spread(fillB, k, nB)))
at(iC0 + 12, w2_tr(5))
at(iC0 + 22, w2_dma(6))
nC = len(seq) - (iC0 + 2)
for k in range(nC):
    sched.setdefault(iC0 + 2 + k, []).append(lambda k=k: e.ops(spread(fillC, k, nC)))
def weave(ops_, acts, first, step):
    k = 0
    for i, x in enumerate(ops_):
        if i >= first and (i - first) % step == 0 and k < len(acts):
            acts[k](); k += 1
        op(x)
    for f in acts[k:]:
        f()
for n in range(len(seq)):
    if n == iC0:
        stamp("p4_Bm")
        e.ops(gelu_pk([(0, i) for i in range(NPL_B, 8)]))
        g_store((0,))
        weave(gelu_pk([(1, i) for i in range(8)]), w2_tr(4) + w2_dma(5), 16, 8)
        g_store((1,))
        stamp("p4_B")
    if n + LA < len(seq):
        frag_read(n + LA)
    frag_mfma(n)
    nb, s = seq[n]
    if n < iA and nb == 0 and s + NPRE < 34:
        h_load(s + NPRE)
    for f in sched.get(n, []):
        f()
    if n == iA - 1:
        stamp("p4_passA")
stamp("p4_mfma")
e.ops(gelu_pk([(2, i) for i in range(NPL_C, 8)]))
g_store((2,))
e.ops(gelu_pk([(3, i) for i in range(8)]))
g_store((3,))
e.wait(lg=0)
group_signal(3)
stamp("g_signaled")
op("s_branch L_p5")
e.label("L_p4_skip")
for r in range(2, 6):
    for f in w2_tr(r): f()
    for f in w2_dma(r+1): f()
e.barrier()
e.label("L_p5")

op(f"s_lshl_b32 {S(sT4)}, {S(sW)}, 14")
def stage_rest():
    D = e.fresh("nostage")
    op(f"s_cmp_eq_u32 {S(sW)}, 0")
    op(f"s_cbranch_scc1 {D}")
    for a in stage_acts(sW2, S(sT4), 0, S(sS2R), 42*8192, 14, []):
        a()
    op(f"s_mul_i32 {S(sT0)}, {S(sW)}, 5120")
    op(f"s_sub_u32 {S(sT0)}, {S(sT0)}, 5120")
    op(f"s_lshl_b32 {S(sT1)}, {S(sT0)}, 3")
    for a in stage_acts(sW2, S(sT0), 0, S(sT1), 42*8192, 5, []):
        a()
    e.label(D)
stage_rest()
wo_like_addr(26, 27, S(sT4), 0)
L_R5, L_OT = 65536, 114688
reduce_addrs(L_R5)
GB, NG, RT5, ACC5 = 32, 34, 168, 192
op(f"s_mul_i32 s4, {S(sTB)}, 224")
op(f"s_mul_i32 s5, {S(sW)}, 28")
op(f"s_add_u32 s4, s4, s5")
op(f"s_lshl_b32 s4, s4, 10")
op(f"s_add_u32 s4, s4, {hx(WS_G)}")
stamp("w2_issued")
def mask14():
    op(f"s_mov_b32 {S(sT2)}, 0x3fff")
    op(f"s_mov_b32 {S(sT3)}, 0")
group_wait(3, mask14)
stamp("g_ok")
def g_load(n):
    t, s = divmod(n, 28)
    if s % 4 == 0:
        op(f"s_add_u32 s5, s4, {(t*112+s)*1024}")
    return op(f"buffer_load_dwordx4 {V(GB+4*(n%NG),4)}, {V(vL16)}, {S(sWS,4)}, s5 offen offset:{(s%4)*1024} sc1")
NPRE5 = 12
for n in range(NPRE5):
    g_load(n)
rw = red_write_ops(ACC5, 0, 0)
fin0 = red_sum_ops(ACC5, RT5, 0, False) + add_packed_ops(ACC5, vRES, RT5, False) + add_packed_ops(ACC5, vB2, RT5, False) + \
       [f"v_cvt_pk_bf16_f32 {V(vRES+k)}, {V(ACC5+2*k)}, {V(ACC5+2*k+1)}" for k in range(4)]
otw = [f"v_and_b32 {V(17)}, 31, {V(vL)}", f"v_mul_u32_u24 {V(17)}, 144, {V(17)}", f"v_lshrrev_b32 {V(18)}, 5, {V(vL)}",
       f"v_lshl_add_u32 {V(17)}, {V(18)}, 3, {V(17)}", f"s_lshl_b32 {S(sT1)}, {S(sW)}, 5", f"s_add_u32 {S(sT1)}, {S(sT1)}, {L_OT}",
       f"v_add_u32 {V(17)}, {S(sT1)}, {V(17)}",
       f"v_lshrrev_b32 {V(18)}, 3, {V(vL)}", f"v_and_b32 {V(19)}, 7, {V(vL)}", f"v_lshlrev_b32 {V(19)}, 4, {V(19)}",
       f"v_lshl_add_u32 {V(20)}, {V(18)}, 10, {V(19)}", f"v_mul_u32_u24 {V(18)}, 144, {V(18)}", f"v_add_u32 {V(18)}, {V(18)}, {V(19)}",
       f"s_mul_i32 {S(sT1)}, {S(sW)}, {16*144}", f"s_add_u32 {S(sT1)}, {S(sT1)}, {L_OT}", f"v_add_u32 {V(18)}, {S(sT1)}, {V(18)}",
       f"s_lshl_b32 {S(sT0)}, {S(sTB)}, 16", f"s_lshl_b32 {S(sT1)}, {S(sW)}, 14", f"s_add_u32 {S(sT0)}, {S(sT0)}, {S(sT1)}",
       f"s_lshl_b32 {S(sT1)}, {S(sHQ)}, 7", f"s_add_u32 {S(sT0)}, {S(sT0)}, {S(sT1)}", f"s_add_u32 {S(sT1)}, {S(sT0)}, 8192"]
tr6 = w2_round_tr(6)
for n in range(56):
    t, s = divmod(n, 28)
    for u in range(2):
        d = V(ACC5+32*t+16*u, 16)
        mfma(d, A(8*s+4*u,4), V(GB+4*(n%NG),4), "0" if s == 0 else d)
        if u == 0 and n + NPRE5 < 56:
            g_load(n + NPRE5)
        if n < 3:
            e.ops(tr6[4*n+2*u:4*n+2*u+2])
        if n == 3 and u == 1:
            e.barrier()
        if 4 <= n < 11:
            sl = n - 4
            e.ops(tr_step_ops(lambda k, sl=sl: A(8*(21+sl)+k, 2), sl, 26, 27)[2*u:2*u+2])
        if 34 <= n < 37:
            op(rw[2*(n-34)+u])
        if n == 41 and u == 1:
            e.wait(lg=0)
            e.barrier()
            e.ops(red_read_ops(RT5, 0))
        if 44 <= n < 52:
            e.ops(spread(fin0, 2*(n-44)+u, 16))
        if 28 <= n < 34:
            e.ops(spread(otw, 2*(n-28)+u, 12))
        if n == 52 and u == 0:
            op(f"ds_write_b64 {V(17)}, {V(vRES,2)}")
            op(f"ds_write_b64 {V(17)}, {V(vRES+2,2)} offset:16")
        if n == 54:
            e.ops(add_packed_ops(ACC5+32, vRES+4, RT5, False)[4*u:4*u+4])
        if n == 55:
            e.ops(add_packed_ops(ACC5+32, vB2, RT5+8, False)[4*u:4*u+4])
stamp("p5_mfma")
e.ops(red_write_ops(ACC5, 1, 24576))
for k in range(4):
    op(f"v_pk_add_f32 {V(RT5+2*k,2)}, {V(RT5+2*k,2)}, {V(RT5+8+2*k,2)}")
for k in range(4):
    op(f"v_pk_add_f32 {V(ACC5+32+2*k,2)}, {V(ACC5+32+2*k,2)}, {V(RT5+2*k,2)}")
e.wait(lg=0)
e.barrier()
e.ops(red_read_ops(RT5, 24576))
e.ops(red_sum_ops(ACC5, RT5, 1, True))
for k in range(4):
    op(f"v_cvt_pk_bf16_f32 {V(vRES+4+k)}, {V(ACC5+32+2*k)}, {V(ACC5+32+2*k+1)}")
op(f"ds_write_b64 {V(17)}, {V(vRES+4,2)} offset:{32*144}")
op(f"ds_write_b64 {V(17)}, {V(vRES+6,2)} offset:{32*144+16}")
e.wait(lg=0)
e.barrier()
OM = " sc1" if "x" in WT else (" nt" if "n" in WT else "")
op(f"ds_read_b128 {V(32,4)}, {V(18)}")
op(f"ds_read_b128 {V(36,4)}, {V(18)} offset:{8*144}")
op(f"buffer_store_dwordx4 {V(32,4)}, {V(20)}, {S(sOUT,4)}, {S(sT0)} offen{OM}")
op(f"buffer_store_dwordx4 {V(36,4)}, {V(20)}, {S(sOUT,4)}, {S(sT1)} offen{OM}")
if PROF:
    e.wait(vm=0)
    stamp("end")
    op(f"s_memtime {S(sPA,2)}")
    e.wait(lg=0)
    op(f"v_writelane_b32 {V(vST)}, {S(sPA)}, 61")
    op(f"s_lshl_b32 {S(sT0)}, {S(sG)}, 4")
    op(f"s_add_u32 {S(sT0)}, {S(sT0)}, {S(sM)}")
    op(f"s_lshl_b32 {S(sT0)}, {S(sT0)}, 2")
    op(f"s_add_u32 {S(sT0)}, {S(sT0)}, {S(sW)}")
    op(f"s_lshl_b32 {S(sT0)}, {S(sT0)}, 8")
    op(f"s_add_u32 {S(sT0)}, {S(sT0)}, {hx(WS_PROF)}")
    op(f"v_writelane_b32 {V(vST)}, {S(sFAST)}, 62")
    op(f"v_writelane_b32 {V(vST)}, {S(sXCC)}, 63")
    op(f"v_lshlrev_b32 {V(17)}, 2, {V(vL)}")
    op(f"buffer_store_dword {V(vST)}, {V(17)}, {S(sWS,4)}, {S(sT0)} offen")
e.label("L_end")
op("s_endpgm")

hdr = open("cdna_kernels/" + NAME + ".s.ref").read().split("; Override launch")[0]
txt = hdr
txt += "; One persistent launch: 256 workgroups (one per CU), five phases handed over through d_ws.\n"
txt += f"; @launch grid=(256,1,1) block=(256,1,1) lds={LDS_BYTES}\n"
txt += f""".amdgcn_target "amdgcn-amd-amdhsa--gfx950"
.text
.globl {KERNEL}
.p2align 8
.type {KERNEL},@function
{KERNEL}:
"""
txt += e.text()
txt += f"""L_code_end:
.section .rodata,"a"
.p2align 6
.amdhsa_kernel {KERNEL}
  .amdhsa_next_free_vgpr 512
  .amdhsa_next_free_sgpr 102
  .amdhsa_accum_offset 256
  .amdhsa_group_segment_fixed_size 0
  .amdhsa_kernarg_size 88
  .amdhsa_user_sgpr_count 2
  .amdhsa_user_sgpr_kernarg_segment_ptr 1
  .amdhsa_system_sgpr_workgroup_id_x 1
  .amdhsa_float_denorm_mode_32 3
.end_amdhsa_kernel
"""
out = [a for a in sys.argv[1:] if a.endswith(".s")]
open(out[0] if out else "out.s", "w").write(txt)
print("instructions", e.n_ins, "nops", e.n_nop, file=sys.stderr)
if PROF:
    open("stamps.txt", "w").write("\n".join(stamp_names) + "\n")
```

```python
import sys, math, struct
from emit import Emitter, V, A, S, interleave

NAME = "sequential_preLN__sliding_block__mixer_channel_mlp__prompt"
PROF = "--prof" in sys.argv
SLOW = "--slow" in sys.argv
CYC = "--cyc" in sys.argv
TLBW = "--notlb" not in sys.argv
PFL2 = "--pfw2" in sys.argv
SCOUT = "--noscout" not in sys.argv
PFW1 = "--pfw1" in sys.argv

def f2u(x):
    return struct.unpack("<I", struct.pack("<f", x))[0]
def hx(x):
    return f"0x{x & 0xffffffff:x}"

WS_E, WS_CEN, WS_GF, WS_HALO = 0x0, 0x400, 0x1000, 0x2000
WS_K, WS_V, WS_O, WS_H, WS_G = 0x10000, 0x210000, 0x410000, 0x610000, 0x810000
WS_ST = 0xF20000
WS_PROF = 0xFB0000
WS_SIZE = 0x1000000
L_X, L_RING, L_MISC = 0, 65536, 147456
L_EX = L_RING + 2 * 16384
L_QX = L_RING + 3 * 16384 + 4096
L_CQ = L_RING + 3 * 16384
L_R3 = 131072
L_CT = 131072 + 6144
L_SR = 161792
ct_off = lambda nb: (nb >> 1) * 8192 + (nb & 1) * 1024
L_WOS = 131072
L_S2 = 131072
LDS_BYTES = 163840
sX, sWQ, sWO, sW1, sW2, sWS, sOUT, sB1, sB2 = 8, 12, 16, 20, 24, 28, 32, 36, 40
sDBG = 6
sW, sG, sM, sTB, sHQ, sXCC, sBASE, sTHI, sFAST, sELO = range(44, 54)
sT0, sT1, sT2, sT3, sT4, sT5 = range(54, 60)
sWOFF, sP, sT_ = 60, 61, 62
sONES = 63
sCM = 64
sCW, sCX = 64, 72
sLOW = 96
sM16 = 98
sPA, sPB = 100, 4
vL, vL16, vRES, vB2, vST, vTLO, vTHI = 0, 1, 2, 10, 16, 14, 15

e = Emitter()
op = e.op
stamp_n = [0]
stamp_names = []

def stamp(name, pair=None):
    if not PROF:
        return
    pair = sPA if pair is None else pair
    i = stamp_n[0]; stamp_n[0] += 1
    stamp_names.append(name)
    op(f"{'s_memtime' if CYC else 's_memrealtime'} {S(pair,2)}")
    e.wait(lg=0)
    op(f"v_writelane_b32 {V(vST)}, {S(pair)}, {i}")

def srd(dst, src, size):
    op(f"s_mov_b32 {S(dst)}, {S(src)}")
    op(f"s_and_b32 {S(dst+1)}, {S(src+1)}, 0xffff")
    op(f"s_mov_b32 {S(dst+2)}, {hx(size)}")
    op(f"s_mov_b32 {S(dst+3)}, 0x20000")

def dma(voff, srdreg, soff, imm=0, mods=""):
    o = f" offset:{imm}" if imm else ""
    return op(f"buffer_load_dwordx4 {V(voff)}, {S(srdreg,4)}, {soff} offen{o}{mods} lds")

def mfma(d, a, b, c):
    op(f"v_mfma_f32_32x32x16_bf16 {d}, {a}, {b}, {c}")

def halves_sum(r, tmp):
    op(f"v_mov_b32 {V(tmp)}, {V(r)}")
    op(f"v_permlane32_swap_b32 {V(r)}, {V(tmp)}")
    op(f"v_add_f32 {V(r)}, {V(r)}, {V(tmp)}")

def split_hi_lo(val, hi_pk, lo, tmp):
    op(f"v_cvt_pk_bf16_f32 {V(hi_pk)}, {V(val)}, {V(val)}")
    op(f"v_and_b32 {V(tmp)}, 0xffff0000, {V(hi_pk)}")
    op(f"v_sub_f32 {V(lo)}, {V(val)}, {V(tmp)}")

def poll(voff, soff, need_mask, lo_expect, span, tlo, thi, code):
    L = e.fresh("poll"); D = e.fresh("polldone"); T = e.fresh("pollto")
    op(f"s_mov_b32 {S(sT5)}, 0x40000")
    e.wait(vm=0, lg=0)
    e.loop_label(L)
    op(f"buffer_load_dwordx2 {V(tlo,2)}, {V(voff)}, {S(sWS,4)}, {soff} offen sc1")
    e.wait(vm=0)
    op(f"v_subrev_u32 {V(tlo)}, {lo_expect}, {V(tlo)}")
    op(f"v_cmp_eq_u32 vcc, {thi}, {V(tlo+1)}")
    op(f"v_cmp_gt_u32 {S(sPA,2)}, {span}, {V(tlo)}")
    op(f"s_and_b64 vcc, vcc, {S(sPA,2)}")
    op(f"s_andn2_b64 {S(sPA,2)}, {need_mask}, vcc")
    op(f"s_cbranch_scc0 {D}")
    op(f"s_sub_u32 {S(sT5)}, {S(sT5)}, 1")
    op(f"s_cbranch_scc1 {T}")
    op(f"s_branch {L}")
    e.label(T)
    op(f"v_mov_b32 {V(tlo)}, {code}")
    op(f"v_mov_b32 {V(tlo+1)}, 0")
    op(f"global_store_dword {V(tlo+1)}, {V(tlo)}, {S(sDBG,2)}")
    e.wait(vm=0)
    e.label(D)

WT = (sys.argv[sys.argv.index("--wt")+1] if "--wt" in sys.argv else "ohg")
def stores_mode(fn, cls="f"):
    if cls in WT:
        fn(" sc1")
        return
    F = e.fresh("fast"); D = e.fresh("stdone")
    op(f"s_cmp_eq_u32 {S(sFAST)}, 1")
    op(f"s_cbranch_scc1 {F}")
    fn(" sc1")
    op(f"s_branch {D}")
    e.label(F)
    fn("")
    e.label(D)

def wave0(fn):
    D = e.fresh("w0")
    op(f"s_cmp_lg_u32 {S(sW)}, 0")
    op(f"s_cbranch_scc1 {D}")
    fn()
    e.label(D)

def group_signal(phase):
    e.wait(vm=0)
    e.barrier()
    def f():
        op(f"s_add_u32 {S(sT0)}, {S(sBASE)}, {8+phase}")
        op(f"v_mov_b32 {V(18)}, {S(sT0)}")
        op(f"v_mov_b32 {V(19)}, {S(sTHI)}")
        op(f"s_lshl_b32 {S(sT1)}, {S(sG)}, 7")
        op(f"s_lshl_b32 {S(sT2)}, {S(sM)}, 3")
        op(f"s_add_u32 {S(sT1)}, {S(sT1)}, {S(sT2)}")
        op(f"s_add_u32 {S(sT1)}, {S(sT1)}, {hx(WS_GF)}")
        op(f"v_mov_b32 {V(17)}, 0")
        op("s_mov_b64 exec, 1")
        stores_mode(lambda m: op(f"buffer_store_dwordx2 {V(18,2)}, {V(17)}, {S(sWS,4)}, {S(sT1)} offen{m}"))
        op("s_mov_b64 exec, -1")
    wave0(f)

def group_wait(phase, mask_fn):
    def f():
        mask_fn()
        op(f"v_and_b32 {V(17)}, 15, {V(vL)}")
        op(f"v_lshlrev_b32 {V(17)}, 3, {V(17)}")
        op(f"s_lshl_b32 {S(sT1)}, {S(sG)}, 7")
        op(f"s_add_u32 {S(sT1)}, {S(sT1)}, {hx(WS_GF)}")
        op(f"s_add_u32 {S(sT0)}, {S(sBASE)}, {8+phase}")
        poll(17, S(sT1), S(sT2,2), S(sT0), 4-phase, 18, S(sTHI), 0x100+phase)
    wave0(f)
    e.barrier()

from collections import deque
sBG = 3
bg = deque()
def tick(n=1):
    for _ in range(n):
        if bg:
            bg.popleft()()
def drain():
    while bg:
        bg.popleft()()

KERNEL = NAME + "_kernel"
op("s_cmp_ge_u32 s2, 0x100")
op("s_cbranch_scc1 L_end")
op("s_load_dwordx16 s[44:59], s[0:1], 0")
op("s_load_dwordx4 s[60:63], s[0:1], 64")
op("s_load_dwordx2 s[4:5], s[0:1], 80")
op("s_getpc_b64 s[92:93]")
e.label("L_pc")
op("v_and_b32 v17, 15, v0")
op("v_lshrrev_b32 v18, 6, v0")
op("v_lshl_add_u32 v17, v18, 4, v17")
op("s_lshr_b32 s97, s2, 3")
op("s_lshl_b32 s96, s97, 4")
op("v_and_b32 v19, 3, v0")
op("v_lshl_add_u32 v19, v18, 2, v19")
op("v_add_u32 v19, s96, v19")
op("v_add_u32 v19, 64, v19")
op("v_and_b32 v18, 16, v0")
op("v_cmp_eq_u32 vcc, 0, v18")
op(f"s_sub_u32 s92, s92, L_pc-{KERNEL}")
op("s_subb_u32 s93, s93, 0")
op("v_cndmask_b32 v17, v19, v17, vcc")
op("v_lshlrev_b32 v17, 7, v17")
op(f"v_min_u32 v17, L_code_end-{KERNEL}-4, v17")
op("s_mov_b64 exec, 0xfffff")
op("global_load_dword v242, v17, s[92:93]")
op("s_mov_b64 exec, -1")
vXD0, vXD1, vWD0, vWD1 = 192, 193, 194, 195
vXR = 196
vWRe, vWRo, vWReH, vWRoH = 200, 201, 202, 203
vWD = 20
op(f"v_lshrrev_b32 {V(17)}, 6, v0")
op(f"v_and_b32 {V(vL)}, 63, v0")
op(f"v_readfirstlane_b32 s3, {V(17)}")
op(f"v_lshlrev_b32 {V(vL16)}, 4, {V(vL)}")
if PROF:
    op(f"v_mov_b32 {V(vST)}, 0")
op(f"v_lshrrev_b32 {V(17)}, 3, {V(vL)}")
op(f"v_lshrrev_b32 {V(18)}, 4, {V(vL)}")
op(f"v_and_b32 {V(19)}, 7, {V(vL)}")
op(f"v_xor_b32 {V(vXD0)}, {V(19)}, {V(18)}")
op(f"v_lshlrev_b32 {V(vXD0)}, 4, {V(vXD0)}")
op(f"v_lshl_add_u32 {V(vXD0)}, {V(17)}, 10, {V(vXD0)}")
op(f"v_and_b32 {V(18)}, 1, {V(18)}")
op(f"v_lshlrev_b32 {V(18)}, 2, {V(18)}")
op(f"v_xor_b32 {V(19)}, {V(19)}, {V(18)}")
op(f"v_lshlrev_b32 {V(19)}, 4, {V(19)}")
op(f"v_mul_u32_u24 {V(vWD0)}, 3072, {V(17)}")
op(f"v_add_u32 {V(vWD0)}, {V(vWD0)}, {V(19)}")
op(f"v_lshl_add_u32 {V(vWD)}, {V(17)}, 10, {V(19)}")
op("s_lshr_b32 s97, s2, 3")
op("s_and_b32 s96, s2, 7")
op("s_lshl_b32 s96, s96, 1")
op("s_lshr_b32 s98, s97, 4")
op("s_add_u32 s96, s96, s98")
op("s_and_b32 s98, s97, 15")
op("s_lshr_b32 s99, s98, 3")
op("s_lshl_b32 s100, s96, 1")
op("s_add_u32 s99, s99, s100")
op("s_and_b32 s100, s98, 7")
op("s_and_b32 s101, s99, 3")
op("s_lshl_b32 s101, s101, 1")
op("s_add_u32 s101, s101, s100")
op("s_lshl_b32 s64, s99, 16")
op("s_lshl_b32 s65, s3, 14")
op("s_add_u32 s64, s64, s65")
op(f"v_add_u32 {V(vXD0)}, s64, {V(vXD0)}")
op(f"v_xor_b32 {V(vXD1)}, 64, {V(vXD0)}")
op(f"v_add_u32 {V(vXD1)}, {8192-1024}, {V(vXD1)}")
op(f"s_mul_i32 s64, s3, {16*3072}")
op("s_lshl_b32 s65, s100, 7")
op("s_add_u32 s64, s64, s65")
op(f"v_add_u32 {V(vWD0)}, s64, {V(vWD0)}")
op(f"v_add_u32 {V(vWD1)}, {8*3072-1024}, {V(vWD0)}")
op(f"v_add_u32 {V(vWD)}, s65, {V(vWD)}")
def chunk_offs(i):
    op(f"s_add_u32 s2, s101, {i}")
    op("s_and_b32 s2, s2, 7")
    op(f"s_lshl_b32 {S(sCX+i)}, s2, 7")
    op(f"s_mul_i32 {S(sCW+i)}, s2, {64*3072}")
for i in range(8):
    chunk_offs(i)
e.wait(lg=0)
stamp("t0", 88)
op("s_mov_b32 s0, s3")
srd(sX, 44, 2048*1024)
srd(sWQ, 46, 512*3072)
op(f"s_lshl_b32 s1, s0, 11")

xtok, itok = {}, {}
def x_acts(i, woff):
    def a0():
        op(f"s_add_u32 m0, {woff}, {L_X + i*8192}")
        dma(vXD0, sX, S(sCX+i))
    def a1():
        xtok[i] = dma(vXD1, sX, S(sCX+i), 1024)
    return [a0, a1]
def item_acts(it, woff):
    slot = it % 5
    acts = []
    for sg in range(2):
        ch, seg = (it, 1 + sg) if it < 8 else (2*(it-8) + sg, 0)
        def a0(sg=sg, ch=ch, seg=seg):
            op(f"s_add_u32 m0, {woff}, {L_RING + slot*16384 + sg*8192}")
            op(f"s_add_u32 {S(sBG)}, {S(sCW+ch)}, {seg*1024}")
            dma(vWD0, sWQ, S(sBG))
        def a1():
            itok[it] = dma(vWD1, sWQ, S(sBG), 1024)
        acts += [a0, a1]
    return acts
for a in x_acts(0, "s1") + item_acts(0, "s1"):
    a()
pro = []
class Rec:
    def __enter__(self):
        global op
        self.old = op
        op = lambda t: pro.append(t)
    def __exit__(self, *a):
        global op
        op = self.old
aK, aV, aQ, aR = 32, 48, 64, 80
XF, WF = 96, 112
sx0, sx1, sq0, sq1, cK0, cK1, cV0, cV1 = range(144, 152)
SF, CFK, CFV, RF, ONF, OCF = 160, 164, 168, 172, 176, 204
aKT, aVT = 0, 40
MK = 22
def tr_base128(dst, half_mul, tmp):
    op(f"v_bfe_u32 {V(tmp)}, {V(vL)}, 2, 2")
    op(f"v_lshlrev_b32 {V(dst)}, 7, {V(tmp)}")
    op(f"v_lshrrev_b32 {V(tmp)}, 1, {V(tmp)}")
    op(f"v_lshl_add_u32 {V(dst)}, {V(tmp)}, 6, {V(dst)}")
    op(f"v_bfe_u32 {V(tmp)}, {V(vL)}, 4, 1")
    op(f"v_lshl_add_u32 {V(dst)}, {V(tmp)}, 5, {V(dst)}")
    op(f"v_and_b32 {V(tmp)}, 3, {V(vL)}")
    op(f"v_lshl_add_u32 {V(dst)}, {V(tmp)}, 3, {V(dst)}")
    op(f"v_lshrrev_b32 {V(tmp)}, 5, {V(vL)}")
    op(f"v_lshl_add_u32 {V(dst)}, {V(tmp)}, {half_mul}, {V(dst)}")
with Rec():
    srd(sWS, 4, WS_SIZE)
    op(f"s_add_u32 s4, s99, 1")
    op(f"v_add_u32 {V(18)}, s4, {V(vL)}")
    op(f"v_lshrrev_b32 {V(18)}, 1, {V(18)}")
    op(f"v_min_u32 {V(18)}, 15, {V(18)}")
    op(f"v_mov_b32 {V(19)}, s96")
    op(f"v_cmp_gt_u32 vcc, 4, {V(vL)}")
    srd(sWO, 48, 512*1024)
    op(f"v_cndmask_b32 {V(18)}, {V(19)}, {V(18)}, vcc")
    op(f"v_lshlrev_b32 {V(18)}, 3, {V(18)}")
    op(f"buffer_load_dwordx2 {V(vTLO,2)}, {V(18)}, {S(sWS,4)}, 0 offen sc1")
    srd(sW1, 52, 512*3584)
    srd(sB1, 54, 1792*2)
    srd(sW2, 56, 1792*1024)
    srd(sB2, 58, 1024)
    srd(sOUT, 60, 2048*1024)
    op(f"s_mov_b64 {S(sDBG,2)}, s[62:63]")
    op(f"s_mov_b32 {S(sW)}, s0")
    op(f"s_mov_b32 {S(sG)}, s96")
    op(f"s_mov_b32 {S(sM)}, s98")
    op(f"s_mov_b32 {S(sTB)}, s99")
    op(f"s_mov_b32 {S(sHQ)}, s100")
    op(f"s_mov_b32 {S(sWOFF)}, s1")
    op(f"s_lshr_b32 {S(sP)}, {S(sW)}, 1")
    op(f"s_and_b32 {S(sT_)}, {S(sW)}, 1")
    op(f"s_mov_b32 {S(sONES)}, 0x3f803f80")
    op(f"s_sub_u32 s0, s100, s101")
    op(f"s_and_b32 s0, s0, 7")
    op(f"s_lshl_b32 s0, s0, 13")
    op(f"s_xor_b32 {S(sT3)}, {S(sP)}, {S(sT_)}")
    op(f"v_and_b32 {V(17)}, 31, {V(vL)}")
    op(f"v_lshrrev_b32 {V(18)}, 5, {V(vL)}")
    op(f"v_bfe_u32 {V(32)}, {V(vL)}, 1, 3")
    op(f"v_xor_b32 {V(32)}, {V(32)}, {V(18)}")
    op(f"v_lshlrev_b32 {V(32)}, 4, {V(32)}")
    op(f"v_lshl_add_u32 {V(32)}, {V(17)}, 7, {V(32)}")
    op(f"s_lshl_b32 {S(sT1)}, {S(sT_)}, 12")
    op(f"v_add_u32 {V(32)}, {S(sT1)}, {V(32)}")
    op(f"s_lshl_b32 {S(sT1)}, {S(sT3)}, 5")
    op(f"v_xor_b32 {V(32)}, {S(sT1)}, {V(32)}")
    for s_ in range(4):
        op(f"v_xor_b32 {V(vXR+s_)}, {s_<<5}, {V(32)}")
    tr_base128(33, 10, 34)
    op(f"s_lshl_b32 {S(sT1)}, {S(sP)}, 6")
    op(f"v_xor_b32 {V(33)}, {S(sT1)}, {V(33)}")
    op(f"v_add_u32 {V(33)}, {L_RING}, {V(33)}")
    op(f"s_lshl_b32 {S(sT1)}, {S(sT3)}, 11")
    op(f"v_add_u32 {V(vWRe)}, {S(sT1)}, {V(33)}")
    op(f"v_subrev_u32 {V(vWRo)}, {S(sT1)}, {V(33)}")
    op(f"v_add_u32 {V(vWReH)}, 0x10000, {V(vWRe)}")
    op(f"v_add_u32 {V(vWRoH)}, 0x10000, {V(vWRo)}")
    op(f"s_mov_b32 {S(sLOW)}, -1")
    op(f"s_mov_b32 {S(sLOW+1)}, 0")
    op(f"s_mov_b32 {S(sM16)}, 0xffff")
    op(f"s_mov_b32 {S(sM16+1)}, 0xffff")
    op(f"s_getreg_b32 {S(sXCC)}, hwreg(HW_REG_XCC_ID, 0, 4)")
    for r in list(range(144, 152)) + [SF+2, SF+3, CFK+2, CFK+3, CFV+2, CFV+3, RF+1, RF+2, RF+3, ONF+1, ONF+2, ONF+3]:
        op(f"v_mov_b32 {V(r)}, 0")
    op(f"v_mov_b32 {V(ONF)}, {S(sONES)}")
    op(f"v_lshlrev_b32 {V(18)}, 2, {V(18)}")
    op(f"v_sub_u32 {V(17)}, {V(17)}, {V(18)}")
    op(f"v_mov_b32 {V(18)}, 0xffff")
    op(f"v_mov_b32 {V(19)}, 0xffff0000")
    for i in range(8):
        c0 = 8*((2*i) >> 2) + ((2*i) & 3)
        op(f"v_cmp_le_i32 vcc, {c0}, {V(17)}")
        op(f"v_cmp_le_i32 {S(sPA,2)}, {c0+1}, {V(17)}")
        op(f"v_cndmask_b32 {V(32)}, 0, {V(18)}, vcc")
        op(f"v_cndmask_b32 {V(MK+i)}, 0, {V(19)}, {S(sPA,2)}")
        op(f"v_or_b32 {V(MK+i)}, {V(MK+i)}, {V(32)}")
    op(f"v_mov_b32 {V(32)}, 0x3afe3f80")
    op(f"v_cndmask_b32 {V(RF)}, 0, {V(32)}, {S(sLOW,2)}")
    op("s_nop 0")
    for k_ in range(5):
        mfma(A(aVT+16*k_,16), V(RF,4), V(ONF,4), "0")
acts = x_acts(1, "s1") + item_acts(1, "s1")
nper = 6
k = 0
masked = False
due = 0
for i, t in enumerate(pro):
    if t.startswith("LABEL"):
        e.label(t.split()[1])
    else:
        op(t)
    if t.startswith("s_mov_b64 exec"):
        masked = not t.endswith("-1")
    if (i + 1) % nper == 0:
        due += 1
    if due and k < len(acts) and not masked and not t.startswith(("s_getpc", "LABEL", "s_sub_u32 s100")):
        acts[k](); k += 1; due -= 1
for f in acts[k:]:
    f()
stamp("start")
if PROF:
    pass

def w_read_ops(it, sg, s, d):
    slot = it % 5
    base = (vWRe if s % 2 == 0 else vWRo) if slot < 4 else (vWReH if s % 2 == 0 else vWRoH)
    off = (slot % 4) * 16384 + sg*8192 + s*2048
    return [f"ds_read_b64_tr_b16 {V(d,2)}, {V(base)} offset:{off}",
            f"ds_read_b64_tr_b16 {V(d+2,2)}, {V(base)} offset:{off+512}"]
def x_read_op(ch, s, d):
    return f"ds_read_b128 {V(d,4)}, {V(vXR+s)} offset:{L_X + ch*8192}"
def dot_ones(acc, r):
    return f"v_dot2c_f32_bf16 {V(acc)}, {S(sONES)}, {V(r)}"
def dot_sq(acc, r):
    return f"v_dot2c_f32_bf16 {V(acc)}, {V(r)}, {V(r)}"

def late_loads():
    if SCOUT:
        op(f"s_lshl_b32 {S(sT1)}, {S(sG)}, 4")
        op(f"s_add_u32 {S(sT1)}, {S(sT1)}, {S(sM)}")
        op(f"s_lshl_b32 {S(sT1)}, {S(sT1)}, 2")
        op(f"s_add_u32 {S(sT1)}, {S(sT1)}, {S(sW)}")
        op(f"v_lshlrev_b32 {V(17)}, 7, {V(vL)}")
        op(f"s_mul_i32 {S(sT2)}, {S(sT1)}, {14*128}")
        op(f"s_mov_b64 exec, 0x3fff")
        op(f"buffer_load_dword {V(243)}, {V(17)}, {S(sW1,4)}, {S(sT2)} offen")
        op(f"buffer_load_dword {V(244)}, {V(17)}, {S(sW2,4)}, {S(sT2)} offen")
        op("s_mov_b64 exec, -1")
def small_loads():
    op(f"v_lshrrev_b32 {V(17)}, 5, {V(vL)}")
    op(f"v_lshlrev_b32 {V(17)}, 3, {V(17)}")
    op(f"s_lshl_b32 {S(sT1)}, {S(sHQ)}, 7")
    op(f"s_lshl_b32 {S(sT2)}, {S(sW)}, 5")
    op(f"s_add_u32 {S(sT1)}, {S(sT1)}, {S(sT2)}")
    op(f"buffer_load_dwordx2 {V(vB2,2)}, {V(17)}, {S(sB2,4)}, {S(sT1)} offen")
    op(f"buffer_load_dwordx2 {V(vB2+2,2)}, {V(17)}, {S(sB2,4)}, {S(sT1)} offen offset:16")
    if TLBW:
        op(f"v_lshlrev_b32 {V(17)}, 21, {V(vL)}")
        op(f"v_add_u32 {V(17)}, 0xc000, {V(17)}")
        op(f"s_mov_b64 exec, 0xff")
        op(f"buffer_load_dword {V(241)}, {V(17)}, {S(sWS,4)}, 0 offen")
        op(f"s_mov_b64 exec, 1")
        op(f"buffer_load_dword {V(240)}, {V(vL)}, {S(sOUT,4)}, 0 offen")
        op("s_mov_b64 exec, -1")
    if SCOUT:
        op(f"s_lshl_b32 {S(sT1)}, {S(sG)}, 4")
        op(f"s_add_u32 {S(sT1)}, {S(sT1)}, {S(sM)}")
        op(f"s_lshl_b32 {S(sT1)}, {S(sT1)}, 2")
        op(f"s_add_u32 {S(sT1)}, {S(sT1)}, {S(sW)}")
        op(f"v_lshlrev_b32 {V(17)}, 7, {V(vL)}")
        op(f"s_lshl_b32 {S(sT1)}, {S(sT1)}, 9")
        op(f"s_mov_b64 exec, 0xf")
        op(f"buffer_load_dword {V(245)}, {V(17)}, {S(sWO,4)}, {S(sT1)} offen")
        op("s_mov_b64 exec, -1")
def spread(lst, k, n):
    return lst[len(lst)*k//n : len(lst)*(k+1)//n]
def record(fn):
    global op
    old = op; lst = []
    op = lambda t: lst.append(t)
    fn()
    op = old
    return lst
def l2_warm(srdreg, lines_per_wg, k, vPF=239):
    per_wave = lines_per_wg // 4
    op(f"s_and_b32 {S(sT1)}, {S(sG)}, 1")
    op(f"s_lshl_b32 {S(sT1)}, {S(sT1)}, 4")
    op(f"s_add_u32 {S(sT1)}, {S(sT1)}, {S(sM)}")
    op(f"s_lshl_b32 {S(sT1)}, {S(sT1)}, 2")
    op(f"s_add_u32 {S(sT1)}, {S(sT1)}, {S(sW)}")
    op(f"s_mul_i32 {S(sT1)}, {S(sT1)}, {per_wave*128}")
    op(f"v_add_u32 {V(17)}, {64*k}, {V(vL)}")
    op(f"v_min_u32 {V(17)}, {per_wave-1}, {V(17)}")
    op(f"v_lshlrev_b32 {V(17)}, 7, {V(17)}")
    op(f"buffer_load_dword {V(vPF)}, {V(17)}, {S(srdreg,4)}, {S(sT1)} offen")
import os
XK = os.environ.get("XK", "")
def kv_reads(it, s):
    if "r" in XK and it > 0: return
    e.ops([x_read_op(it, s, XF+4*s)] + w_read_ops(it, 0, s, WF+4*s) + w_read_ops(it, 1, s, WF+16+4*s))
def mK(s, first=False):
    mfma(V(aK,16), V(WF+4*s,4), V(XF+4*s,4), "0" if first else V(aK,16))
def mV(s, first=False):
    mfma(V(aV,16), V(XF+4*s,4), V(WF+16+4*s,4), "0" if first else V(aV,16))
def kv_dots(mid=None):
    if "d" in XK:
        if mid: mid(); mid()
        return
    for s in (1, 3):
        x = XF+4*s; k = WF+4*s; v = WF+16+4*s
        for j in range(4):
            op(dot_ones(sx0 if j % 2 == 0 else sx1, x+j))
            op(dot_sq(sq0 if j % 2 == 0 else sq1, x+j))
            op(dot_ones(cK0 if j % 2 == 0 else cK1, k+j))
            op(dot_ones(cV0 if j % 2 == 0 else cV1, v+j))
        if mid: mid()
for it in range(8):
    e.wait_tok(xtok[it], itok[it])
    if it == 0:
        op(f"v_add_u32 {V(vTHI)}, 0x9e3779b9, {V(vTHI)}")
        op(f"v_readlane_b32 {S(sELO)}, {V(vTLO)}, 4")
        op(f"v_add_u32 {V(vTLO)}, 1, {V(vTLO)}")
        op(f"v_lshlrev_b32 {V(vTLO)}, 4, {V(vTLO)}")
        op(f"v_readlane_b32 {S(sTHI)}, {V(vTHI)}, 4")
        op(f"v_readlane_b32 {S(sBASE)}, {V(vTLO)}, 4")
    e.wait(lg=0)
    e.barrier()
    stamp(f"it{it}")
    if it == 0 and PROF:
        op(f"s_memtime {S(sPA,2)}")
        e.wait(lg=0)
        op(f"v_writelane_b32 {V(vST)}, {S(sPA)}, 60")
    if "m" in XK:
        xtok[it+3] = itok[it+3] = itok[11] = None
    else:
        if it == 0:
            bg.extend(x_acts(2, S(sWOFF)) + item_acts(2, S(sWOFF)))
        if it + 3 < 8:
            bg.extend(x_acts(it+3, S(sWOFF)))
        bg.extend(item_acts(it+3, S(sWOFF)))
        if it == 7:
            bg.extend(item_acts(11, S(sWOFF)))
    if it > 0: mK(3)
    kv_reads(it, 0)
    if it > 0: mV(3)
    kv_reads(it, 2)
    tick(1)
    if it > 0:
        kv_dots(tick)
    else:
        def census():
            op(f"s_add_u32 {S(sT0)}, {S(sBASE)}, {S(sXCC)}")
            op(f"v_mov_b32 {V(18)}, {S(sT0)}")
            op(f"v_mov_b32 {V(19)}, {S(sTHI)}")
            op(f"s_lshl_b32 {S(sT1)}, {S(sG)}, 7")
            op(f"s_lshl_b32 {S(sT2)}, {S(sM)}, 3")
            op(f"s_add_u32 {S(sT1)}, {S(sT1)}, {S(sT2)}")
            op(f"v_mov_b32 {V(17)}, 0")
            op("s_mov_b64 exec, 1")
            op(f"buffer_store_dwordx2 {V(18,2)}, {V(17)}, {S(sWS,4)}, {S(sT1)} offen offset:{WS_CEN} sc1")
            op("s_mov_b64 exec, -1")
        tick(3)
        wave0(census)
        tick(3)
    mK(0, it == 0); kv_reads(it, 1)
    mV(0, it == 0); kv_reads(it, 3)
    mK(2); tick(1)
    mV(2)
    if it in (0, 7): tick(1)
    if it == 5: small_loads()
    mK(1); tick(1)
    mV(1); tick(1)
    if it in (0, 7):
        drain()
    assert not bg
stamp("p1_kvloop")

vMU, vT0, vT1, vT2 = 152, 153, 154, 155
vR = 156
EXV, EXP = 184, 188
vVS, vKW, vVW, vVR = 180, 181, 182, 183
vCX = 17
kv_dots()
mK(3)
op(f"v_add_f32 {V(EXV)}, {V(cK0)}, {V(cK1)}")
op(f"v_add_f32 {V(EXV+1)}, {V(cV0)}, {V(cV1)}")
op(f"v_add_f32 {V(EXV+2)}, {V(sx0)}, {V(sx1)}")
op(f"v_add_f32 {V(EXV+3)}, {V(sq0)}, {V(sq1)}")
for k in range(4):
    op(f"v_mov_b32 {V(EXP+k)}, {V(EXV+k)}")
mV(3)
op(f"s_lshl_b32 {S(sT1)}, {S(sW)}, 10")
op(f"s_add_u32 {S(sT1)}, {S(sT1)}, {L_MISC}")
for k in range(4):
    op(f"v_permlane32_swap_b32 {V(EXV+k)}, {V(EXP+k)}")
op(f"v_add_u32 {V(vCX)}, {S(sT1)}, {V(vL16)}")
for k in range(4):
    op(f"v_add_f32 {V(EXV+k)}, {V(EXV+k)}, {V(EXP+k)}")
op(f"ds_write_b128 {V(vCX)}, {V(EXV,4)}")
op(f"v_xor_b32 {V(18)}, 1024, {V(vCX)}")
op(f"v_xor_b32 {V(19)}, 2048, {V(vCX)}")
op(f"v_bfe_u32 {V(vT0)}, {V(vL)}, 4, 1")
op(f"v_lshrrev_b32 {V(vT1)}, 5, {V(vL)}")
op(f"v_and_b32 {V(vVR)}, 15, {V(vL)}")
op(f"v_lshlrev_b32 {V(vVR)}, 4, {V(vVR)}")
op(f"v_lshl_add_u32 {V(vVR)}, {V(vT1)}, 8, {V(vVR)}")
op(f"v_lshl_add_u32 {V(vVS)}, {V(vT0)}, 16, {V(vVR)}")
op(f"v_lshl_add_u32 {V(vVW)}, {V(vT0)}, 11, {V(vVR)}")
op(f"s_lshl_b32 {S(sT0)}, {S(sHQ)}, 1")
op(f"s_add_u32 {S(sT0)}, {S(sT0)}, {S(sP)}")
op(f"s_lshl_b32 {S(sT0)}, {S(sT0)}, 7")
op(f"s_lshl_b32 {S(sT1)}, {S(sTB)}, 1")
op(f"s_add_u32 {S(sT0)}, {S(sT0)}, {S(sT1)}")
op(f"s_add_u32 {S(sT0)}, {S(sT0)}, {S(sT_)}")
e.wait(lg=0)
e.barrier()
op(f"ds_read_b64 {V(EXP+2,2)}, {V(19)} offset:8")
op(f"ds_read_b64 {V(EXP,2)}, {V(18)}")
op(f"s_lshl_b32 {S(sT0)}, {S(sT0)}, 10")
op(f"s_add_u32 {S(sT1)}, {S(sT0)}, {hx(WS_K)}")
op(f"s_add_u32 {S(sT2)}, {S(sT0)}, {hx(WS_K + 65536)}")
op(f"s_add_u32 {S(sT3)}, {S(sT0)}, {hx(WS_V)}")
op(f"s_lshl_b32 s4, {S(sP)}, 12")
op(f"s_lshl_b32 s5, {S(sT_)}, 10")
op(f"s_add_u32 s4, s4, s5")
op(f"s_add_u32 s4, s4, {L_EX}")
op(f"v_add_u32 {V(vKW)}, s4, {V(vL16)}")
op(f"v_add_u32 {V(vVW)}, s4, {V(vVW)}")
op(f"v_add_f32 {V(EXV+2)}, {V(EXV+2)}, {V(EXP+2)}")
op(f"v_add_f32 {V(EXV+3)}, {V(EXV+3)}, {V(EXP+3)}")
op(f"v_mul_f32 {V(vMU)}, {hx(f2u(-1.0/512))}, {V(EXV+2)}")
op(f"v_add_f32 {V(EXV)}, {V(EXV)}, {V(EXP)}")
split_hi_lo(vMU, vT0, vT1, vT2)
op(f"v_cvt_pk_bf16_f32 {V(SF)}, {V(vMU)}, {V(vT1)}")
op(f"v_and_b32 {V(SF+1)}, 0xffff, {V(vT0)}")
split_hi_lo(EXV, CFK, vT1, vT2)
op(f"v_cndmask_b32 {V(SF)}, 0, {V(SF)}, {S(sLOW,2)}")
op(f"v_cndmask_b32 {V(SF+1)}, 0, {V(SF+1)}, {S(sLOW,2)}")
op(f"v_cvt_pk_bf16_f32 {V(CFK+1)}, {V(vT1)}, 0")
op(f"v_add_f32 {V(EXV+1)}, {V(EXV+1)}, {V(EXP+1)}")
op(f"v_mul_f32 {V(vT0)}, {hx(f2u(1.0/512))}, {V(EXV+3)}")
mfma(V(aK,16), V(CFK,4), V(SF,4), V(aK,16))
op(f"v_fma_f32 {V(vT0)}, -{V(vMU)}, {V(vMU)}, {V(vT0)}")
op(f"v_max_f32 {V(vT0)}, 0, {V(vT0)}")
op(f"v_add_f32 {V(vT0)}, {hx(f2u(1e-5))}, {V(vT0)}")
op(f"v_rsq_f32 {V(vR)}, {V(vT0)}")
split_hi_lo(EXV+1, CFV, vT1, vT2)
op(f"v_cvt_pk_bf16_f32 {V(CFV+1)}, {V(vT1)}, 0")
split_hi_lo(vR, vT0, vT1, vT2)
mfma(V(aV,16), V(SF,4), V(CFV,4), V(aV,16))
op(f"v_cvt_pk_bf16_f32 {V(RF)}, {V(vR)}, {V(vT1)}")
op(f"v_cndmask_b32 {V(RF)}, 0, {V(RF)}, {S(sLOW,2)}")
op(f"v_mul_f32 {V(vR+1)}, {hx(f2u(0.25*math.log2(math.e)))}, {V(vR)}")
KP, VP = 96, 104
for i in range(3):
    op(f"v_mul_f32 {V(aK+i)}, {V(aK+i)}, {V(vR)}")
mfma(V(aR,16), V(RF,4), V(ONF,4), "0")
for h in range(2):
    for i in range(3 if h == 0 else 0, 8):
        op(f"v_mul_f32 {V(aK+8*h+i)}, {V(aK+8*h+i)}, {V(vR)}")
    for i in range(4):
        op(f"v_cvt_pk_bf16_f32 {V(KP+4*h+i)}, {V(aK+8*h+2*i)}, {V(aK+8*h+2*i+1)}")
    op(f"buffer_store_dwordx4 {V(KP+4*h,4)}, {V(vL16)}, {S(sWS,4)}, {S(sT1+h)} offen sc1")
for h in range(2):
    for i in range(4):
        op(f"v_pk_mul_f32 {V(aV+8*h+2*i,2)}, {V(aV+8*h+2*i,2)}, {V(aR+8*h+2*i,2)}")
    for i in range(4):
        op(f"v_cvt_pk_bf16_f32 {V(VP+4*h+i)}, {V(aV+8*h+2*i)}, {V(aV+8*h+2*i+1)}")
    kvtok = op(f"buffer_store_dwordx4 {V(VP+4*h,4)}, {V(vVS)}, {S(sWS,4)}, {S(sT3)} offen offset:{512*h} sc1")
stamp("kv_stored")
e.wait_tok(itok[11])
e.barrier()

QB = [(112, 128), (204, 220)]
def q_reads(c):
    xb, wb = QB[c % 2]
    o = []
    for s in range(4):
        o += [x_read_op(c, s, xb+4*s)] + w_read_ops(8 + c//2, c % 2, s, wb+4*s)
    return o
e.ops(q_reads(0))
late_loads()
if PFW1:
    for k in range(2):
        l2_warm(sW1, 448, k, 240+k)
op(f"ds_write_b128 {V(vKW)}, {V(KP,4)}")
op(f"ds_write_b128 {V(vKW)}, {V(KP+4,4)} offset:2048")
op(f"ds_write_b128 {V(vVW)}, {V(VP,4)} offset:8192")
op(f"ds_write_b128 {V(vVW)}, {V(VP+4,4)} offset:{8192+512}")
cQ0, cQ1 = 144, 145
op(f"v_mov_b32 {V(cQ0)}, 0")
op(f"v_mov_b32 {V(cQ1)}, 0")
vWDk = [vWD, 236, 237, 238]
vW1 = [21, 189, 190, 191]
vTR0, vTR1 = 30, 31
WO = 192
sWO_L, sWO_R, sW4K = 0, 2, 1
def wo_like_addr(dst0, dst1, base_sreg, base_imm, tmp=19):
    tr_base128(dst0, 9, tmp)
    op(f"s_lshl_b32 {S(sT1)}, {S(sP)}, 6")
    op(f"s_lshl_b32 {S(sT2)}, {S(sT_)}, 5")
    op(f"s_or_b32 {S(sT1)}, {S(sT1)}, {S(sT2)}")
    op(f"v_xor_b32 {V(dst0)}, {S(sT1)}, {V(dst0)}")
    op(f"s_add_u32 {S(sT1)}, {base_sreg}, {base_imm}")
    op(f"v_add_u32 {V(dst0)}, {S(sT1)}, {V(dst0)}")
    op(f"v_xor_b32 {V(dst1)}, 64, {V(dst0)}")
def w1_addr_rest():
    for k in range(1, 4):
        op(f"v_add_u32 {V(vW1[k])}, {k*(4*3584-1024)}, {V(vW1[0])}")
def side_a():
    op(f"v_and_b32 {V(vT0)}, 31, {V(vL)}")
    op(f"v_bfe_u32 {V(vT1)}, {V(vL)}, 1, 3")
    op(f"s_lshl_b32 {S(sT1)}, {S(sW)}, 1")
    op(f"v_xor_b32 {V(vT1)}, {S(sT1)}, {V(vT1)}")
    op(f"v_lshlrev_b32 {V(vT1)}, 4, {V(vT1)}")
    op(f"v_lshl_add_u32 {V(vT1)}, {V(vT0)}, 7, {V(vT1)}")
    op(f"v_lshrrev_b32 {V(vT0)}, 5, {V(vL)}")
    op(f"v_lshl_add_u32 {V(vT1)}, {V(vT0)}, 3, {V(vT1)}")
    op(f"v_add_u32 {V(vT1)}, s0, {V(vT1)}")
    op(f"v_xor_b32 {V(vT2)}, 16, {V(vT1)}")
    for t in range(2):
        op(f"ds_read_b64 {V(vRES+4*t,2)}, {V(vT1)} offset:{L_X + t*4096}")
        op(f"ds_read_b64 {V(vRES+4*t+2,2)}, {V(vT2)} offset:{L_X + t*4096}")
    for k in range(1, 4):
        op(f"v_add_u32 {V(vWDk[k])}, {k*(8192-1024)}, {V(vWD)}")
    op(f"s_lshl_b32 {S(sWO_L)}, {S(sW)}, 13")
    op(f"s_lshl_b32 {S(sWO_R)}, {S(sW)}, 17")
    op(f"s_lshl_b32 {S(sW4K)}, {S(sW)}, 12")
    op(f"s_add_u32 {S(sT1)}, {S(sTB)}, 1")
    op(f"v_add_u32 {V(148)}, {S(sT1)}, {V(vL)}")
    op(f"v_cmp_gt_u32 vcc, 32, {V(148)}")
    op(f"v_cmp_gt_u32 s[4:5], 4, {V(vL)}")
    op(f"v_lshlrev_b32 {V(148)}, 3, {V(148)}")
    op(f"v_add_u32 {V(148)}, {S(sHQ)}, {V(148)}")
    op(f"v_lshlrev_b32 {V(148)}, 4, {V(148)}")
    op(f"v_add_u32 {V(148)}, {V(148)}, {V(vL)}")
    op(f"v_lshlrev_b32 {V(148)}, 3, {V(148)}")
    op(f"v_add_u32 {V(vTLO)}, 15, {V(vTLO)}")
    op(f"s_and_b64 s[4:5], s[4:5], vcc")
    op(f"v_and_b32 {V(149)}, 15, {V(vL)}")
    op(f"v_lshlrev_b32 {V(149)}, 3, {V(149)}")
def side_b():
    wo_like_addr(vTR0, vTR1, S(sWO_L), L_WOS)
    op(f"v_lshrrev_b32 {V(17)}, 4, {V(vL)}")
    op(f"v_lshlrev_b32 {V(18)}, 2, {V(17)}")
    op(f"v_and_b32 {V(19)}, 15, {V(vL)}")
    op(f"v_xor_b32 {V(18)}, {V(18)}, {V(19)}")
    op(f"v_lshlrev_b32 {V(18)}, 4, {V(18)}")
    op(f"v_mul_u32_u24 {V(vW1[0])}, 3584, {V(17)}")
    op(f"v_add_u32 {V(vW1[0])}, {V(vW1[0])}, {V(18)}")
    op(f"s_mul_i32 {S(sT1)}, {S(sW)}, {16*3584}")
    op(f"s_min_u32 {S(sT2)}, {S(sM)}, 13")
    op(f"s_lshl_b32 {S(sT2)}, {S(sT2)}, 8")
    op(f"s_add_u32 {S(sT1)}, {S(sT1)}, {S(sT2)}")
    op(f"v_add_u32 {V(vW1[0])}, {S(sT1)}, {V(vW1[0])}")
    for r in range(16):
        c0 = 8*(r >> 2) + (r & 3)
        op(f"s_mov_b32 {S(sCM+2*r)}, {hx(0xffffffff << c0)}")
        op(f"s_mov_b32 {S(sCM+2*r+1)}, {hx(0xffffffff << (c0+4))}")
    op(f"v_lshlrev_b32 {V(vCX)}, 2, {V(vL)}")
    op(f"s_lshl_b32 {S(sT1)}, {S(sW)}, 8")
    op(f"s_add_u32 {S(sT1)}, {S(sT1)}, {L_CQ}")
    op(f"v_add_u32 {V(vCX)}, {S(sT1)}, {V(vCX)}")
    op(f"v_add_u32 {V(vKW)}, {L_QX - L_EX}, {V(vKW)}")
    op(f"v_and_b32 {V(150)}, 3, {V(vL)}")
    op(f"v_lshlrev_b32 {V(150)}, 3, {V(150)}")
    op(f"s_lshl_b32 {S(sT4)}, {S(sTB)}, 3")
    op(f"s_add_u32 {S(sT4)}, {S(sT4)}, {S(sHQ)}")
    op(f"s_lshl_b32 {S(sT4)}, {S(sT4)}, 7")
    op(f"s_add_u32 {S(sT4)}, {S(sT4)}, {hx(WS_HALO)}")
sideA = record(side_a); sideB = record(side_b)
def stage_acts(srdreg, lds_sreg, lds_imm, row_sreg, row_imm, n, toks):
    acts = []
    for i in range(n):
        def a(i=i):
            if i % 4 == 0:
                op(f"s_add_u32 m0, {lds_sreg}, {lds_imm + i*1024}")
                op(f"s_add_u32 {S(sBG)}, {row_sreg}, {row_imm + i*8192}")
            toks.append(dma(vWDk[i % 4], srdreg, S(sBG), (i % 4)*1024))
        acts.append(a)
    return acts
wo1, wo2 = [], []
for c in range(8):
    xb, wb = QB[c % 2]
    nxt = q_reads(c+1) if c < 7 else []
    for s in range(4):
        mfma(V(aQ,16), V(wb+4*s,4), V(xb+4*s,4), "0" if (c == 0 and s == 0) else V(aQ,16))
        e.ops(nxt[3*s:3*s+3])
        if c < 3:
            e.ops(spread(sideA, 4*c+s, 12))
        elif c >= 4:
            e.ops(spread(sideB, 4*(c-4)+s, 16))
        if c >= 4 and s % 2 == 1:
            tick(1)
    for s in (1, 3):
        for j in range(4):
            op(dot_ones(cQ0 if j % 2 == 0 else cQ1, wb+4*s+j))
    if c == 3:
        e.wait_tok(kvtok)
        e.barrier()
        def halo_flags():
            D = e.fresh("nohalo")
            op("s_cmp_eq_u64 s[4:5], 0")
            op(f"s_cbranch_scc1 {D}")
            op("s_mov_b64 exec, s[4:5]")
            op(f"s_mov_b32 {S(sT1)}, {hx(WS_HALO)}")
            op(f"buffer_store_dwordx2 {V(vTLO,2)}, {V(148)}, {S(sWS,4)}, {S(sT1)} offen sc1")
            op("s_mov_b64 exec, -1")
            e.label(D)
        wave0(halo_flags)
        stamp("halo_sent")
        op(f"s_lshl_b32 {S(sT1)}, {S(sG)}, 7")
        op(f"buffer_load_dwordx2 {V(146,2)}, {V(149)}, {S(sWS,4)}, {S(sT1)} offen offset:{WS_CEN} sc1")
        bg.extend(stage_acts(sWO, S(sWO_L), L_WOS, S(sWO_R), 0, 8, wo1))
drain()
stamp("q_loop")
op(f"v_add_f32 {V(cQ0)}, {V(cQ0)}, {V(cQ1)}")
halves_sum(cQ0, vT0)
op(f"ds_write_b32 {V(vCX)}, {V(cQ0)}")
op(f"v_xor_b32 {V(vCX)}, 256, {V(vCX)}")
e.wait(lg=0)
e.barrier()
op(f"ds_read_b32 {V(cQ1)}, {V(vCX)}")
op(f"s_add_u32 {S(sT0)}, {S(sBASE)}, {S(sXCC)}")
op(f"v_cmp_eq_u32 vcc, {S(sT0)}, {V(146)}")
op(f"v_cmp_eq_u32 {S(sPA,2)}, {S(sTHI)}, {V(147)}")
op(f"s_and_b64 vcc, vcc, {S(sPA,2)}")
op(f"s_cmp_eq_u64 vcc, -1")
op(f"s_cselect_b32 {S(sFAST)}, {0 if SLOW else 1}, 0")
op(f"v_add_f32 {V(cQ0)}, {V(cQ0)}, {V(cQ1)}")
split_hi_lo(cQ0, CFK, vT1, vT2)
op(f"v_cvt_pk_bf16_f32 {V(CFK+1)}, {V(vT1)}, 0")
mfma(V(aQ,16), V(CFK,4), V(SF,4), V(aQ,16))
def tr_step_ops(dstf, s_local, a0=vTR0, a1=vTR1):
    return [f"ds_read_b64_tr_b16 {dstf(4*u+2*j)}, {V((a0, a1)[u])} offset:{s_local*2048+j*1024}" for u in range(2) for j in range(2)]
e.wait_tok(wo1[-1])
for s in range(3):
    e.ops(tr_step_ops(lambda o: V(WO+8*s+o, 2), s))
for i in range(8):
    op(f"v_pk_mul_f32 {V(aQ+2*i,2)}, {V(aQ+2*i,2)}, {V(vR,2)} op_sel:[0,1] op_sel_hi:[1,1]")
for i in range(8):
    op(f"v_cvt_pk_bf16_f32 {V(KP+i)}, {V(aQ+2*i)}, {V(aQ+2*i+1)}")
op(f"ds_write_b128 {V(vKW)}, {V(KP,4)}")
op(f"ds_write_b128 {V(vKW)}, {V(KP+4,4)} offset:2048")
e.ops(tr_step_ops(lambda o: V(WO+24+o, 2), 3))
wave0(lambda: op(f"buffer_load_dwordx2 {V(148,2)}, {V(150)}, {S(sWS,4)}, {S(sT4)} offen sc1"))
Q0 = 32
op(f"s_lshl_b32 {S(sT1)}, {S(sW)}, 11")
op(f"v_add_u32 {V(17)}, {S(sT1)}, {V(vL16)}")
op(f"v_add_u32 {V(18)}, {L_QX}, {V(17)}")
op(f"v_add_u32 {V(17)}, {L_EX}, {V(17)}")
op(f"s_add_u32 {S(sT1)}, {S(sT1)}, {L_EX + 8192}")
op(f"v_add_u32 {V(19)}, {S(sT1)}, {V(vVR)}")
w1_addr_rest()
e.wait(lg=0)
wo2acts = stage_acts(sWO, S(sWO_L), L_WOS, S(sWO_R), 8*8192, 8, wo2)
for f in wo2acts[:4]: f()
e.barrier()
for t in range(2):
    op(f"ds_read_b128 {V(Q0+4*t,4)}, {V(18)} offset:{t*1024}")
    op(f"ds_read_b128 {A(aKT+4*(8+t),4)}, {V(17)} offset:{t*1024}")
op(f"s_mov_b64 exec, {S(sM16,2)}")
for t in range(2):
    for st in range(2):
        op(f"ds_read_b128 {A(aVT+8*(8+t)+4*st,4)}, {V(19)} offset:{t*1024+st*512}")
op("s_mov_b64 exec, -1")
for f in wo2acts[4:]: f()
def w1_acts(G):
    acts = []
    for k in range(4):
        def a(k=k):
            if k == 0:
                op(f"s_add_u32 m0, {S(sW4K)}, {G*16384}")
                op(f"s_mov_b32 {S(sBG)}, {G*64*3584}")
            dma(vW1[k], sW1, S(sBG), k*1024)
        acts.append(a)
    return acts
op(f"s_lshl_b32 {S(sT0)}, {S(sHQ)}, 2")
op(f"s_add_u32 {S(sT0)}, {S(sT0)}, {S(sW)}")
op(f"s_lshl_b32 {S(sT0)}, {S(sT0)}, 6")
op(f"s_lshl_b32 {S(sT1)}, {S(sTB)}, 1")
op(f"s_add_u32 {S(sT0)}, {S(sT0)}, {S(sT1)}")
op(f"s_lshl_b32 {S(sT0)}, {S(sT0)}, 10")
op(f"s_add_u32 s4, {S(sT0)}, {hx(WS_K - 8192)}")
op(f"s_add_u32 s5, {S(sT0)}, {hx(WS_K - 4096)}")
sVA, sVB = 60, 49
op(f"s_add_u32 {S(sVB)}, {S(sT0)}, {hx(WS_V - 4096)}")
op(f"s_add_u32 {S(sVA)}, {S(sT0)}, {hx(WS_V - 8192)}")
NM = [40, 56]; MG = [72, 88]; SB = [104, 120, 136]; OA = [152, 168]
mx = [184, 185, 186, 187]
vNEG = 188
Kt = lambda j: A(aKT+4*j, 4)
Vt = lambda j, st: A(aVT+8*j+4*st, 4)
Qt = lambda i: V(Q0+4*i, 4)
op(f"v_mov_b32 {V(vNEG)}, 0xff800000")
for r in mx:
    op(f"v_mov_b32 {V(r)}, {V(vNEG)}")
def max_ops(i, b):
    return [f"v_max3_f32 {V(mx[2*i+(k&1)])}, {V(mx[2*i+(k&1)])}, {V(b+2*k)}, {V(b+2*k+1)}" for k in range(8)]
units = [(1, 8)] + [(i, j) for j in range(7, 1, -1) for i in range(2)] + [(0, 1), (1, 1), (0, 0)]
exit_at = {1: 1, 5: 2, 9: 3, 13: 4}
def s_mfma(n):
    i, j = units[n]
    mfma(V(SB[n % 3],16), Kt(j), Qt(i), "0")
s_mfma(0)
mfma(V(MG[0],16), Kt(8), Qt(0), "0")
mfma(V(MG[1],16), Kt(9), Qt(1), "0")
e.wait(lg=0)
stamp("q_done")
def halo_wait():
    D = e.fresh("haloearly")
    op(f"s_min_u32 {S(sT1)}, {S(sTB)}, 4")
    op(f"s_lshl_b32 {S(sT2)}, 1, {S(sT1)}")
    op(f"s_sub_u32 {S(sT2)}, {S(sT2)}, 1")
    op(f"s_mov_b32 {S(sT3)}, 0")
    op(f"s_add_u32 {S(sT1)}, {S(sBASE)}, 15")
    op(f"v_cmp_eq_u32 vcc, {S(sT1)}, {V(148)}")
    op(f"v_cmp_eq_u32 {S(sPA,2)}, {S(sTHI)}, {V(149)}")
    op(f"s_and_b64 vcc, vcc, {S(sPA,2)}")
    op(f"s_andn2_b64 {S(sPA,2)}, {S(sT2,2)}, vcc")
    op(f"s_cbranch_scc0 {D}")
    poll(150, S(sT4), S(sT2,2), S(sT1), 1, 18, S(sTHI), 0x100)
    e.label(D)
wave0(halo_wait)
e.barrier()
stamp("halo_ok")
for j in range(7, -1, -1):
    op(f"buffer_load_dwordx4 {A(aKT+4*j,4)}, {V(vL16)}, {S(sWS,4)}, {'s4' if j < 4 else 's5'} offen offset:{(j%4)*1024} sc1")
def v_loads(js):
    op(f"s_mov_b64 exec, {S(sM16,2)}")
    for j in js:
        for st in range(2):
            op(f"buffer_load_dwordx4 {A(aVT+8*j+4*st,4)}, {V(vVR)}, {S(sWS,4)}, {S(sVA if j < 4 else sVB)} offen offset:{(j%4)*1024+st*512} sc1")
    op("s_mov_b64 exec, -1")
e.ops(max_ops(1, SB[0]))
v_loads((7,))
s_mfma(1); s_mfma(2)
for n in range(1, len(units)):
    if n in exit_at:
        op(f"s_cmp_lt_u32 {S(sTB)}, {exit_at[n]}")
        op(f"s_cbranch_scc1 L_p1_short{exit_at[n]}")
    i, j = units[n]
    if n + 2 < len(units):
        s_mfma(n+2)
    if n == 3: v_loads((6,))
    if n == 6: v_loads((5,))
    if n == 8: v_loads((4,))
    if n < 14:
        e.ops(max_ops(i, SB[n % 3]))
    else:
        for r in range(16):
            op(f"v_cndmask_b32 {V(MG[i]+r)}, {V(SB[n%3]+r)}, {V(MG[i]+r)}, {S(sCM+2*r,2)}")
op("s_branch L_p1_join")
for k in range(1, 5):
    e.label(f"L_p1_short{k}")
for i in range(2):
    for r in range(16):
        op(f"v_cndmask_b32 {V(MG[i]+r)}, {V(vNEG)}, {V(MG[i]+r)}, {S(sCM+2*r,2)}")
e.label("L_p1_join")
e.ops(interleave(max_ops(0, MG[0]), max_ops(1, MG[1])))
for i in range(2):
    op(f"v_max_f32 {V(mx[2*i])}, {V(mx[2*i])}, {V(mx[2*i+1])}")
for i in range(2):
    op(f"v_mov_b32 {V(mx[2*i+1])}, {V(mx[2*i])}")
op("s_nop 0")
for i in range(2):
    op(f"v_permlane32_swap_b32 {V(mx[2*i])}, {V(mx[2*i+1])}")
for i in range(2):
    op(f"v_max_f32 {V(mx[2*i])}, {V(mx[2*i])}, {V(mx[2*i+1])}")
for i in range(2):
    op(f"v_sub_f32 {V(NM[i])}, 0, {V(mx[2*i])}")
    op(f"v_sub_f32 {V(NM[i]+1)}, 0, {V(mx[2*i])}")
for i in range(2):
    for k in range(1, 8):
        op(f"v_pk_mov_b32 {V(NM[i]+2*k,2)}, {V(NM[i],2)}, {V(NM[i],2)} op_sel:[0,1]")
stamp("att_p1")
full = units[:14]
def exp_cvt(b):
    o = []
    for k in range(8):
        o.append(f"v_exp_f32 {V(b+2*k)}, {V(b+2*k)}")
        o.append(f"v_exp_f32 {V(b+2*k+1)}, {V(b+2*k+1)}")
        if k >= 1:
            o.append(f"v_cvt_pk_bf16_f32 {V(b+k-1)}, {V(b+2*k-2)}, {V(b+2*k-1)}")
    o.append("NOP")
    o.append(f"v_cvt_pk_bf16_f32 {V(b+7)}, {V(b+14)}, {V(b+15)}")
    return o
def run_with(valu, inserts):
    for k, t in enumerate(valu):
        for f in inserts.get(k, []):
            f()
        if t != "NOP":
            op(t)
def s2(n):
    i, j = full[n]
    mfma(V(SB[n % 3],16), Kt(j), Qt(i), V(NM[i],16))
def pv(i, j, b, first=False):
    return [lambda: mfma(V(OA[i],16), Vt(j,0), V(b,4), "0" if first else V(OA[i],16)),
            lambda: mfma(V(OA[i],16), Vt(j,1), V(b+4,4), V(OA[i],16))]
for i in range(2):
    for k in range(8):
        op(f"v_pk_add_f32 {V(MG[i]+2*k,2)}, {V(MG[i]+2*k,2)}, {V(NM[i],2)}")
sS2L, sS2R = 0, 2
w2tok = {}
def w2_round_dma(r):
    w2tok[r] = []
    return stage_acts(sW2, S(sS2L), L_S2, S(sS2R), r*6*8192, 6, w2tok[r])
wotr = {}
def bg_list():
    L = [a for G in range(8) for a in w1_acts(G)]
    def wo_tr(s):
        def f():
            if s == 0: e.wait_tok(wo2[-1])
            for t in tr_step_ops(lambda o: V(WO+32+8*s+o, 2), s):
                wotr[s] = op(t)
        return f
    L[0:0] = [lambda: v_loads((3,)), lambda: v_loads((2,)), wo_tr(0), lambda: v_loads((1,)), wo_tr(1), lambda: v_loads((0,)), wo_tr(2), wo_tr(3)]
    if PFL2:
        L[0:0] = [lambda: l2_warm(sW2, 448, 0, 18), lambda: l2_warm(sW2, 448, 1, 188)]
    def first():
        global vWDk
        e.wait_tok(wotr[3])
        op(f"s_mul_i32 {S(sS2R)}, {S(sW)}, {448*1024}")
        vWDk = [vWD, 15, 14, 19]
        for k in range(1, 4):
            op(f"v_add_u32 {V(vWDk[k])}, {k*(8192-1024)}, {V(vWD)}")
        d0[0]()
    d0 = w2_round_dma(0)
    return L + [first] + d0[1:]
bg.extend(bg_list())
nbg = len(bg)
def split_ops(i):
    return [f"v_and_b32 {V(MG[i]+8+k)}, {V(MG[i]+k)}, {V(MK+k)}" for k in range(8)] + \
           [f"v_xor_b32 {V(MG[i]+k)}, {V(MG[i]+k)}, {V(MG[i]+8+k)}" for k in range(8)]
run_with(exp_cvt(MG[0]) + split_ops(0), {1: [lambda: s2(0)], 6: [lambda: s2(1)], 12: [tick], 20: [tick], 30: [tick]})
p0 = pv(0, 8, MG[0]+8, first=True)
run_with(exp_cvt(MG[1]) + split_ops(1), {2: [p0[0]], 7: [p0[1]], 12: [tick], 20: [tick], 30: [tick]})
pend = pv(1, 9, MG[1]+8, first=True)
done_before = {}
for n in range(len(full)):
    if n in exit_at:
        if pend:
            for f in pend: f()
            pend = None
        done_before[exit_at[n]] = nbg - len(bg)
        op(f"s_cmp_lt_u32 {S(sTB)}, {exit_at[n]}")
        op(f"s_cbranch_scc1 L_p2_short{exit_at[n]}")
    i, j = full[n]
    ins = {}
    if pend:
        ins[2] = [pend[0]]; ins[7] = [pend[1]]
    if n + 2 < len(full):
        ins.setdefault(13, []).append(lambda n=n: s2(n+2))
    for pos in ((4, 10, 16, 22) if n < 2 else (4, 10, 18)):
        ins.setdefault(pos, []).append(tick)
    if n == 13:
        for i2 in range(2):
            q = pv(i2, i2, MG[i2])
            ins.setdefault(12+6*i2, []).append(q[0]); ins.setdefault(15+6*i2, []).append(q[1])
    run_with(exp_cvt(SB[n % 3]), ins)
    pend = pv(i, j, SB[n % 3])
for f in pend: f()
assert not bg, len(bg)
op("s_branch L_p2_done")
save_tok = dict(w2tok)
allacts = bg_list()
for k in range(1, 5):
    e.label(f"L_p2_short{k}")
    lo = done_before[k]; hi = done_before[k+1] if k < 4 else nbg
    for a in allacts[lo:hi]:
        a()
e.wait(vm=0, lg=0)
w2tok.update(save_tok)
e.label("L_p2_done")
stamp("att_p2")
op(f"s_lshl_b32 {S(sT0)}, {S(sTB)}, 6")
op(f"s_lshl_b32 {S(sT1)}, {S(sHQ)}, 2")
op(f"s_add_u32 {S(sT0)}, {S(sT0)}, {S(sT1)}")
op(f"s_add_u32 {S(sT0)}, {S(sT0)}, {S(sW)}")
op(f"s_lshl_b32 {S(sT0)}, {S(sT0)}, 10")
op(f"s_add_u32 {S(sT0)}, {S(sT0)}, {hx(WS_O)}")
op(f"s_add_u32 {S(sT1)}, {S(sT0)}, 32768")
for i in range(2):
    op(f"v_rcp_f32 {V(mx[2*i])}, {V(OA[i]+8)}")
for i in range(2):
    for k in range(4):
        op(f"v_pk_mul_f32 {V(OA[i]+2*k,2)}, {V(OA[i]+2*k,2)}, {V(mx[2*i],2)} op_sel_hi:[1,0]")
    for k in range(4):
        op(f"v_cvt_pk_bf16_f32 {V(OA[i]+8+k)}, {V(OA[i]+2*k)}, {V(OA[i]+2*k+1)}")
def st_o(m):
    op(f"buffer_store_dwordx4 {V(OA[0]+8,4)}, {V(vL16)}, {S(sWS,4)}, {S(sT0)} offen{m}")
    op(f"buffer_store_dwordx4 {V(OA[1]+8,4)}, {V(vL16)}, {S(sWS,4)}, {S(sT1)} offen{m}")
stores_mode(st_o, "o")
vA = 22
op(f"v_and_b32 {V(17)}, 31, {V(vL)}")
op(f"v_lshlrev_b32 {V(17)}, 1, {V(17)}")
op(f"s_min_u32 {S(sT1)}, {S(sM)}, 13")
op(f"s_lshl_b32 {S(sT1)}, {S(sT1)}, 8")
op(f"s_lshl_b32 {S(sT2)}, {S(sW)}, 6")
op(f"s_add_u32 {S(sT1)}, {S(sT1)}, {S(sT2)}")
op(f"buffer_load_ushort {V(14)}, {V(17)}, {S(sB1,4)}, {S(sT1)} offen")
def w1_tr_addr():
    op(f"v_bfe_u32 {V(17)}, {V(vL)}, 2, 2")
    op(f"v_lshlrev_b32 {V(vA)}, 8, {V(17)}")
    op(f"v_lshl_add_u32 {V(vA)}, {V(17)}, 6, {V(vA)}")
    op(f"v_bfe_u32 {V(17)}, {V(vL)}, 4, 1")
    op(f"v_lshl_add_u32 {V(vA)}, {V(17)}, 5, {V(vA)}")
    op(f"v_and_b32 {V(17)}, 3, {V(vL)}")
    op(f"v_lshl_add_u32 {V(vA)}, {V(17)}, 3, {V(vA)}")
    op(f"v_lshrrev_b32 {V(17)}, 5, {V(vL)}")
    op(f"v_lshl_add_u32 {V(vA)}, {V(17)}, 10, {V(vA)}")
w1_tr_addr()
op(f"s_lshl_b32 {S(sT1)}, {S(sW)}, 6")
op(f"v_xor_b32 {V(26)}, {S(sT1)}, {V(vA)}")
op(f"v_add_u32 {V(27)}, 0x10000, {V(26)}")
c0, c1 = 28, 29
op(f"v_mov_b32 {V(c0)}, 0")
op(f"v_mov_b32 {V(c1)}, 0")
vT2a, vT2b = 30, 31
wo_like_addr(vT2a, vT2b, S(sS2L), L_S2)
vWDk = [vWD, 15, 21, 191]
for k in range(2, 4):
    op(f"v_add_u32 {V(vWDk[k])}, {k*(8192-1024)}, {V(vWD)}")
trtok = {}
def w2_round_tr(r):
    o = []
    for s in range(3):
        o += tr_step_ops(lambda k, s=s: A(8*(3*r+s)+k, 2), s, vT2a, vT2b)
    return o
def w2_tr(r):
    if "w" in XK and 3 <= r <= 5: return []
    trs = w2_round_tr(r)
    def first():
        e.wait_tok(w2tok[r][-1]); e.ops(trs[0:2])
    def last():
        op(trs[10]); trtok[r] = op(trs[11])
    return [first] + [lambda k=k: e.ops(trs[k:k+2]) for k in range(2, 10, 2)] + [last]
def w2_dma(r):
    if "w" in XK and 3 <= r <= 6: return []
    d = w2_round_dma(r)
    return [lambda: (e.wait_tok(trtok[r-1]), d[0]())] + d[1:]
group_signal(1)
stamp("o_signaled")
def cs_groups(glo, ghi, buf=32):
    if "c" in XK: return

    for grp in range(glo, ghi + 1):
        if grp < ghi:
            for s in range(4):
                ss = grp*4 + s
                base = 26 if ss < 16 else 27
                for j in range(2):
                    op(f"ds_read_b64_tr_b16 {V(buf+16*(grp%2)+4*s+2*j,2)}, {V(base)} offset:{(ss%16)*4096+j*2048}")
        if grp > glo:
            for k in range(16):
                op(dot_ones(c0 if k % 2 == 0 else c1, buf+16*((grp-1)%2)+k))
for f in w2_tr(0): f()
cs_groups(0, 2)
for f in w2_dma(1): f()
cs_groups(2, 4)
stamp("cs_a")
def mask8():
    op(f"s_and_b32 {S(sT2)}, {S(sM)}, 8")
    op(f"s_lshl_b32 {S(sT2)}, 0xff, {S(sT2)}")
    op(f"s_mov_b32 {S(sT3)}, 0")
group_wait(1, mask8)
stamp("o_ok")

OF, ACC, RT = 32, 96, 160
op(f"s_lshl_b32 {S(sT0)}, {S(sTB)}, 6")
op(f"s_lshl_b32 {S(sT1)}, {S(sW)}, 3")
op(f"s_add_u32 {S(sT0)}, {S(sT0)}, {S(sT1)}")
op(f"s_lshl_b32 {S(sT0)}, {S(sT0)}, 10")
op(f"s_add_u32 {S(sT0)}, {S(sT0)}, {hx(WS_O)}")
def o_load(n):
    t, s = divmod(n, 8)
    if s % 4 == 0:
        op(f"s_add_u32 {S(sT4)}, {S(sT0)}, {t*32768 + s*1024}")
    op(f"buffer_load_dwordx4 {V(OF+4*n,4)}, {V(vL16)}, {S(sWS,4)}, {S(sT4)} offen offset:{(s%4)*1024} sc1")
for n in range(4):
    o_load(n)
fill3 = record(lambda: cs_groups(4, 8, buf=128))
def cf_build():
    op(f"v_add_f32 {V(c0)}, {V(c0)}, {V(c1)}")
    halves_sum(c0, c1)
    split_hi_lo(c0, 128, 129, 17)
    op(f"v_cvt_pk_bf16_f32 {V(129)}, {V(129)}, 0")
    op(f"v_lshl_or_b32 {V(129)}, {V(14)}, 16, {V(129)}")
    op(f"v_mov_b32 {V(130)}, {V(14)}")
    op(f"v_mov_b32 {V(131)}, 0")
    for k in range(4):
        op(f"v_accvgpr_write_b32 {A(224+k)}, {V(128+k)}")
fill3 += record(cf_build)
NP3 = 10
for k in range(6):
    e.ops(spread(fill3, k, 6))
    o_load(4 + k)
for f in w2_tr(1): f()
vRW, vRR = 22, 25
def reduce_addrs(base):
    for q in range(1, 4):
        op(f"s_xor_b32 {S(sT1)}, {S(sW)}, {q}")
        op(f"s_mul_i32 {S(sT1)}, {S(sT1)}, 6144")
        op(f"s_add_u32 {S(sT1)}, {S(sT1)}, {base + (q-1)*2048}")
        op(f"v_add_u32 {V(vRW+q-1)}, {S(sT1)}, {V(vL16)}")
    op(f"s_mul_i32 {S(sT1)}, {S(sW)}, 6144")
    op(f"s_add_u32 {S(sT1)}, {S(sT1)}, {base}")
    op(f"v_add_u32 {V(vRR)}, {S(sT1)}, {V(vL16)}")
def red_write_ops(acc, t, toff):
    o = []
    for q in range(1, 4):
        r = acc + 32*t + 8*q
        o.append(f"ds_write_b128 {V(vRW+q-1)}, {V(r,4)} offset:{toff}")
        o.append(f"ds_write_b128 {V(vRW+q-1)}, {V(r+4,4)} offset:{toff+1024}")
    return o
def red_read_ops(tmp, toff):
    o = []
    for q in range(3):
        o.append(f"ds_read_b128 {V(tmp+8*q,4)}, {V(vRR)} offset:{toff+q*2048}")
        o.append(f"ds_read_b128 {V(tmp+8*q+4,4)}, {V(vRR)} offset:{toff+q*2048+1024}")
    return o
def red_sum_ops(acc, tmp, t, pk):
    r = acc + 32*t
    o = []
    if pk:
        for k in range(4):
            o.append(f"v_pk_add_f32 {V(tmp+2*k,2)}, {V(tmp+2*k,2)}, {V(tmp+8+2*k,2)}")
            o.append(f"v_pk_add_f32 {V(r+2*k,2)}, {V(r+2*k,2)}, {V(tmp+16+2*k,2)}")
        for k in range(4):
            o.append(f"v_pk_add_f32 {V(r+2*k,2)}, {V(r+2*k,2)}, {V(tmp+2*k,2)}")
    else:
        for q in range(3):
            for k in range(8):
                o.append(f"v_add_f32 {V(r+k)}, {V(r+k)}, {V(tmp+8*q+k)}")
    return o
def add_packed_ops(r, pk, tmp, usepk):
    o = []
    for k in range(4):
        o.append(f"v_lshlrev_b32 {V(tmp+2*k)}, 16, {V(pk+k)}")
        o.append(f"v_and_b32 {V(tmp+2*k+1)}, 0xffff0000, {V(pk+k)}")
    if usepk:
        o += [f"v_pk_add_f32 {V(r+2*k,2)}, {V(r+2*k,2)}, {V(tmp+2*k,2)}" for k in range(4)]
    else:
        o += [f"v_add_f32 {V(r+k)}, {V(r+k)}, {V(tmp+k)}" for k in range(8)]
    return o
pre = [f"s_lshl_b32 s4, {S(sTB)}, 6", f"s_lshl_b32 s5, {S(sHQ)}, 2", "s_add_u32 s4, s4, s5", f"s_add_u32 s4, s4, {S(sW)}",
       "s_lshl_b32 s4, s4, 10", f"s_add_u32 s4, s4, {hx(WS_H)}", "s_add_u32 s5, s4, 32768",
       f"s_lshl_b32 {S(sVA)}, {S(sTB)}, 1", f"s_add_u32 {S(sVA)}, {S(sVA)}, {S(sT_)}", f"s_lshl_b32 {S(sVA)}, {S(sVA)}, 11",
       f"s_lshr_b32 {S(sVB)}, {S(sHQ)}, 1", f"s_lshl_b32 {S(sVB)}, {S(sVB)}, 9", f"s_add_u32 {S(sVA)}, {S(sVA)}, {S(sVB)}",
       f"s_and_b32 {S(sVB)}, {S(sHQ)}, 1", f"s_lshl_b32 {S(sVB)}, {S(sVB)}, 3", f"s_add_u32 {S(sVA)}, {S(sVA)}, {S(sVB)}",
       f"s_add_u32 {S(sVA)}, {S(sVA)}, {hx(WS_ST)}"]
pre += record(lambda: reduce_addrs(L_R3))
pre += [f"v_and_b32 {V(26)}, 31, {V(vL)}", f"v_lshlrev_b32 {V(27)}, 3, {V(26)}", f"v_lshlrev_b32 {V(26)}, 4, {V(26)}",
        f"s_lshl_b32 {S(sT1)}, {S(sW)}, 9", f"s_add_u32 {S(sT1)}, {S(sT1)}, {L_SR}", f"v_add_u32 {V(28)}, {S(sT1)}, {V(27)}",
        f"s_lshl_b32 {S(sT1)}, {S(sT_)}, 8", f"s_add_u32 {S(sT1)}, {S(sT1)}, {L_SR}", f"v_add_u32 {V(27)}, {S(sT1)}, {V(27)}"]
rw0 = red_write_ops(ACC, 0, 0)
for n in range(16):
    t, s = divmod(n, 8)
    for u in range(2):
        d = V(ACC+32*t+16*u, 16)
        mfma(d, V(WO+8*s+4*u,4), V(OF+4*n,4), "0" if s == 0 else d)
        if u == 0 and n + NP3 < 16:
            o_load(n + NP3)
        if n < 8:
            e.ops(spread(pre, 2*n+u, 16))
        if n == 8:
            e.ops(add_packed_ops(ACC, vRES, RT, False)[4*u:4*u+4])
        if n == 9 and u == 0:
            e.wait_tok(trtok[1])
            e.barrier()
        if 10 <= n < 13:
            op(rw0[2*(n-10)+u])
        if n == 13 and u == 1:
            e.wait(lg=0)
            e.barrier()
            e.ops(red_read_ops(RT+8, 0))
        if n == 14:
            e.ops([f"v_add_f32 {V(ACC+k)}, {V(ACC+k)}, {V(RT+k)}" for k in range(4*u, 4*u+4)])
        if n == 15:
            e.ops(add_packed_ops(ACC+32, vRES+4, RT, False)[4*u:4*u+4])
e.ops(red_sum_ops(ACC, RT+8, 0, False)[:8])
e.wait(lg=0)
e.barrier()
e.ops(red_write_ops(ACC, 1, 0))
e.ops(red_sum_ops(ACC, RT+8, 0, False)[8:])
for k in range(4):
    op(f"v_cvt_pk_bf16_f32 {V(vRES+k)}, {V(ACC+2*k)}, {V(ACC+2*k+1)}")
for k in range(4):
    op(f"v_pk_add_f32 {V(ACC+32+2*k,2)}, {V(ACC+32+2*k,2)}, {V(RT+2*k,2)}")
e.wait(lg=0)
e.barrier()
stamp("p3_red")
e.ops(red_read_ops(RT+8, 0))
stores_mode(lambda m: op(f"buffer_store_dwordx4 {V(vRES,4)}, {V(vL16)}, {S(sWS,4)}, s4 offen{m}"), "h")
ST3 = 32
for r in range(ST3, ST3+4):
    op(f"v_mov_b32 {V(r)}, 0")
for k in range(4):
    op(dot_ones(ST3, vRES+k))
    op(dot_sq(ST3+1, vRES+k))
e.ops(red_sum_ops(ACC, RT+8, 1, True))
for k in range(4):
    op(f"v_cvt_pk_bf16_f32 {V(vRES+4+k)}, {V(ACC+32+2*k)}, {V(ACC+32+2*k+1)}")
stores_mode(lambda m: op(f"buffer_store_dwordx4 {V(vRES+4,4)}, {V(vL16)}, {S(sWS,4)}, s5 offen{m}"), "h")
for k in range(4):
    op(dot_ones(ST3+2, vRES+4+k))
    op(dot_sq(ST3+3, vRES+4+k))
for k in range(4):
    op(f"v_mov_b32 {V(ST3+4+k)}, {V(ST3+k)}")
op("s_nop 0")
for k in range(4):
    op(f"v_permlane32_swap_b32 {V(ST3+k)}, {V(ST3+4+k)}")
for k in range(4):
    op(f"v_add_f32 {V(ST3+k)}, {V(ST3+k)}, {V(ST3+4+k)}")
op(f"ds_write_b64 {V(28)}, {V(ST3,2)}")
op(f"ds_write_b64 {V(28)}, {V(ST3+2,2)} offset:256")
e.wait(lg=0)
e.barrier()
for k in range(4):
    op(f"ds_read_b64 {V(ST3+8+2*k,2)}, {V(27)} offset:{k*512}")
op(f"s_lshl_b32 {S(sT1)}, {S(sP)}, 13")
op(f"s_lshl_b32 {S(sT2)}, {S(sT_)}, 10")
op(f"s_add_u32 {S(sT1)}, {S(sT1)}, {S(sT2)}")
op(f"s_add_u32 {S(sT1)}, {S(sT1)}, {L_CT}")
op(f"v_add_u32 {V(17)}, {S(sT1)}, {V(vL16)}")
op(f"ds_write_b128 {V(17)}, {A(224,4)}")
op(f"v_pk_add_f32 {V(ST3+8,2)}, {V(ST3+8,2)}, {V(ST3+10,2)}")
op(f"v_pk_add_f32 {V(ST3+12,2)}, {V(ST3+12,2)}, {V(ST3+14,2)}")
op(f"v_pk_add_f32 {V(ST3+8,2)}, {V(ST3+8,2)}, {V(ST3+12,2)}")
op(f"s_mov_b64 exec, {S(sLOW,2)}")
stores_mode(lambda m: op(f"buffer_store_dwordx2 {V(ST3+8,2)}, {V(26)}, {S(sWS,4)}, {S(sVA)} offen{m}"), "h")
op("s_mov_b64 exec, -1")
e.wait(lg=0)
group_signal(2)
stamp("h_signaled")
vWDk = [vWD, 15, 21, 248]
op(f"v_add_u32 {V(vWDk[3])}, {3*(8192-1024)}, {V(vWD)}")
d2 = w2_round_dma(2)
for f in d2: f()
op(f"s_cmp_ge_u32 {S(sM)}, 14")
op("s_cbranch_scc1 L_p4_skip")

w1_tr_addr()
for nb in range(1, 4):
    op(f"v_xor_b32 {V(vA+nb)}, {nb << 6}, {V(vA)}")
HB, GA, RING4 = 32, 160, 224
STV = 208
op(f"s_lshl_b32 s4, {S(sG)}, 2")
op(f"s_add_u32 s4, s4, {S(sW)}")
op(f"s_lshl_b32 s5, s4, 11")
op(f"s_add_u32 s5, s5, {hx(WS_ST)}")
op(f"s_mul_i32 {S(sVB)}, s4, 112")
op(f"s_lshl_b32 s4, s4, 15")
op(f"s_add_u32 {S(sVA)}, s4, {hx(WS_H)}")
sG0, sG1 = 49, 58
op(f"s_lshl_b32 {S(sT1)}, {S(sM)}, 3")
op(f"s_add_u32 {S(sG0)}, {S(sG0)}, {S(sT1)}")
op(f"s_lshl_b32 {S(sG0)}, {S(sG0)}, 10")
op(f"s_add_u32 {S(sG0)}, {S(sG0)}, {hx(WS_G)}")
op(f"s_add_u32 {S(sG1)}, {S(sG0)}, 4096")
vCT = 14
op(f"v_add_u32 {V(vCT)}, {L_CT}, {V(vL16)}")
SF4, vKK, vSG, TP = 244, 18, 26, 252
NS, LA = 5, 4
def mask16():
    op(f"s_mov_b32 {S(sT2)}, 0xffff")
    op(f"s_mov_b32 {S(sT3)}, 0")
seq = []
for s in range(32):
    seq += [(0, s), (1, s)]
NB0 = 12
seq += [(2, s) for s in range(NB0)] + [(0, 'r'), (1, 'r')] + [(2, s) for s in range(NB0, 32)] + [(2, 'r')]
seq += [(3, s) for s in range(32)] + [(3, 'r')]
hi_state = {nb: False for nb in range(4)}
def frag_read(n):
    nb, s = seq[n]
    d = RING4 + 4*(n % NS)
    if s == 'r':
        op(f"ds_read_b128 {V(d,4)}, {V(vCT)} offset:{ct_off(nb)}")
        return
    if s >= 16 and not hi_state[nb]:
        op(f"v_add_u32 {V(vA+nb)}, 0x10000, {V(vA+nb)}")
        hi_state[nb] = True
    op(f"ds_read_b64_tr_b16 {V(d,2)}, {V(vA+nb)} offset:{(s%16)*4096}")
    op(f"ds_read_b64_tr_b16 {V(d+2,2)}, {V(vA+nb)} offset:{(s%16)*4096+2048}")
for n in range(LA):
    frag_read(n)
group_wait(2, mask16)
stamp("h_ok")
def epoch_bump():
    D = e.fresh("nobump")
    op(f"s_cmp_lg_u32 {S(sM)}, 0")
    op(f"s_cbranch_scc1 {D}")
    op(f"s_add_u32 {S(sT1)}, {S(sELO)}, 1")
    op(f"v_mov_b32 {V(18)}, {S(sT1)}")
    op(f"s_lshl_b32 {S(sT1)}, {S(sG)}, 3")
    op(f"v_mov_b32 {V(17)}, 0")
    op("s_mov_b64 exec, 1")
    op(f"buffer_store_dword {V(18)}, {V(17)}, {S(sWS,4)}, {S(sT1)} offen offset:{WS_E} sc1")
    op("s_mov_b64 exec, -1")
    e.label(D)
def h_load(n):
    if n < 32:
        if n % 4 == 0:
            op(f"s_add_u32 s4, {S(sVA)}, {n*1024}")
        op(f"buffer_load_dwordx4 {V(HB+4*n,4)}, {V(vL16)}, {S(sWS,4)}, s4 offen offset:{(n%4)*1024} sc1")
    else:
        k = n - 32
        op(f"buffer_load_dwordx4 {V(STV+4*k,4)}, {V(vL16)}, {S(sWS,4)}, s5 offen offset:{k*1024} sc1")
NPRE = 9
for n in range(NPRE):
    h_load(n)
    if n == 3:
        wave0(epoch_bump)
    if n >= 4:
        pass
for f in w2_tr(2): f()
def frag_mfma(n):
    nb, s = seq[n]
    d = V(GA+16*nb, 16)
    b = V(SF4,4) if s == 'r' else V(HB+4*s,4)
    mfma(d, V(RING4+4*(n % NS),4), b, "0" if s == 0 else d)
def gelu_plain(nb, i):
    if "g" in XK: return []
    a0 = GA + 16*nb; a = a0 + 2*i; T = TP
    o = [f"v_mul_f32 {V(T+k)}, {V(a+k)}, {V(a+k)}" for k in range(2)]
    o += [f"v_fma_f32 {V(T+k)}, {V(T+k)}, {V(vKK+1)}, {V(vKK)}" for k in range(2)]
    o += [f"v_mul_f32 {V(T+k)}, {V(T+k)}, {V(a+k)}" for k in range(2)]
    o += [f"v_exp_f32 {V(T+k)}, {V(T+k)}" for k in range(2)]
    o += [f"v_fma_f32 {V(T+k)}, {V(T+k)}, {V(vSG)}, {V(vSG)}" for k in range(2)]
    o += [f"v_rcp_f32 {V(T+k)}, {V(T+k)}" for k in range(2)]
    o += [f"v_mul_f32 {V(T+k)}, {V(T+k)}, {V(a+k)}" for k in range(2)]
    o.append(f"v_cvt_pk_bf16_f32 {V(a0+i)}, {V(T)}, {V(T+1)}")
    return o
def gelu_pk(items):
    if "G" in XK: return ["s_nop 0"]
    o = []
    for x in range(0, len(items), 2):
        prs = [(GA+16*nb+2*i, TP+2*k, GA+16*nb+i) for k, (nb, i) in enumerate(items[x:x+2])]
        for a, T, d in prs: o.append(f"v_pk_mul_f32 {V(T,2)}, {V(a,2)}, {V(a,2)}")
        for a, T, d in prs: o.append(f"v_pk_fma_f32 {V(T,2)}, {V(T,2)}, {V(vKK,2)}, {V(vKK,2)} op_sel:[0,1,0] op_sel_hi:[1,1,0]")
        for a, T, d in prs: o.append(f"v_pk_mul_f32 {V(T,2)}, {V(T,2)}, {V(a,2)}")
        for a, T, d in prs: o += [f"v_exp_f32 {V(T)}, {V(T)}", f"v_exp_f32 {V(T+1)}, {V(T+1)}"]
        for a, T, d in prs: o.append(f"v_pk_fma_f32 {V(T,2)}, {V(T,2)}, {V(vSG,2)}, {V(vSG,2)} op_sel_hi:[1,0,0]")
        for a, T, d in prs: o += [f"v_rcp_f32 {V(T)}, {V(T)}", f"v_rcp_f32 {V(T+1)}, {V(T+1)}"]
        for a, T, d in prs: o.append(f"v_pk_mul_f32 {V(T,2)}, {V(T,2)}, {V(a,2)}")
        for a, T, d in prs: o.append(f"v_cvt_pk_bf16_f32 {V(d)}, {V(T)}, {V(T+1)}")
    return o
def g_store(nbs):
    def st(m):
        for nb in nbs:
            so = S(sG0) if nb < 2 else S(sG1)
            op(f"buffer_store_dwordx4 {V(GA+16*nb,4)}, {V(vL16)}, {S(sWS,4)}, {so} offen offset:{(nb%2)*2048}{m}")
            op(f"buffer_store_dwordx4 {V(GA+16*nb+4,4)}, {V(vL16)}, {S(sWS,4)}, {so} offen offset:{(nb%2)*2048+1024}{m}")
    stores_mode(st, "g")
C1 = -2.0 * math.log2(math.e) * math.sqrt(2.0/math.pi)
def stats4_ops():
    s0, q0, t0, t1 = TP, TP+1, TP+2, TP+3
    t2, t3 = 17, 27
    o = [f"v_add_f32 {V(s0)}, {V(STV)}, {V(STV+2)}", f"v_add_f32 {V(q0)}, {V(STV+1)}, {V(STV+3)}",
         f"v_add_f32 {V(t0)}, {V(STV+4)}, {V(STV+6)}", f"v_add_f32 {V(t1)}, {V(STV+5)}, {V(STV+7)}",
         f"v_add_f32 {V(s0)}, {V(s0)}, {V(t0)}", f"v_add_f32 {V(q0)}, {V(q0)}, {V(t1)}"]
    o += [f"v_mov_b32 {V(t0)}, {V(s0)}", f"v_mov_b32 {V(t1)}, {V(q0)}", f"v_mov_b32 {V(SF4+3)}, 0",
          f"v_permlane32_swap_b32 {V(s0)}, {V(t0)}", f"v_permlane32_swap_b32 {V(q0)}, {V(t1)}",
          f"v_add_f32 {V(s0)}, {V(s0)}, {V(t0)}", f"v_add_f32 {V(q0)}, {V(q0)}, {V(t1)}",
          f"v_mul_f32 {V(s0)}, {hx(f2u(-1.0/512))}, {V(s0)}",
          f"v_mul_f32 {V(q0)}, {hx(f2u(1.0/512))}, {V(q0)}",
          f"v_fma_f32 {V(q0)}, -{V(s0)}, {V(s0)}, {V(q0)}",
          f"v_max_f32 {V(q0)}, 0, {V(q0)}",
          f"v_add_f32 {V(t0)}, {hx(f2u(1e-5))}, {V(q0)}",
          f"v_rsq_f32 {V(t1)}, {V(t0)}",
          f"v_cvt_pk_bf16_f32 {V(t2)}, {V(s0)}, {V(s0)}",
          f"v_mul_f32 {V(q0)}, {V(q0)}, {V(t1)}",
          f"v_mul_f32 {V(q0)}, {V(q0)}, {V(t1)}",
          f"v_add_f32 {V(q0)}, {hx(f2u(1e-5))}, {V(q0)}",
          f"v_rsq_f32 {V(t3)}, {V(q0)}",
          f"v_mul_f32 {V(t0)}, {V(t0)}, {V(t1)}",
          f"v_and_b32 {V(t2)}, 0xffff0000, {V(t2)}",
          f"v_mul_f32 {V(t1)}, {V(t1)}, {V(t3)}",
          f"v_mul_f32 {V(q0)}, {V(q0)}, {V(t3)}",
          f"v_mul_f32 {V(vSG)}, {V(q0)}, {V(t0)}",
          f"v_sub_f32 {V(t2)}, {V(s0)}, {V(t2)}",
          f"v_cvt_pk_bf16_f32 {V(SF4)}, {V(s0)}, {V(t2)}",
          f"v_cvt_pk_bf16_f32 {V(SF4+1)}, {V(s0)}, {V(vSG)}",
          f"v_and_b32 {V(t2)}, 0xffff0000, {V(SF4+1)}",
          f"v_sub_f32 {V(t2)}, {V(vSG)}, {V(t2)}",
          f"v_cvt_pk_bf16_f32 {V(SF4+2)}, {V(t2)}, 0"]
    o += [f"v_cndmask_b32 {V(SF4+k)}, 0, {V(SF4+k)}, {S(sLOW,2)}" for k in range(3)]
    o += [f"v_mul_f32 {V(vKK)}, {hx(f2u(C1))}, {V(t1)}",
          f"v_mul_f32 {V(t0)}, {V(t1)}, {V(t1)}",
          f"v_mul_f32 {V(t0)}, {hx(f2u(0.044715))}, {V(t0)}",
          f"v_mul_f32 {V(vKK+1)}, {V(vKK)}, {V(t0)}"]
    return o
iA = 64
iR0 = seq.index((0, 'r')); iB0 = seq.index((1, 'r')) + 1
iC0 = seq.index((2, 'r')) + 1
NPL_B, NPL_C = 2, 3
st4 = stats4_ops()
fillB = [x for i in range(NPL_B) for x in gelu_plain(0, i)]
fillC = [x for i in range(NPL_C) for x in gelu_plain(2, i)]
sched = {}
def at(n, acts, step=1):
    for k, f in enumerate(acts):
        sched.setdefault(n + k*step, []).append(f)
at(iA - 8, w2_dma(3))
for k in range(8):
    sched.setdefault(iA + 3 + k, []).append(lambda k=k: e.ops(spread(st4, k, 8)))
at(iB0 + 1, w2_tr(3))
at(iB0 + 10, w2_dma(4))
nB = iC0 - (iB0 + 3)
for k in range(nB):
    sched.setdefault(iB0 + 3 + k, []).append(lambda k=k: e.ops(spread(fillB, k, nB)))
at(iC0 + 12, w2_tr(5))
at(iC0 + 22, w2_dma(6))
nC = len(seq) - (iC0 + 2)
for k in range(nC):
    sched.setdefault(iC0 + 2 + k, []).append(lambda k=k: e.ops(spread(fillC, k, nC)))
def weave(ops_, acts, first, step):
    k = 0
    for i, x in enumerate(ops_):
        if i >= first and (i - first) % step == 0 and k < len(acts):
            acts[k](); k += 1
        op(x)
    for f in acts[k:]:
        f()
for n in range(len(seq)):
    if n == iC0:
        stamp("p4_Bm")
        e.ops(gelu_pk([(0, i) for i in range(NPL_B, 8)]))
        g_store((0,))
        weave(gelu_pk([(1, i) for i in range(8)]), w2_tr(4) + w2_dma(5), 16, 8)
        g_store((1,))
        stamp("p4_B")
    if n + LA < len(seq):
        frag_read(n + LA)
    frag_mfma(n)
    nb, s = seq[n]
    if n < iA and nb == 0 and s + NPRE < 34:
        h_load(s + NPRE)
    for f in sched.get(n, []):
        f()
    if n == iA - 1:
        stamp("p4_passA")
stamp("p4_mfma")
e.ops(gelu_pk([(2, i) for i in range(NPL_C, 8)]))
g_store((2,))
e.ops(gelu_pk([(3, i) for i in range(8)]))
g_store((3,))
e.wait(lg=0)
group_signal(3)
stamp("g_signaled")
op("s_branch L_p5")
e.label("L_p4_skip")
for r in range(2, 6):
    for f in w2_tr(r): f()
    for f in w2_dma(r+1): f()
e.barrier()
e.label("L_p5")

op(f"s_lshl_b32 {S(sT4)}, {S(sW)}, 14")
def stage_rest():
    D = e.fresh("nostage")
    op(f"s_cmp_eq_u32 {S(sW)}, 0")
    op(f"s_cbranch_scc1 {D}")
    for a in stage_acts(sW2, S(sT4), 0, S(sS2R), 42*8192, 14, []):
        a()
    op(f"s_mul_i32 {S(sT0)}, {S(sW)}, 5120")
    op(f"s_sub_u32 {S(sT0)}, {S(sT0)}, 5120")
    op(f"s_lshl_b32 {S(sT1)}, {S(sT0)}, 3")
    for a in stage_acts(sW2, S(sT0), 0, S(sT1), 42*8192, 5, []):
        a()
    e.label(D)
stage_rest()
wo_like_addr(26, 27, S(sT4), 0)
L_R5, L_OT = 65536, 114688
reduce_addrs(L_R5)
GB, NG, RT5, ACC5 = 32, 34, 168, 192
op(f"s_mul_i32 s4, {S(sTB)}, 224")
op(f"s_mul_i32 s5, {S(sW)}, 28")
op(f"s_add_u32 s4, s4, s5")
op(f"s_lshl_b32 s4, s4, 10")
op(f"s_add_u32 s4, s4, {hx(WS_G)}")
stamp("w2_issued")
def mask14():
    op(f"s_mov_b32 {S(sT2)}, 0x3fff")
    op(f"s_mov_b32 {S(sT3)}, 0")
group_wait(3, mask14)
stamp("g_ok")
def g_load(n):
    t, s = divmod(n, 28)
    if s % 4 == 0:
        op(f"s_add_u32 s5, s4, {(t*112+s)*1024}")
    return op(f"buffer_load_dwordx4 {V(GB+4*(n%NG),4)}, {V(vL16)}, {S(sWS,4)}, s5 offen offset:{(s%4)*1024} sc1")
NPRE5 = 12
for n in range(NPRE5):
    g_load(n)
rw = red_write_ops(ACC5, 0, 0)
fin0 = red_sum_ops(ACC5, RT5, 0, False) + add_packed_ops(ACC5, vRES, RT5, False) + add_packed_ops(ACC5, vB2, RT5, False) + \
       [f"v_cvt_pk_bf16_f32 {V(vRES+k)}, {V(ACC5+2*k)}, {V(ACC5+2*k+1)}" for k in range(4)]
otw = [f"v_and_b32 {V(17)}, 31, {V(vL)}", f"v_mul_u32_u24 {V(17)}, 144, {V(17)}", f"v_lshrrev_b32 {V(18)}, 5, {V(vL)}",
       f"v_lshl_add_u32 {V(17)}, {V(18)}, 3, {V(17)}", f"s_lshl_b32 {S(sT1)}, {S(sW)}, 5", f"s_add_u32 {S(sT1)}, {S(sT1)}, {L_OT}",
       f"v_add_u32 {V(17)}, {S(sT1)}, {V(17)}",
       f"v_lshrrev_b32 {V(18)}, 3, {V(vL)}", f"v_and_b32 {V(19)}, 7, {V(vL)}", f"v_lshlrev_b32 {V(19)}, 4, {V(19)}",
       f"v_lshl_add_u32 {V(20)}, {V(18)}, 10, {V(19)}", f"v_mul_u32_u24 {V(18)}, 144, {V(18)}", f"v_add_u32 {V(18)}, {V(18)}, {V(19)}",
       f"s_mul_i32 {S(sT1)}, {S(sW)}, {16*144}", f"s_add_u32 {S(sT1)}, {S(sT1)}, {L_OT}", f"v_add_u32 {V(18)}, {S(sT1)}, {V(18)}",
       f"s_lshl_b32 {S(sT0)}, {S(sTB)}, 16", f"s_lshl_b32 {S(sT1)}, {S(sW)}, 14", f"s_add_u32 {S(sT0)}, {S(sT0)}, {S(sT1)}",
       f"s_lshl_b32 {S(sT1)}, {S(sHQ)}, 7", f"s_add_u32 {S(sT0)}, {S(sT0)}, {S(sT1)}", f"s_add_u32 {S(sT1)}, {S(sT0)}, 8192"]
tr6 = w2_round_tr(6)
for n in range(56):
    t, s = divmod(n, 28)
    for u in range(2):
        d = V(ACC5+32*t+16*u, 16)
        mfma(d, A(8*s+4*u,4), V(GB+4*(n%NG),4), "0" if s == 0 else d)
        if u == 0 and n + NPRE5 < 56:
            g_load(n + NPRE5)
        if n < 3:
            e.ops(tr6[4*n+2*u:4*n+2*u+2])
        if n == 3 and u == 1:
            e.barrier()
        if 4 <= n < 11:
            sl = n - 4
            e.ops(tr_step_ops(lambda k, sl=sl: A(8*(21+sl)+k, 2), sl, 26, 27)[2*u:2*u+2])
        if 34 <= n < 37:
            op(rw[2*(n-34)+u])
        if n == 41 and u == 1:
            e.wait(lg=0)
            e.barrier()
            e.ops(red_read_ops(RT5, 0))
        if 44 <= n < 52:
            e.ops(spread(fin0, 2*(n-44)+u, 16))
        if 28 <= n < 34:
            e.ops(spread(otw, 2*(n-28)+u, 12))
        if n == 52 and u == 0:
            op(f"ds_write_b64 {V(17)}, {V(vRES,2)}")
            op(f"ds_write_b64 {V(17)}, {V(vRES+2,2)} offset:16")
        if n == 54:
            e.ops(add_packed_ops(ACC5+32, vRES+4, RT5, False)[4*u:4*u+4])
        if n == 55:
            e.ops(add_packed_ops(ACC5+32, vB2, RT5+8, False)[4*u:4*u+4])
stamp("p5_mfma")
e.ops(red_write_ops(ACC5, 1, 24576))
for k in range(4):
    op(f"v_pk_add_f32 {V(RT5+2*k,2)}, {V(RT5+2*k,2)}, {V(RT5+8+2*k,2)}")
for k in range(4):
    op(f"v_pk_add_f32 {V(ACC5+32+2*k,2)}, {V(ACC5+32+2*k,2)}, {V(RT5+2*k,2)}")
e.wait(lg=0)
e.barrier()
e.ops(red_read_ops(RT5, 24576))
e.ops(red_sum_ops(ACC5, RT5, 1, True))
for k in range(4):
    op(f"v_cvt_pk_bf16_f32 {V(vRES+4+k)}, {V(ACC5+32+2*k)}, {V(ACC5+32+2*k+1)}")
op(f"ds_write_b64 {V(17)}, {V(vRES+4,2)} offset:{32*144}")
op(f"ds_write_b64 {V(17)}, {V(vRES+6,2)} offset:{32*144+16}")
e.wait(lg=0)
e.barrier()
OM = " sc1" if "x" in WT else (" nt" if "n" in WT else "")
op(f"ds_read_b128 {V(32,4)}, {V(18)}")
op(f"ds_read_b128 {V(36,4)}, {V(18)} offset:{8*144}")
op(f"buffer_store_dwordx4 {V(32,4)}, {V(20)}, {S(sOUT,4)}, {S(sT0)} offen{OM}")
op(f"buffer_store_dwordx4 {V(36,4)}, {V(20)}, {S(sOUT,4)}, {S(sT1)} offen{OM}")
if PROF:
    e.wait(vm=0)
    stamp("end")
    op(f"s_memtime {S(sPA,2)}")
    e.wait(lg=0)
    op(f"v_writelane_b32 {V(vST)}, {S(sPA)}, 61")
    op(f"s_lshl_b32 {S(sT0)}, {S(sG)}, 4")
    op(f"s_add_u32 {S(sT0)}, {S(sT0)}, {S(sM)}")
    op(f"s_lshl_b32 {S(sT0)}, {S(sT0)}, 2")
    op(f"s_add_u32 {S(sT0)}, {S(sT0)}, {S(sW)}")
    op(f"s_lshl_b32 {S(sT0)}, {S(sT0)}, 8")
    op(f"s_add_u32 {S(sT0)}, {S(sT0)}, {hx(WS_PROF)}")
    op(f"v_writelane_b32 {V(vST)}, {S(sFAST)}, 62")
    op(f"s_getreg_b32 {S(sT1)}, hwreg(HW_REG_HW_ID)")
    op(f"v_writelane_b32 {V(vST)}, {S(sT1)}, 63")
    op(f"v_lshlrev_b32 {V(17)}, 2, {V(vL)}")
    op(f"buffer_store_dword {V(vST)}, {V(17)}, {S(sWS,4)}, {S(sT0)} offen")
e.label("L_end")
op("s_endpgm")

hdr = open("cdna_kernels/" + NAME + ".s.ref").read().split("; Override launch")[0]
txt = hdr
txt += "; One persistent launch: 256 workgroups (one per CU), five phases handed over through d_ws.\n"
txt += f"; @launch grid=(256,1,1) block=(256,1,1) lds={LDS_BYTES}\n"
txt += f""".amdgcn_target "amdgcn-amd-amdhsa--gfx950"
.text
.globl {KERNEL}
.p2align 8
.type {KERNEL},@function
{KERNEL}:
"""
txt += e.text()
txt += f"""L_code_end:
.section .rodata,"a"
.p2align 6
.amdhsa_kernel {KERNEL}
  .amdhsa_next_free_vgpr 512
  .amdhsa_next_free_sgpr 102
  .amdhsa_accum_offset 256
  .amdhsa_group_segment_fixed_size 0
  .amdhsa_kernarg_size 88
  .amdhsa_user_sgpr_count 2
  .amdhsa_user_sgpr_kernarg_segment_ptr 1
  .amdhsa_system_sgpr_workgroup_id_x 1
  .amdhsa_float_denorm_mode_32 3
.end_amdhsa_kernel
"""
out = [a for a in sys.argv[1:] if a.endswith(".s")]
open(out[0] if out else "out.s", "w").write(txt)
print("instructions", e.n_ins, "nops", e.n_nop, file=sys.stderr)
if PROF:
    open("stamps.txt", "w").write("\n".join(stamp_names) + "\n")
```

```python
import sys, math, struct, os
from emit import Emitter, V, A, S, interleave

NAME = "sequential_preLN__sliding_block__mixer_channel_mlp__prompt"
PROF = "--prof" in sys.argv
SLOW = "--slow" in sys.argv
CYC = "--cyc" in sys.argv
TLBW = "--notlb" not in sys.argv
PFL2 = "--pfw2" in sys.argv
SCOUT = "--noscout" not in sys.argv
PFW1 = "--pfw1" in sys.argv

def f2u(x):
    return struct.unpack("<I", struct.pack("<f", x))[0]
def hx(x):
    return f"0x{x & 0xffffffff:x}"

WS_E, WS_CEN, WS_GF, WS_HALO = 0x0, 0x400, 0x1000, 0x2000
WS_K, WS_V, WS_O, WS_H, WS_G = 0x10000, 0x210000, 0x410000, 0x610000, 0x810000
WS_ST = 0xF20000
WS_PROF = 0xFB0000
WS_SIZE = 0x1000000
L_X, L_RING, L_MISC = 0, 65536, 147456
L_EX = L_RING + 2 * 16384
L_QX = L_RING + 3 * 16384 + 4096
L_CQ = L_RING + 3 * 16384
L_R3 = 131072
L_CT = 131072 + 6144
L_SR = 161792
ct_off = lambda nb: (nb >> 1) * 8192 + (nb & 1) * 1024
L_WOS = 131072
L_S2 = 131072
LDS_BYTES = 163840
sX, sWQ, sWO, sW1, sW2, sWS, sOUT, sB1, sB2 = 8, 12, 16, 20, 24, 28, 32, 36, 40
sDBG = 6
sW, sG, sM, sTB, sHQ, sXCC, sBASE, sTHI, sFAST, sELO = range(44, 54)
sT0, sT1, sT2, sT3, sT4, sT5 = range(54, 60)
sWOFF, sP, sT_ = 60, 61, 62
sONES = 63
sCM = 64
sCW, sCX = 64, 72
sLOW = 96
sM16 = 98
sPA, sPB = 100, 4
vL, vL16, vRES, vB2, vST, vTLO, vTHI = 0, 1, 2, 10, 16, 14, 15

e = Emitter()
op = e.op
stamp_n = [0]
stamp_names = []

def stamp(name, pair=None):
    if not PROF:
        return
    pair = sPA if pair is None else pair
    i = stamp_n[0]; stamp_n[0] += 1
    stamp_names.append(name)
    op(f"{'s_memtime' if CYC else 's_memrealtime'} {S(pair,2)}")
    e.wait(lg=0)
    op(f"v_writelane_b32 {V(vST)}, {S(pair)}, {i}")

def srd(dst, src, size):
    op(f"s_mov_b32 {S(dst)}, {S(src)}")
    op(f"s_and_b32 {S(dst+1)}, {S(src+1)}, 0xffff")
    op(f"s_mov_b32 {S(dst+2)}, {hx(size)}")
    op(f"s_mov_b32 {S(dst+3)}, 0x20000")

def dma(voff, srdreg, soff, imm=0, mods=""):
    o = f" offset:{imm}" if imm else ""
    return op(f"buffer_load_dwordx4 {V(voff)}, {S(srdreg,4)}, {soff} offen{o}{mods} lds")

def mfma(d, a, b, c):
    op(f"v_mfma_f32_32x32x16_bf16 {d}, {a}, {b}, {c}")

def halves_sum(r, tmp):
    op(f"v_mov_b32 {V(tmp)}, {V(r)}")
    op(f"v_permlane32_swap_b32 {V(r)}, {V(tmp)}")
    op(f"v_add_f32 {V(r)}, {V(r)}, {V(tmp)}")

def split_hi_lo(val, hi_pk, lo, tmp):
    op(f"v_cvt_pk_bf16_f32 {V(hi_pk)}, {V(val)}, {V(val)}")
    op(f"v_and_b32 {V(tmp)}, 0xffff0000, {V(hi_pk)}")
    op(f"v_sub_f32 {V(lo)}, {V(val)}, {V(tmp)}")

def poll(voff, soff, need_mask, lo_expect, span, tlo, thi, code):
    L = e.fresh("poll"); D = e.fresh("polldone"); T = e.fresh("pollto")
    op(f"s_mov_b32 {S(sT5)}, 0x40000")
    e.wait(vm=0, lg=0)
    e.loop_label(L)
    op(f"buffer_load_dwordx2 {V(tlo,2)}, {V(voff)}, {S(sWS,4)}, {soff} offen sc1")
    e.wait(vm=0)
    op(f"v_subrev_u32 {V(tlo)}, {lo_expect}, {V(tlo)}")
    op(f"v_cmp_eq_u32 vcc, {thi}, {V(tlo+1)}")
    op(f"v_cmp_gt_u32 {S(sPA,2)}, {span}, {V(tlo)}")
    op(f"s_and_b64 vcc, vcc, {S(sPA,2)}")
    op(f"s_andn2_b64 {S(sPA,2)}, {need_mask}, vcc")
    op(f"s_cbranch_scc0 {D}")
    op(f"s_sub_u32 {S(sT5)}, {S(sT5)}, 1")
    op(f"s_cbranch_scc1 {T}")
    op(f"s_branch {L}")
    e.label(T)
    op(f"v_mov_b32 {V(tlo)}, {code}")
    op(f"v_mov_b32 {V(tlo+1)}, 0")
    op(f"global_store_dword {V(tlo+1)}, {V(tlo)}, {S(sDBG,2)}")
    e.wait(vm=0)
    e.label(D)

WT = (sys.argv[sys.argv.index("--wt")+1] if "--wt" in sys.argv else "ohg")
def stores_mode(fn, cls="f"):
    if cls in WT:
        fn(" sc1")
        return
    F = e.fresh("fast"); D = e.fresh("stdone")
    op(f"s_cmp_eq_u32 {S(sFAST)}, 1")
    op(f"s_cbranch_scc1 {F}")
    fn(" sc1")
    op(f"s_branch {D}")
    e.label(F)
    fn("")
    e.label(D)

def wave0(fn):
    D = e.fresh("w0")
    op(f"s_cmp_lg_u32 {S(sW)}, 0")
    op(f"s_cbranch_scc1 {D}")
    fn()
    e.label(D)

def group_signal(phase):
    e.wait(vm=0)
    e.barrier()
    def f():
        op(f"s_add_u32 {S(sT0)}, {S(sBASE)}, {8+phase}")
        op(f"v_mov_b32 {V(18)}, {S(sT0)}")
        op(f"v_mov_b32 {V(19)}, {S(sTHI)}")
        op(f"s_lshl_b32 {S(sT1)}, {S(sG)}, 7")
        op(f"s_lshl_b32 {S(sT2)}, {S(sM)}, 3")
        op(f"s_add_u32 {S(sT1)}, {S(sT1)}, {S(sT2)}")
        op(f"s_add_u32 {S(sT1)}, {S(sT1)}, {hx(WS_GF)}")
        op(f"v_mov_b32 {V(17)}, 0")
        op("s_mov_b64 exec, 1")
        stores_mode(lambda m: op(f"buffer_store_dwordx2 {V(18,2)}, {V(17)}, {S(sWS,4)}, {S(sT1)} offen{m}"))
        op("s_mov_b64 exec, -1")
    wave0(f)

def group_wait(phase, mask_fn):
    def f():
        mask_fn()
        op(f"v_and_b32 {V(17)}, 15, {V(vL)}")
        op(f"v_lshlrev_b32 {V(17)}, 3, {V(17)}")
        op(f"s_lshl_b32 {S(sT1)}, {S(sG)}, 7")
        op(f"s_add_u32 {S(sT1)}, {S(sT1)}, {hx(WS_GF)}")
        op(f"s_add_u32 {S(sT0)}, {S(sBASE)}, {8+phase}")
        poll(17, S(sT1), S(sT2,2), S(sT0), 4-phase, 18, S(sTHI), 0x100+phase)
    wave0(f)
    e.barrier()

from collections import deque
sBG = 3
bg = deque()
def tick(n=1):
    for _ in range(n):
        if bg:
            bg.popleft()()
def drain():
    while bg:
        bg.popleft()()

KERNEL = NAME + "_kernel"
op("s_cmp_ge_u32 s2, 0x100")
op("s_cbranch_scc1 L_end")
op("s_load_dwordx16 s[44:59], s[0:1], 0")
op("s_load_dwordx4 s[60:63], s[0:1], 64")
op("s_load_dwordx2 s[4:5], s[0:1], 80")
op("s_getpc_b64 s[92:93]")
e.label("L_pc")
op("v_and_b32 v17, 15, v0")
op("v_lshrrev_b32 v18, 6, v0")
op("v_lshl_add_u32 v17, v18, 4, v17")
op("s_lshr_b32 s97, s2, 3")
op("s_lshl_b32 s96, s97, 4")
op("v_and_b32 v19, 3, v0")
op("v_lshl_add_u32 v19, v18, 2, v19")
op("v_add_u32 v19, s96, v19")
op("v_add_u32 v19, 64, v19")
op("v_and_b32 v18, 16, v0")
op("v_cmp_eq_u32 vcc, 0, v18")
op(f"s_sub_u32 s92, s92, L_pc-{KERNEL}")
op("s_subb_u32 s93, s93, 0")
op("v_cndmask_b32 v17, v19, v17, vcc")
op("v_lshlrev_b32 v17, 7, v17")
op(f"v_min_u32 v17, L_code_end-{KERNEL}-4, v17")
op("s_mov_b64 exec, 0xfffff")
op("global_load_dword v242, v17, s[92:93]")
op("s_mov_b64 exec, -1")
vXD0, vXD1, vWD0, vWD1 = 192, 193, 194, 195
vXR = 196
vWRe, vWRo, vWReH, vWRoH = 200, 201, 202, 203
vWD = 20
op(f"v_lshrrev_b32 {V(17)}, 6, v0")
op(f"v_and_b32 {V(vL)}, 63, v0")
op(f"v_readfirstlane_b32 s3, {V(17)}")
op(f"v_lshlrev_b32 {V(vL16)}, 4, {V(vL)}")
if PROF:
    op(f"v_mov_b32 {V(vST)}, 0")
op(f"v_lshrrev_b32 {V(17)}, 3, {V(vL)}")
op(f"v_lshrrev_b32 {V(18)}, 4, {V(vL)}")
op(f"v_and_b32 {V(19)}, 7, {V(vL)}")
op(f"v_xor_b32 {V(vXD0)}, {V(19)}, {V(18)}")
op(f"v_lshlrev_b32 {V(vXD0)}, 4, {V(vXD0)}")
op(f"v_lshl_add_u32 {V(vXD0)}, {V(17)}, 10, {V(vXD0)}")
op(f"v_and_b32 {V(18)}, 1, {V(18)}")
op(f"v_lshlrev_b32 {V(18)}, 2, {V(18)}")
op(f"v_xor_b32 {V(19)}, {V(19)}, {V(18)}")
op(f"v_lshlrev_b32 {V(19)}, 4, {V(19)}")
op(f"v_mul_u32_u24 {V(vWD0)}, 3072, {V(17)}")
op(f"v_add_u32 {V(vWD0)}, {V(vWD0)}, {V(19)}")
op(f"v_lshl_add_u32 {V(vWD)}, {V(17)}, 10, {V(19)}")
op("s_lshr_b32 s97, s2, 3")
op("s_and_b32 s96, s2, 7")
op("s_lshl_b32 s96, s96, 1")
op("s_lshr_b32 s98, s97, 4")
op("s_add_u32 s96, s96, s98")
op("s_and_b32 s98, s97, 15")
op("s_lshr_b32 s99, s98, 3")
op("s_lshl_b32 s100, s96, 1")
op("s_add_u32 s99, s99, s100")
op("s_and_b32 s100, s98, 7")
ROT = os.environ.get("ROT", "2")
if ROT == "2":
    op("s_and_b32 s101, s99, 3"); op("s_lshl_b32 s101, s101, 1"); op("s_add_u32 s101, s101, s100")
elif ROT == "0":
    op("s_mov_b32 s101, s100")
elif ROT == "4":
    op("s_and_b32 s101, s99, 1"); op("s_lshl_b32 s101, s101, 2"); op("s_add_u32 s101, s101, s100")
elif ROT == "1":
    op("s_and_b32 s101, s99, 3"); op("s_add_u32 s101, s101, s100")
elif ROT == "c":
    op("s_mov_b32 s101, 0")
op("s_lshl_b32 s64, s99, 16")
op("s_lshl_b32 s65, s3, 14")
op("s_add_u32 s64, s64, s65")
op(f"v_add_u32 {V(vXD0)}, s64, {V(vXD0)}")
op(f"v_xor_b32 {V(vXD1)}, 64, {V(vXD0)}")
op(f"v_add_u32 {V(vXD1)}, {8192-1024}, {V(vXD1)}")
op(f"s_mul_i32 s64, s3, {16*3072}")
import os
if "h" in os.environ.get("XK", ""):
    op("s_add_u32 s65, s100, 1"); op("s_and_b32 s65, s65, 7"); op("s_lshl_b32 s65, s65, 7")
else:
    op("s_lshl_b32 s65, s100, 7")
op("s_add_u32 s64, s64, s65")
op(f"v_add_u32 {V(vWD0)}, s64, {V(vWD0)}")
op(f"v_add_u32 {V(vWD1)}, {8*3072-1024}, {V(vWD0)}")
op(f"v_add_u32 {V(vWD)}, s65, {V(vWD)}")
def chunk_offs(i):
    op(f"s_add_u32 s2, s101, {i}")
    op("s_and_b32 s2, s2, 7")
    op(f"s_lshl_b32 {S(sCX+i)}, s2, 7")
    op(f"s_mul_i32 {S(sCW+i)}, s2, {64*3072}")
for i in range(8):
    chunk_offs(i)
e.wait(lg=0)
stamp("t0", 88)
op("s_mov_b32 s0, s3")
srd(sX, 44, 2048*1024)
srd(sWQ, 46, 512*3072)
op(f"s_lshl_b32 s1, s0, 11")

xtok, itok = {}, {}
def x_acts(i, woff):
    def a0():
        op(f"s_add_u32 m0, {woff}, {L_X + i*8192}")
        dma(vXD0, sX, S(sCX+i))
    def a1():
        xtok[i] = dma(vXD1, sX, S(sCX+i), 1024)
    return [a0, a1]
def item_acts(it, woff):
    slot = it % 5
    acts = []
    for sg in range(2):
        ch, seg = (it, 1 + sg) if it < 8 else (2*(it-8) + sg, 0)
        def a0(sg=sg, ch=ch, seg=seg):
            op(f"s_add_u32 m0, {woff}, {L_RING + slot*16384 + sg*8192}")
            op(f"s_add_u32 {S(sBG)}, {S(sCW+ch)}, {seg*1024}")
            dma(vWD0, sWQ, S(sBG))
        def a1():
            itok[it] = dma(vWD1, sWQ, S(sBG), 1024)
        acts += [a0, a1]
    return acts
for a in x_acts(0, "s1") + item_acts(0, "s1"):
    a()
pro = []
class Rec:
    def __enter__(self):
        global op
        self.old = op
        op = lambda t: pro.append(t)
    def __exit__(self, *a):
        global op
        op = self.old
aK, aV, aQ, aR = 32, 48, 64, 80
XF, WF = 96, 112
sx0, sx1, sq0, sq1, cK0, cK1, cV0, cV1 = range(144, 152)
SF, CFK, CFV, RF, ONF, OCF = 160, 164, 168, 172, 176, 204
aKT, aVT = 0, 40
MK = 22
def tr_base128(dst, half_mul, tmp):
    op(f"v_bfe_u32 {V(tmp)}, {V(vL)}, 2, 2")
    op(f"v_lshlrev_b32 {V(dst)}, 7, {V(tmp)}")
    op(f"v_lshrrev_b32 {V(tmp)}, 1, {V(tmp)}")
    op(f"v_lshl_add_u32 {V(dst)}, {V(tmp)}, 6, {V(dst)}")
    op(f"v_bfe_u32 {V(tmp)}, {V(vL)}, 4, 1")
    op(f"v_lshl_add_u32 {V(dst)}, {V(tmp)}, 5, {V(dst)}")
    op(f"v_and_b32 {V(tmp)}, 3, {V(vL)}")
    op(f"v_lshl_add_u32 {V(dst)}, {V(tmp)}, 3, {V(dst)}")
    op(f"v_lshrrev_b32 {V(tmp)}, 5, {V(vL)}")
    op(f"v_lshl_add_u32 {V(dst)}, {V(tmp)}, {half_mul}, {V(dst)}")
with Rec():
    srd(sWS, 4, WS_SIZE)
    op(f"s_add_u32 s4, s99, 1")
    op(f"v_add_u32 {V(18)}, s4, {V(vL)}")
    op(f"v_lshrrev_b32 {V(18)}, 1, {V(18)}")
    op(f"v_min_u32 {V(18)}, 15, {V(18)}")
    op(f"v_mov_b32 {V(19)}, s96")
    op(f"v_cmp_gt_u32 vcc, 4, {V(vL)}")
    srd(sWO, 48, 512*1024)
    op(f"v_cndmask_b32 {V(18)}, {V(19)}, {V(18)}, vcc")
    op(f"v_lshlrev_b32 {V(18)}, 3, {V(18)}")
    op(f"buffer_load_dwordx2 {V(vTLO,2)}, {V(18)}, {S(sWS,4)}, 0 offen sc1")
    srd(sW1, 52, 512*3584)
    srd(sB1, 54, 1792*2)
    srd(sW2, 56, 1792*1024)
    srd(sB2, 58, 1024)
    srd(sOUT, 60, 2048*1024)
    op(f"s_mov_b64 {S(sDBG,2)}, s[62:63]")
    op(f"s_mov_b32 {S(sW)}, s0")
    op(f"s_mov_b32 {S(sG)}, s96")
    op(f"s_mov_b32 {S(sM)}, s98")
    op(f"s_mov_b32 {S(sTB)}, s99")
    op(f"s_mov_b32 {S(sHQ)}, s100")
    op(f"s_mov_b32 {S(sWOFF)}, s1")
    op(f"s_lshr_b32 {S(sP)}, {S(sW)}, 1")
    op(f"s_and_b32 {S(sT_)}, {S(sW)}, 1")
    op(f"s_mov_b32 {S(sONES)}, 0x3f803f80")
    op(f"s_sub_u32 s0, s100, s101")
    op(f"s_and_b32 s0, s0, 7")
    op(f"s_lshl_b32 s0, s0, 13")
    op(f"s_xor_b32 {S(sT3)}, {S(sP)}, {S(sT_)}")
    op(f"v_and_b32 {V(17)}, 31, {V(vL)}")
    op(f"v_lshrrev_b32 {V(18)}, 5, {V(vL)}")
    op(f"v_bfe_u32 {V(32)}, {V(vL)}, 1, 3")
    op(f"v_xor_b32 {V(32)}, {V(32)}, {V(18)}")
    op(f"v_lshlrev_b32 {V(32)}, 4, {V(32)}")
    op(f"v_lshl_add_u32 {V(32)}, {V(17)}, 7, {V(32)}")
    op(f"s_lshl_b32 {S(sT1)}, {S(sT_)}, 12")
    op(f"v_add_u32 {V(32)}, {S(sT1)}, {V(32)}")
    op(f"s_lshl_b32 {S(sT1)}, {S(sT3)}, 5")
    op(f"v_xor_b32 {V(32)}, {S(sT1)}, {V(32)}")
    for s_ in range(4):
        op(f"v_xor_b32 {V(vXR+s_)}, {s_<<5}, {V(32)}")
    tr_base128(33, 10, 34)
    op(f"s_lshl_b32 {S(sT1)}, {S(sP)}, 6")
    op(f"v_xor_b32 {V(33)}, {S(sT1)}, {V(33)}")
    op(f"v_add_u32 {V(33)}, {L_RING}, {V(33)}")
    op(f"s_lshl_b32 {S(sT1)}, {S(sT3)}, 11")
    op(f"v_add_u32 {V(vWRe)}, {S(sT1)}, {V(33)}")
    op(f"v_subrev_u32 {V(vWRo)}, {S(sT1)}, {V(33)}")
    op(f"v_add_u32 {V(vWReH)}, 0x10000, {V(vWRe)}")
    op(f"v_add_u32 {V(vWRoH)}, 0x10000, {V(vWRo)}")
    op(f"s_mov_b32 {S(sLOW)}, -1")
    op(f"s_mov_b32 {S(sLOW+1)}, 0")
    op(f"s_mov_b32 {S(sM16)}, 0xffff")
    op(f"s_mov_b32 {S(sM16+1)}, 0xffff")
    op(f"s_getreg_b32 {S(sXCC)}, hwreg(HW_REG_XCC_ID, 0, 4)")
    for r in list(range(144, 152)) + [SF+2, SF+3, CFK+2, CFK+3, CFV+2, CFV+3, RF+1, RF+2, RF+3, ONF+1, ONF+2, ONF+3]:
        op(f"v_mov_b32 {V(r)}, 0")
    op(f"v_mov_b32 {V(ONF)}, {S(sONES)}")
    op(f"v_lshlrev_b32 {V(18)}, 2, {V(18)}")
    op(f"v_sub_u32 {V(17)}, {V(17)}, {V(18)}")
    op(f"v_mov_b32 {V(18)}, 0xffff")
    op(f"v_mov_b32 {V(19)}, 0xffff0000")
    for i in range(8):
        c0 = 8*((2*i) >> 2) + ((2*i) & 3)
        op(f"v_cmp_le_i32 vcc, {c0}, {V(17)}")
        op(f"v_cmp_le_i32 {S(sPA,2)}, {c0+1}, {V(17)}")
        op(f"v_cndmask_b32 {V(32)}, 0, {V(18)}, vcc")
        op(f"v_cndmask_b32 {V(MK+i)}, 0, {V(19)}, {S(sPA,2)}")
        op(f"v_or_b32 {V(MK+i)}, {V(MK+i)}, {V(32)}")
    op(f"v_mov_b32 {V(32)}, 0x3afe3f80")
    op(f"v_cndmask_b32 {V(RF)}, 0, {V(32)}, {S(sLOW,2)}")
    op("s_nop 0")
    for k_ in range(5):
        mfma(A(aVT+16*k_,16), V(RF,4), V(ONF,4), "0")
acts = x_acts(1, "s1") + item_acts(1, "s1")
nper = 6
k = 0
masked = False
due = 0
for i, t in enumerate(pro):
    if t.startswith("LABEL"):
        e.label(t.split()[1])
    else:
        op(t)
    if t.startswith("s_mov_b64 exec"):
        masked = not t.endswith("-1")
    if (i + 1) % nper == 0:
        due += 1
    if due and k < len(acts) and not masked and not t.startswith(("s_getpc", "LABEL", "s_sub_u32 s100")):
        acts[k](); k += 1; due -= 1
for f in acts[k:]:
    f()
stamp("start")
if PROF:
    pass

def w_read_ops(it, sg, s, d):
    slot = it % 5
    base = (vWRe if s % 2 == 0 else vWRo) if slot < 4 else (vWReH if s % 2 == 0 else vWRoH)
    off = (slot % 4) * 16384 + sg*8192 + s*2048
    return [f"ds_read_b64_tr_b16 {V(d,2)}, {V(base)} offset:{off}",
            f"ds_read_b64_tr_b16 {V(d+2,2)}, {V(base)} offset:{off+512}"]
def x_read_op(ch, s, d):
    return f"ds_read_b128 {V(d,4)}, {V(vXR+s)} offset:{L_X + ch*8192}"
def dot_ones(acc, r):
    return f"v_dot2c_f32_bf16 {V(acc)}, {S(sONES)}, {V(r)}"
def dot_sq(acc, r):
    return f"v_dot2c_f32_bf16 {V(acc)}, {V(r)}, {V(r)}"

def late_loads():
    if SCOUT:
        op(f"s_lshl_b32 {S(sT1)}, {S(sG)}, 4")
        op(f"s_add_u32 {S(sT1)}, {S(sT1)}, {S(sM)}")
        op(f"s_lshl_b32 {S(sT1)}, {S(sT1)}, 2")
        op(f"s_add_u32 {S(sT1)}, {S(sT1)}, {S(sW)}")
        op(f"v_lshlrev_b32 {V(17)}, 7, {V(vL)}")
        op(f"s_mul_i32 {S(sT2)}, {S(sT1)}, {14*128}")
        op(f"s_mov_b64 exec, 0x3fff")
        op(f"buffer_load_dword {V(243)}, {V(17)}, {S(sW1,4)}, {S(sT2)} offen")
        op(f"buffer_load_dword {V(244)}, {V(17)}, {S(sW2,4)}, {S(sT2)} offen")
        op("s_mov_b64 exec, -1")
def small_loads():
    op(f"v_lshrrev_b32 {V(17)}, 5, {V(vL)}")
    op(f"v_lshlrev_b32 {V(17)}, 3, {V(17)}")
    op(f"s_lshl_b32 {S(sT1)}, {S(sHQ)}, 7")
    op(f"s_lshl_b32 {S(sT2)}, {S(sW)}, 5")
    op(f"s_add_u32 {S(sT1)}, {S(sT1)}, {S(sT2)}")
    op(f"buffer_load_dwordx2 {V(vB2,2)}, {V(17)}, {S(sB2,4)}, {S(sT1)} offen")
    op(f"buffer_load_dwordx2 {V(vB2+2,2)}, {V(17)}, {S(sB2,4)}, {S(sT1)} offen offset:16")
    if TLBW:
        op(f"v_lshlrev_b32 {V(17)}, 21, {V(vL)}")
        op(f"v_add_u32 {V(17)}, 0xc000, {V(17)}")
        op(f"s_mov_b64 exec, 0xff")
        op(f"buffer_load_dword {V(241)}, {V(17)}, {S(sWS,4)}, 0 offen")
        op(f"s_mov_b64 exec, 1")
        op(f"buffer_load_dword {V(240)}, {V(vL)}, {S(sOUT,4)}, 0 offen")
        op("s_mov_b64 exec, -1")
    if SCOUT:
        op(f"s_lshl_b32 {S(sT1)}, {S(sG)}, 4")
        op(f"s_add_u32 {S(sT1)}, {S(sT1)}, {S(sM)}")
        op(f"s_lshl_b32 {S(sT1)}, {S(sT1)}, 2")
        op(f"s_add_u32 {S(sT1)}, {S(sT1)}, {S(sW)}")
        op(f"v_lshlrev_b32 {V(17)}, 7, {V(vL)}")
        op(f"s_lshl_b32 {S(sT1)}, {S(sT1)}, 9")
        op(f"s_mov_b64 exec, 0xf")
        op(f"buffer_load_dword {V(245)}, {V(17)}, {S(sWO,4)}, {S(sT1)} offen")
        op("s_mov_b64 exec, -1")
def spread(lst, k, n):
    return lst[len(lst)*k//n : len(lst)*(k+1)//n]
def record(fn):
    global op
    old = op; lst = []
    op = lambda t: lst.append(t)
    fn()
    op = old
    return lst
def l2_warm(srdreg, lines_per_wg, k, vPF=239):
    per_wave = lines_per_wg // 4
    op(f"s_and_b32 {S(sT1)}, {S(sG)}, 1")
    op(f"s_lshl_b32 {S(sT1)}, {S(sT1)}, 4")
    op(f"s_add_u32 {S(sT1)}, {S(sT1)}, {S(sM)}")
    op(f"s_lshl_b32 {S(sT1)}, {S(sT1)}, 2")
    op(f"s_add_u32 {S(sT1)}, {S(sT1)}, {S(sW)}")
    op(f"s_mul_i32 {S(sT1)}, {S(sT1)}, {per_wave*128}")
    op(f"v_add_u32 {V(17)}, {64*k}, {V(vL)}")
    op(f"v_min_u32 {V(17)}, {per_wave-1}, {V(17)}")
    op(f"v_lshlrev_b32 {V(17)}, 7, {V(17)}")
    op(f"buffer_load_dword {V(vPF)}, {V(17)}, {S(srdreg,4)}, {S(sT1)} offen")
import os
XK = os.environ.get("XK", "")
def kv_reads(it, s):
    if "r" in XK and it > 0: return
    e.ops([x_read_op(it, s, XF+4*s)] + w_read_ops(it, 0, s, WF+4*s) + w_read_ops(it, 1, s, WF+16+4*s))
def mK(s, first=False):
    mfma(V(aK,16), V(WF+4*s,4), V(XF+4*s,4), "0" if first else V(aK,16))
def mV(s, first=False):
    mfma(V(aV,16), V(XF+4*s,4), V(WF+16+4*s,4), "0" if first else V(aV,16))
def kv_dots(mid=None):
    if "d" in XK:
        if mid: mid(); mid()
        return
    for s in (1, 3):
        x = XF+4*s; k = WF+4*s; v = WF+16+4*s
        for j in range(4):
            op(dot_ones(sx0 if j % 2 == 0 else sx1, x+j))
            op(dot_sq(sq0 if j % 2 == 0 else sq1, x+j))
            op(dot_ones(cK0 if j % 2 == 0 else cK1, k+j))
            op(dot_ones(cV0 if j % 2 == 0 else cV1, v+j))
        if mid: mid()
for it in range(8):
    e.wait_tok(xtok[it], itok[it])
    if it == 0:
        op(f"v_add_u32 {V(vTHI)}, 0x9e3779b9, {V(vTHI)}")
        op(f"v_readlane_b32 {S(sELO)}, {V(vTLO)}, 4")
        op(f"v_add_u32 {V(vTLO)}, 1, {V(vTLO)}")
        op(f"v_lshlrev_b32 {V(vTLO)}, 4, {V(vTLO)}")
        op(f"v_readlane_b32 {S(sTHI)}, {V(vTHI)}, 4")
        op(f"v_readlane_b32 {S(sBASE)}, {V(vTLO)}, 4")
    e.wait(lg=0)
    e.barrier()
    stamp(f"it{it}")
    if it == 0 and PROF:
        op(f"s_memtime {S(sPA,2)}")
        e.wait(lg=0)
        op(f"v_writelane_b32 {V(vST)}, {S(sPA)}, 60")
    if "m" in XK:
        xtok[it+3] = itok[it+3] = itok[11] = None
    else:
        if it == 0:
            bg.extend(x_acts(2, S(sWOFF)) + item_acts(2, S(sWOFF)))
        if it + 3 < 8:
            bg.extend(x_acts(it+3, S(sWOFF)))
        bg.extend(item_acts(it+3, S(sWOFF)))
        if it == 7:
            bg.extend(item_acts(11, S(sWOFF)))
    if it > 0: mK(3)
    kv_reads(it, 0)
    if it > 0: mV(3)
    kv_reads(it, 2)
    tick(1)
    if it > 0:
        kv_dots(tick)
    else:
        def census():
            op(f"s_add_u32 {S(sT0)}, {S(sBASE)}, {S(sXCC)}")
            op(f"v_mov_b32 {V(18)}, {S(sT0)}")
            op(f"v_mov_b32 {V(19)}, {S(sTHI)}")
            op(f"s_lshl_b32 {S(sT1)}, {S(sG)}, 7")
            op(f"s_lshl_b32 {S(sT2)}, {S(sM)}, 3")
            op(f"s_add_u32 {S(sT1)}, {S(sT1)}, {S(sT2)}")
            op(f"v_mov_b32 {V(17)}, 0")
            op("s_mov_b64 exec, 1")
            op(f"buffer_store_dwordx2 {V(18,2)}, {V(17)}, {S(sWS,4)}, {S(sT1)} offen offset:{WS_CEN} sc1")
            op("s_mov_b64 exec, -1")
        tick(3)
        wave0(census)
        tick(3)
    mK(0, it == 0); kv_reads(it, 1)
    mV(0, it == 0); kv_reads(it, 3)
    mK(2); tick(1)
    mV(2)
    if it in (0, 7): tick(1)
    if it == 5: small_loads()
    mK(1); tick(1)
    mV(1); tick(1)
    if it in (0, 7):
        drain()
    assert not bg
stamp("p1_kvloop")

vMU, vT0, vT1, vT2 = 152, 153, 154, 155
vR = 156
EXV, EXP = 184, 188
vVS, vKW, vVW, vVR = 180, 181, 182, 183
vCX = 17
kv_dots()
mK(3)
op(f"v_add_f32 {V(EXV)}, {V(cK0)}, {V(cK1)}")
op(f"v_add_f32 {V(EXV+1)}, {V(cV0)}, {V(cV1)}")
op(f"v_add_f32 {V(EXV+2)}, {V(sx0)}, {V(sx1)}")
op(f"v_add_f32 {V(EXV+3)}, {V(sq0)}, {V(sq1)}")
for k in range(4):
    op(f"v_mov_b32 {V(EXP+k)}, {V(EXV+k)}")
mV(3)
op(f"s_lshl_b32 {S(sT1)}, {S(sW)}, 10")
op(f"s_add_u32 {S(sT1)}, {S(sT1)}, {L_MISC}")
for k in range(4):
    op(f"v_permlane32_swap_b32 {V(EXV+k)}, {V(EXP+k)}")
op(f"v_add_u32 {V(vCX)}, {S(sT1)}, {V(vL16)}")
for k in range(4):
    op(f"v_add_f32 {V(EXV+k)}, {V(EXV+k)}, {V(EXP+k)}")
op(f"ds_write_b128 {V(vCX)}, {V(EXV,4)}")
op(f"v_xor_b32 {V(18)}, 1024, {V(vCX)}")
op(f"v_xor_b32 {V(19)}, 2048, {V(vCX)}")
op(f"v_bfe_u32 {V(vT0)}, {V(vL)}, 4, 1")
op(f"v_lshrrev_b32 {V(vT1)}, 5, {V(vL)}")
op(f"v_and_b32 {V(vVR)}, 15, {V(vL)}")
op(f"v_lshlrev_b32 {V(vVR)}, 4, {V(vVR)}")
op(f"v_lshl_add_u32 {V(vVR)}, {V(vT1)}, 8, {V(vVR)}")
op(f"v_lshl_add_u32 {V(vVS)}, {V(vT0)}, 16, {V(vVR)}")
op(f"v_lshl_add_u32 {V(vVW)}, {V(vT0)}, 11, {V(vVR)}")
op(f"s_lshl_b32 {S(sT0)}, {S(sHQ)}, 1")
op(f"s_add_u32 {S(sT0)}, {S(sT0)}, {S(sP)}")
op(f"s_lshl_b32 {S(sT0)}, {S(sT0)}, 7")
op(f"s_lshl_b32 {S(sT1)}, {S(sTB)}, 1")
op(f"s_add_u32 {S(sT0)}, {S(sT0)}, {S(sT1)}")
op(f"s_add_u32 {S(sT0)}, {S(sT0)}, {S(sT_)}")
e.wait(lg=0)
e.barrier()
op(f"ds_read_b64 {V(EXP+2,2)}, {V(19)} offset:8")
op(f"ds_read_b64 {V(EXP,2)}, {V(18)}")
op(f"s_lshl_b32 {S(sT0)}, {S(sT0)}, 10")
op(f"s_add_u32 {S(sT1)}, {S(sT0)}, {hx(WS_K)}")
op(f"s_add_u32 {S(sT2)}, {S(sT0)}, {hx(WS_K + 65536)}")
op(f"s_add_u32 {S(sT3)}, {S(sT0)}, {hx(WS_V)}")
op(f"s_lshl_b32 s4, {S(sP)}, 12")
op(f"s_lshl_b32 s5, {S(sT_)}, 10")
op(f"s_add_u32 s4, s4, s5")
op(f"s_add_u32 s4, s4, {L_EX}")
op(f"v_add_u32 {V(vKW)}, s4, {V(vL16)}")
op(f"v_add_u32 {V(vVW)}, s4, {V(vVW)}")
op(f"v_add_f32 {V(EXV+2)}, {V(EXV+2)}, {V(EXP+2)}")
op(f"v_add_f32 {V(EXV+3)}, {V(EXV+3)}, {V(EXP+3)}")
op(f"v_mul_f32 {V(vMU)}, {hx(f2u(-1.0/512))}, {V(EXV+2)}")
op(f"v_add_f32 {V(EXV)}, {V(EXV)}, {V(EXP)}")
split_hi_lo(vMU, vT0, vT1, vT2)
op(f"v_cvt_pk_bf16_f32 {V(SF)}, {V(vMU)}, {V(vT1)}")
op(f"v_and_b32 {V(SF+1)}, 0xffff, {V(vT0)}")
split_hi_lo(EXV, CFK, vT1, vT2)
op(f"v_cndmask_b32 {V(SF)}, 0, {V(SF)}, {S(sLOW,2)}")
op(f"v_cndmask_b32 {V(SF+1)}, 0, {V(SF+1)}, {S(sLOW,2)}")
op(f"v_cvt_pk_bf16_f32 {V(CFK+1)}, {V(vT1)}, 0")
op(f"v_add_f32 {V(EXV+1)}, {V(EXV+1)}, {V(EXP+1)}")
op(f"v_mul_f32 {V(vT0)}, {hx(f2u(1.0/512))}, {V(EXV+3)}")
mfma(V(aK,16), V(CFK,4), V(SF,4), V(aK,16))
op(f"v_fma_f32 {V(vT0)}, -{V(vMU)}, {V(vMU)}, {V(vT0)}")
op(f"v_max_f32 {V(vT0)}, 0, {V(vT0)}")
op(f"v_add_f32 {V(vT0)}, {hx(f2u(1e-5))}, {V(vT0)}")
op(f"v_rsq_f32 {V(vR)}, {V(vT0)}")
split_hi_lo(EXV+1, CFV, vT1, vT2)
op(f"v_cvt_pk_bf16_f32 {V(CFV+1)}, {V(vT1)}, 0")
split_hi_lo(vR, vT0, vT1, vT2)
mfma(V(aV,16), V(SF,4), V(CFV,4), V(aV,16))
op(f"v_cvt_pk_bf16_f32 {V(RF)}, {V(vR)}, {V(vT1)}")
op(f"v_cndmask_b32 {V(RF)}, 0, {V(RF)}, {S(sLOW,2)}")
op(f"v_mul_f32 {V(vR+1)}, {hx(f2u(0.25*math.log2(math.e)))}, {V(vR)}")
KP, VP = 96, 104
for i in range(3):
    op(f"v_mul_f32 {V(aK+i)}, {V(aK+i)}, {V(vR)}")
mfma(V(aR,16), V(RF,4), V(ONF,4), "0")
for h in range(2):
    for i in range(3 if h == 0 else 0, 8):
        op(f"v_mul_f32 {V(aK+8*h+i)}, {V(aK+8*h+i)}, {V(vR)}")
    for i in range(4):
        op(f"v_cvt_pk_bf16_f32 {V(KP+4*h+i)}, {V(aK+8*h+2*i)}, {V(aK+8*h+2*i+1)}")
    op(f"buffer_store_dwordx4 {V(KP+4*h,4)}, {V(vL16)}, {S(sWS,4)}, {S(sT1+h)} offen sc1")
for h in range(2):
    for i in range(4):
        op(f"v_pk_mul_f32 {V(aV+8*h+2*i,2)}, {V(aV+8*h+2*i,2)}, {V(aR+8*h+2*i,2)}")
    for i in range(4):
        op(f"v_cvt_pk_bf16_f32 {V(VP+4*h+i)}, {V(aV+8*h+2*i)}, {V(aV+8*h+2*i+1)}")
    kvtok = op(f"buffer_store_dwordx4 {V(VP+4*h,4)}, {V(vVS)}, {S(sWS,4)}, {S(sT3)} offen offset:{512*h} sc1")
stamp("kv_stored")
e.wait_tok(itok[11])
e.barrier()

QB = [(112, 128), (204, 220)]
def q_reads(c):
    xb, wb = QB[c % 2]
    o = []
    for s in range(4):
        o += [x_read_op(c, s, xb+4*s)] + w_read_ops(8 + c//2, c % 2, s, wb+4*s)
    return o
e.ops(q_reads(0))
late_loads()
if PFW1:
    for k in range(2):
        l2_warm(sW1, 448, k, 240+k)
op(f"ds_write_b128 {V(vKW)}, {V(KP,4)}")
op(f"ds_write_b128 {V(vKW)}, {V(KP+4,4)} offset:2048")
op(f"ds_write_b128 {V(vVW)}, {V(VP,4)} offset:8192")
op(f"ds_write_b128 {V(vVW)}, {V(VP+4,4)} offset:{8192+512}")
cQ0, cQ1 = 144, 145
op(f"v_mov_b32 {V(cQ0)}, 0")
op(f"v_mov_b32 {V(cQ1)}, 0")
vWDk = [vWD, 236, 237, 238]
vW1 = [21, 189, 190, 191]
vTR0, vTR1 = 30, 31
WO = 192
sWO_L, sWO_R, sW4K = 0, 2, 1
def wo_like_addr(dst0, dst1, base_sreg, base_imm, tmp=19):
    tr_base128(dst0, 9, tmp)
    op(f"s_lshl_b32 {S(sT1)}, {S(sP)}, 6")
    op(f"s_lshl_b32 {S(sT2)}, {S(sT_)}, 5")
    op(f"s_or_b32 {S(sT1)}, {S(sT1)}, {S(sT2)}")
    op(f"v_xor_b32 {V(dst0)}, {S(sT1)}, {V(dst0)}")
    op(f"s_add_u32 {S(sT1)}, {base_sreg}, {base_imm}")
    op(f"v_add_u32 {V(dst0)}, {S(sT1)}, {V(dst0)}")
    op(f"v_xor_b32 {V(dst1)}, 64, {V(dst0)}")
def w1_addr_rest():
    for k in range(1, 4):
        op(f"v_add_u32 {V(vW1[k])}, {k*(4*3584-1024)}, {V(vW1[0])}")
def side_a():
    op(f"v_and_b32 {V(vT0)}, 31, {V(vL)}")
    op(f"v_bfe_u32 {V(vT1)}, {V(vL)}, 1, 3")
    op(f"s_lshl_b32 {S(sT1)}, {S(sW)}, 1")
    op(f"v_xor_b32 {V(vT1)}, {S(sT1)}, {V(vT1)}")
    op(f"v_lshlrev_b32 {V(vT1)}, 4, {V(vT1)}")
    op(f"v_lshl_add_u32 {V(vT1)}, {V(vT0)}, 7, {V(vT1)}")
    op(f"v_lshrrev_b32 {V(vT0)}, 5, {V(vL)}")
    op(f"v_lshl_add_u32 {V(vT1)}, {V(vT0)}, 3, {V(vT1)}")
    op(f"v_add_u32 {V(vT1)}, s0, {V(vT1)}")
    op(f"v_xor_b32 {V(vT2)}, 16, {V(vT1)}")
    for t in range(2):
        op(f"ds_read_b64 {V(vRES+4*t,2)}, {V(vT1)} offset:{L_X + t*4096}")
        op(f"ds_read_b64 {V(vRES+4*t+2,2)}, {V(vT2)} offset:{L_X + t*4096}")
    for k in range(1, 4):
        op(f"v_add_u32 {V(vWDk[k])}, {k*(8192-1024)}, {V(vWD)}")
    op(f"s_lshl_b32 {S(sWO_L)}, {S(sW)}, 13")
    op(f"s_lshl_b32 {S(sWO_R)}, {S(sW)}, 17")
    op(f"s_lshl_b32 {S(sW4K)}, {S(sW)}, 12")
    op(f"s_add_u32 {S(sT1)}, {S(sTB)}, 1")
    op(f"v_add_u32 {V(148)}, {S(sT1)}, {V(vL)}")
    op(f"v_cmp_gt_u32 vcc, 32, {V(148)}")
    op(f"v_cmp_gt_u32 s[4:5], 4, {V(vL)}")
    op(f"v_lshlrev_b32 {V(148)}, 3, {V(148)}")
    op(f"v_add_u32 {V(148)}, {S(sHQ)}, {V(148)}")
    op(f"v_lshlrev_b32 {V(148)}, 4, {V(148)}")
    op(f"v_add_u32 {V(148)}, {V(148)}, {V(vL)}")
    op(f"v_lshlrev_b32 {V(148)}, 3, {V(148)}")
    op(f"v_add_u32 {V(vTLO)}, 15, {V(vTLO)}")
    op(f"s_and_b64 s[4:5], s[4:5], vcc")
    op(f"v_and_b32 {V(149)}, 15, {V(vL)}")
    op(f"v_lshlrev_b32 {V(149)}, 3, {V(149)}")
def side_b():
    wo_like_addr(vTR0, vTR1, S(sWO_L), L_WOS)
    op(f"v_lshrrev_b32 {V(17)}, 4, {V(vL)}")
    op(f"v_lshlrev_b32 {V(18)}, 2, {V(17)}")
    op(f"v_and_b32 {V(19)}, 15, {V(vL)}")
    op(f"v_xor_b32 {V(18)}, {V(18)}, {V(19)}")
    op(f"v_lshlrev_b32 {V(18)}, 4, {V(18)}")
    op(f"v_mul_u32_u24 {V(vW1[0])}, 3584, {V(17)}")
    op(f"v_add_u32 {V(vW1[0])}, {V(vW1[0])}, {V(18)}")
    op(f"s_mul_i32 {S(sT1)}, {S(sW)}, {16*3584}")
    op(f"s_min_u32 {S(sT2)}, {S(sM)}, 13")
    op(f"s_lshl_b32 {S(sT2)}, {S(sT2)}, 8")
    op(f"s_add_u32 {S(sT1)}, {S(sT1)}, {S(sT2)}")
    op(f"v_add_u32 {V(vW1[0])}, {S(sT1)}, {V(vW1[0])}")
    for r in range(16):
        c0 = 8*(r >> 2) + (r & 3)
        op(f"s_mov_b32 {S(sCM+2*r)}, {hx(0xffffffff << c0)}")
        op(f"s_mov_b32 {S(sCM+2*r+1)}, {hx(0xffffffff << (c0+4))}")
    op(f"v_lshlrev_b32 {V(vCX)}, 2, {V(vL)}")
    op(f"s_lshl_b32 {S(sT1)}, {S(sW)}, 8")
    op(f"s_add_u32 {S(sT1)}, {S(sT1)}, {L_CQ}")
    op(f"v_add_u32 {V(vCX)}, {S(sT1)}, {V(vCX)}")
    op(f"v_add_u32 {V(vKW)}, {L_QX - L_EX}, {V(vKW)}")
    op(f"v_and_b32 {V(150)}, 3, {V(vL)}")
    op(f"v_lshlrev_b32 {V(150)}, 3, {V(150)}")
    op(f"s_lshl_b32 {S(sT4)}, {S(sTB)}, 3")
    op(f"s_add_u32 {S(sT4)}, {S(sT4)}, {S(sHQ)}")
    op(f"s_lshl_b32 {S(sT4)}, {S(sT4)}, 7")
    op(f"s_add_u32 {S(sT4)}, {S(sT4)}, {hx(WS_HALO)}")
sideA = record(side_a); sideB = record(side_b)
def stage_acts(srdreg, lds_sreg, lds_imm, row_sreg, row_imm, n, toks):
    acts = []
    for i in range(n):
        def a(i=i):
            if i % 4 == 0:
                op(f"s_add_u32 m0, {lds_sreg}, {lds_imm + i*1024}")
                op(f"s_add_u32 {S(sBG)}, {row_sreg}, {row_imm + i*8192}")
            toks.append(dma(vWDk[i % 4], srdreg, S(sBG), (i % 4)*1024))
        acts.append(a)
    return acts
wo1, wo2 = [], []
for c in range(8):
    xb, wb = QB[c % 2]
    nxt = q_reads(c+1) if c < 7 else []
    for s in range(4):
        mfma(V(aQ,16), V(wb+4*s,4), V(xb+4*s,4), "0" if (c == 0 and s == 0) else V(aQ,16))
        e.ops(nxt[3*s:3*s+3])
        if c < 3:
            e.ops(spread(sideA, 4*c+s, 12))
        elif c >= 4:
            e.ops(spread(sideB, 4*(c-4)+s, 16))
        if c >= 4 and s % 2 == 1:
            tick(1)
    for s in (1, 3):
        for j in range(4):
            op(dot_ones(cQ0 if j % 2 == 0 else cQ1, wb+4*s+j))
    if c == 3:
        e.wait_tok(kvtok)
        e.barrier()
        def halo_flags():
            D = e.fresh("nohalo")
            op("s_cmp_eq_u64 s[4:5], 0")
            op(f"s_cbranch_scc1 {D}")
            op("s_mov_b64 exec, s[4:5]")
            op(f"s_mov_b32 {S(sT1)}, {hx(WS_HALO)}")
            op(f"buffer_store_dwordx2 {V(vTLO,2)}, {V(148)}, {S(sWS,4)}, {S(sT1)} offen sc1")
            op("s_mov_b64 exec, -1")
            e.label(D)
        wave0(halo_flags)
        stamp("halo_sent")
        op(f"s_lshl_b32 {S(sT1)}, {S(sG)}, 7")
        op(f"buffer_load_dwordx2 {V(146,2)}, {V(149)}, {S(sWS,4)}, {S(sT1)} offen offset:{WS_CEN} sc1")
        bg.extend(stage_acts(sWO, S(sWO_L), L_WOS, S(sWO_R), 0, 8, wo1))
drain()
stamp("q_loop")
op(f"v_add_f32 {V(cQ0)}, {V(cQ0)}, {V(cQ1)}")
halves_sum(cQ0, vT0)
op(f"ds_write_b32 {V(vCX)}, {V(cQ0)}")
op(f"v_xor_b32 {V(vCX)}, 256, {V(vCX)}")
e.wait(lg=0)
e.barrier()
op(f"ds_read_b32 {V(cQ1)}, {V(vCX)}")
op(f"s_add_u32 {S(sT0)}, {S(sBASE)}, {S(sXCC)}")
op(f"v_cmp_eq_u32 vcc, {S(sT0)}, {V(146)}")
op(f"v_cmp_eq_u32 {S(sPA,2)}, {S(sTHI)}, {V(147)}")
op(f"s_and_b64 vcc, vcc, {S(sPA,2)}")
op(f"s_cmp_eq_u64 vcc, -1")
op(f"s_cselect_b32 {S(sFAST)}, {0 if SLOW else 1}, 0")
op(f"v_add_f32 {V(cQ0)}, {V(cQ0)}, {V(cQ1)}")
split_hi_lo(cQ0, CFK, vT1, vT2)
op(f"v_cvt_pk_bf16_f32 {V(CFK+1)}, {V(vT1)}, 0")
mfma(V(aQ,16), V(CFK,4), V(SF,4), V(aQ,16))
def tr_step_ops(dstf, s_local, a0=vTR0, a1=vTR1):
    return [f"ds_read_b64_tr_b16 {dstf(4*u+2*j)}, {V((a0, a1)[u])} offset:{s_local*2048+j*1024}" for u in range(2) for j in range(2)]
e.wait_tok(wo1[-1])
for s in range(3):
    e.ops(tr_step_ops(lambda o: V(WO+8*s+o, 2), s))
for i in range(8):
    op(f"v_pk_mul_f32 {V(aQ+2*i,2)}, {V(aQ+2*i,2)}, {V(vR,2)} op_sel:[0,1] op_sel_hi:[1,1]")
for i in range(8):
    op(f"v_cvt_pk_bf16_f32 {V(KP+i)}, {V(aQ+2*i)}, {V(aQ+2*i+1)}")
op(f"ds_write_b128 {V(vKW)}, {V(KP,4)}")
op(f"ds_write_b128 {V(vKW)}, {V(KP+4,4)} offset:2048")
e.ops(tr_step_ops(lambda o: V(WO+24+o, 2), 3))
wave0(lambda: op(f"buffer_load_dwordx2 {V(148,2)}, {V(150)}, {S(sWS,4)}, {S(sT4)} offen sc1"))
Q0 = 32
op(f"s_lshl_b32 {S(sT1)}, {S(sW)}, 11")
op(f"v_add_u32 {V(17)}, {S(sT1)}, {V(vL16)}")
op(f"v_add_u32 {V(18)}, {L_QX}, {V(17)}")
op(f"v_add_u32 {V(17)}, {L_EX}, {V(17)}")
op(f"s_add_u32 {S(sT1)}, {S(sT1)}, {L_EX + 8192}")
op(f"v_add_u32 {V(19)}, {S(sT1)}, {V(vVR)}")
w1_addr_rest()
e.wait(lg=0)
wo2acts = stage_acts(sWO, S(sWO_L), L_WOS, S(sWO_R), 8*8192, 8, wo2)
for f in wo2acts[:4]: f()
e.barrier()
for t in range(2):
    op(f"ds_read_b128 {V(Q0+4*t,4)}, {V(18)} offset:{t*1024}")
    op(f"ds_read_b128 {A(aKT+4*(8+t),4)}, {V(17)} offset:{t*1024}")
op(f"s_mov_b64 exec, {S(sM16,2)}")
for t in range(2):
    for st in range(2):
        op(f"ds_read_b128 {A(aVT+8*(8+t)+4*st,4)}, {V(19)} offset:{t*1024+st*512}")
op("s_mov_b64 exec, -1")
for f in wo2acts[4:]: f()
def w1_acts(G):
    acts = []
    for k in range(4):
        def a(k=k):
            if k == 0:
                op(f"s_add_u32 m0, {S(sW4K)}, {G*16384}")
                op(f"s_mov_b32 {S(sBG)}, {G*64*3584}")
            dma(vW1[k], sW1, S(sBG), k*1024)
        acts.append(a)
    return acts
op(f"s_lshl_b32 {S(sT0)}, {S(sHQ)}, 2")
op(f"s_add_u32 {S(sT0)}, {S(sT0)}, {S(sW)}")
op(f"s_lshl_b32 {S(sT0)}, {S(sT0)}, 6")
op(f"s_lshl_b32 {S(sT1)}, {S(sTB)}, 1")
op(f"s_add_u32 {S(sT0)}, {S(sT0)}, {S(sT1)}")
op(f"s_lshl_b32 {S(sT0)}, {S(sT0)}, 10")
op(f"s_add_u32 s4, {S(sT0)}, {hx(WS_K - 8192)}")
op(f"s_add_u32 s5, {S(sT0)}, {hx(WS_K - 4096)}")
sVA, sVB = 60, 49
op(f"s_add_u32 {S(sVB)}, {S(sT0)}, {hx(WS_V - 4096)}")
op(f"s_add_u32 {S(sVA)}, {S(sT0)}, {hx(WS_V - 8192)}")
NM = [40, 56]; MG = [72, 88]; SB = [104, 120, 136]; OA = [152, 168]
mx = [184, 185, 186, 187]
vNEG = 188
Kt = lambda j: A(aKT+4*j, 4)
Vt = lambda j, st: A(aVT+8*j+4*st, 4)
Qt = lambda i: V(Q0+4*i, 4)
op(f"v_mov_b32 {V(vNEG)}, 0xff800000")
for r in mx:
    op(f"v_mov_b32 {V(r)}, {V(vNEG)}")
def max_ops(i, b):
    return [f"v_max3_f32 {V(mx[2*i+(k&1)])}, {V(mx[2*i+(k&1)])}, {V(b+2*k)}, {V(b+2*k+1)}" for k in range(8)]
units = [(1, 8)] + [(i, j) for j in range(7, 1, -1) for i in range(2)] + [(0, 1), (1, 1), (0, 0)]
exit_at = {1: 1, 5: 2, 9: 3, 13: 4}
def s_mfma(n):
    i, j = units[n]
    mfma(V(SB[n % 3],16), Kt(j), Qt(i), "0")
s_mfma(0)
mfma(V(MG[0],16), Kt(8), Qt(0), "0")
mfma(V(MG[1],16), Kt(9), Qt(1), "0")
e.wait(lg=0)
stamp("q_done")
def halo_wait():
    D = e.fresh("haloearly")
    op(f"s_min_u32 {S(sT1)}, {S(sTB)}, 4")
    op(f"s_lshl_b32 {S(sT2)}, 1, {S(sT1)}")
    op(f"s_sub_u32 {S(sT2)}, {S(sT2)}, 1")
    op(f"s_mov_b32 {S(sT3)}, 0")
    op(f"s_add_u32 {S(sT1)}, {S(sBASE)}, 15")
    op(f"v_cmp_eq_u32 vcc, {S(sT1)}, {V(148)}")
    op(f"v_cmp_eq_u32 {S(sPA,2)}, {S(sTHI)}, {V(149)}")
    op(f"s_and_b64 vcc, vcc, {S(sPA,2)}")
    op(f"s_andn2_b64 {S(sPA,2)}, {S(sT2,2)}, vcc")
    op(f"s_cbranch_scc0 {D}")
    poll(150, S(sT4), S(sT2,2), S(sT1), 1, 18, S(sTHI), 0x100)
    e.label(D)
wave0(halo_wait)
e.barrier()
stamp("halo_ok")
for j in range(7, -1, -1):
    op(f"buffer_load_dwordx4 {A(aKT+4*j,4)}, {V(vL16)}, {S(sWS,4)}, {'s4' if j < 4 else 's5'} offen offset:{(j%4)*1024} sc1")
def v_loads(js):
    op(f"s_mov_b64 exec, {S(sM16,2)}")
    for j in js:
        for st in range(2):
            op(f"buffer_load_dwordx4 {A(aVT+8*j+4*st,4)}, {V(vVR)}, {S(sWS,4)}, {S(sVA if j < 4 else sVB)} offen offset:{(j%4)*1024+st*512} sc1")
    op("s_mov_b64 exec, -1")
e.ops(max_ops(1, SB[0]))
v_loads((7,))
s_mfma(1); s_mfma(2)
for n in range(1, len(units)):
    if n in exit_at:
        op(f"s_cmp_lt_u32 {S(sTB)}, {exit_at[n]}")
        op(f"s_cbranch_scc1 L_p1_short{exit_at[n]}")
    i, j = units[n]
    if n + 2 < len(units):
        s_mfma(n+2)
    if n == 3: v_loads((6,))
    if n == 6: v_loads((5,))
    if n == 8: v_loads((4,))
    if n < 14:
        e.ops(max_ops(i, SB[n % 3]))
    else:
        for r in range(16):
            op(f"v_cndmask_b32 {V(MG[i]+r)}, {V(SB[n%3]+r)}, {V(MG[i]+r)}, {S(sCM+2*r,2)}")
op("s_branch L_p1_join")
for k in range(1, 5):
    e.label(f"L_p1_short{k}")
for i in range(2):
    for r in range(16):
        op(f"v_cndmask_b32 {V(MG[i]+r)}, {V(vNEG)}, {V(MG[i]+r)}, {S(sCM+2*r,2)}")
e.label("L_p1_join")
e.ops(interleave(max_ops(0, MG[0]), max_ops(1, MG[1])))
for i in range(2):
    op(f"v_max_f32 {V(mx[2*i])}, {V(mx[2*i])}, {V(mx[2*i+1])}")
for i in range(2):
    op(f"v_mov_b32 {V(mx[2*i+1])}, {V(mx[2*i])}")
op("s_nop 0")
for i in range(2):
    op(f"v_permlane32_swap_b32 {V(mx[2*i])}, {V(mx[2*i+1])}")
for i in range(2):
    op(f"v_max_f32 {V(mx[2*i])}, {V(mx[2*i])}, {V(mx[2*i+1])}")
for i in range(2):
    op(f"v_sub_f32 {V(NM[i])}, 0, {V(mx[2*i])}")
    op(f"v_sub_f32 {V(NM[i]+1)}, 0, {V(mx[2*i])}")
for i in range(2):
    for k in range(1, 8):
        op(f"v_pk_mov_b32 {V(NM[i]+2*k,2)}, {V(NM[i],2)}, {V(NM[i],2)} op_sel:[0,1]")
stamp("att_p1")
full = units[:14]
def exp_cvt(b):
    o = []
    for k in range(8):
        o.append(f"v_exp_f32 {V(b+2*k)}, {V(b+2*k)}")
        o.append(f"v_exp_f32 {V(b+2*k+1)}, {V(b+2*k+1)}")
        if k >= 1:
            o.append(f"v_cvt_pk_bf16_f32 {V(b+k-1)}, {V(b+2*k-2)}, {V(b+2*k-1)}")
    o.append("NOP")
    o.append(f"v_cvt_pk_bf16_f32 {V(b+7)}, {V(b+14)}, {V(b+15)}")
    return o
def run_with(valu, inserts):
    for k, t in enumerate(valu):
        for f in inserts.get(k, []):
            f()
        if t != "NOP":
            op(t)
def s2(n):
    i, j = full[n]
    mfma(V(SB[n % 3],16), Kt(j), Qt(i), V(NM[i],16))
def pv(i, j, b, first=False):
    return [lambda: mfma(V(OA[i],16), Vt(j,0), V(b,4), "0" if first else V(OA[i],16)),
            lambda: mfma(V(OA[i],16), Vt(j,1), V(b+4,4), V(OA[i],16))]
for i in range(2):
    for k in range(8):
        op(f"v_pk_add_f32 {V(MG[i]+2*k,2)}, {V(MG[i]+2*k,2)}, {V(NM[i],2)}")
sS2L, sS2R = 0, 2
w2tok = {}
def w2_round_dma(r):
    w2tok[r] = []
    return stage_acts(sW2, S(sS2L), L_S2, S(sS2R), r*6*8192, 6, w2tok[r])
wotr = {}
def bg_list():
    L = [a for G in range(8) for a in w1_acts(G)]
    def wo_tr(s):
        def f():
            if s == 0: e.wait_tok(wo2[-1])
            for t in tr_step_ops(lambda o: V(WO+32+8*s+o, 2), s):
                wotr[s] = op(t)
        return f
    L[0:0] = [lambda: v_loads((3,)), lambda: v_loads((2,)), wo_tr(0), lambda: v_loads((1,)), wo_tr(1), lambda: v_loads((0,)), wo_tr(2), wo_tr(3)]
    if PFL2:
        L[0:0] = [lambda: l2_warm(sW2, 448, 0, 18), lambda: l2_warm(sW2, 448, 1, 188)]
    def first():
        global vWDk
        e.wait_tok(wotr[3])
        op(f"s_mul_i32 {S(sS2R)}, {S(sW)}, {448*1024}")
        vWDk = [vWD, 15, 14, 19]
        for k in range(1, 4):
            op(f"v_add_u32 {V(vWDk[k])}, {k*(8192-1024)}, {V(vWD)}")
        d0[0]()
    d0 = w2_round_dma(0)
    return L + [first] + d0[1:]
bg.extend(bg_list())
nbg = len(bg)
def split_ops(i):
    return [f"v_and_b32 {V(MG[i]+8+k)}, {V(MG[i]+k)}, {V(MK+k)}" for k in range(8)] + \
           [f"v_xor_b32 {V(MG[i]+k)}, {V(MG[i]+k)}, {V(MG[i]+8+k)}" for k in range(8)]
run_with(exp_cvt(MG[0]) + split_ops(0), {1: [lambda: s2(0)], 6: [lambda: s2(1)], 12: [tick], 20: [tick], 30: [tick]})
p0 = pv(0, 8, MG[0]+8, first=True)
run_with(exp_cvt(MG[1]) + split_ops(1), {2: [p0[0]], 7: [p0[1]], 12: [tick], 20: [tick], 30: [tick]})
pend = pv(1, 9, MG[1]+8, first=True)
done_before = {}
for n in range(len(full)):
    if n in exit_at:
        if pend:
            for f in pend: f()
            pend = None
        done_before[exit_at[n]] = nbg - len(bg)
        op(f"s_cmp_lt_u32 {S(sTB)}, {exit_at[n]}")
        op(f"s_cbranch_scc1 L_p2_short{exit_at[n]}")
    i, j = full[n]
    ins = {}
    if pend:
        ins[2] = [pend[0]]; ins[7] = [pend[1]]
    if n + 2 < len(full):
        ins.setdefault(13, []).append(lambda n=n: s2(n+2))
    for pos in ((4, 10, 16, 22) if n < 2 else (4, 10, 18)):
        ins.setdefault(pos, []).append(tick)
    if n == 13:
        for i2 in range(2):
            q = pv(i2, i2, MG[i2])
            ins.setdefault(12+6*i2, []).append(q[0]); ins.setdefault(15+6*i2, []).append(q[1])
    run_with(exp_cvt(SB[n % 3]), ins)
    pend = pv(i, j, SB[n % 3])
for f in pend: f()
assert not bg, len(bg)
op("s_branch L_p2_done")
save_tok = dict(w2tok)
allacts = bg_list()
for k in range(1, 5):
    e.label(f"L_p2_short{k}")
    lo = done_before[k]; hi = done_before[k+1] if k < 4 else nbg
    for a in allacts[lo:hi]:
        a()
e.wait(vm=0, lg=0)
w2tok.update(save_tok)
e.label("L_p2_done")
stamp("att_p2")
op(f"s_lshl_b32 {S(sT0)}, {S(sTB)}, 6")
op(f"s_lshl_b32 {S(sT1)}, {S(sHQ)}, 2")
op(f"s_add_u32 {S(sT0)}, {S(sT0)}, {S(sT1)}")
op(f"s_add_u32 {S(sT0)}, {S(sT0)}, {S(sW)}")
op(f"s_lshl_b32 {S(sT0)}, {S(sT0)}, 10")
op(f"s_add_u32 {S(sT0)}, {S(sT0)}, {hx(WS_O)}")
op(f"s_add_u32 {S(sT1)}, {S(sT0)}, 32768")
for i in range(2):
    op(f"v_rcp_f32 {V(mx[2*i])}, {V(OA[i]+8)}")
for i in range(2):
    for k in range(4):
        op(f"v_pk_mul_f32 {V(OA[i]+2*k,2)}, {V(OA[i]+2*k,2)}, {V(mx[2*i],2)} op_sel_hi:[1,0]")
    for k in range(4):
        op(f"v_cvt_pk_bf16_f32 {V(OA[i]+8+k)}, {V(OA[i]+2*k)}, {V(OA[i]+2*k+1)}")
def st_o(m):
    op(f"buffer_store_dwordx4 {V(OA[0]+8,4)}, {V(vL16)}, {S(sWS,4)}, {S(sT0)} offen{m}")
    op(f"buffer_store_dwordx4 {V(OA[1]+8,4)}, {V(vL16)}, {S(sWS,4)}, {S(sT1)} offen{m}")
stores_mode(st_o, "o")
vA = 22
op(f"v_and_b32 {V(17)}, 31, {V(vL)}")
op(f"v_lshlrev_b32 {V(17)}, 1, {V(17)}")
op(f"s_min_u32 {S(sT1)}, {S(sM)}, 13")
op(f"s_lshl_b32 {S(sT1)}, {S(sT1)}, 8")
op(f"s_lshl_b32 {S(sT2)}, {S(sW)}, 6")
op(f"s_add_u32 {S(sT1)}, {S(sT1)}, {S(sT2)}")
op(f"buffer_load_ushort {V(14)}, {V(17)}, {S(sB1,4)}, {S(sT1)} offen")
def w1_tr_addr():
    op(f"v_bfe_u32 {V(17)}, {V(vL)}, 2, 2")
    op(f"v_lshlrev_b32 {V(vA)}, 8, {V(17)}")
    op(f"v_lshl_add_u32 {V(vA)}, {V(17)}, 6, {V(vA)}")
    op(f"v_bfe_u32 {V(17)}, {V(vL)}, 4, 1")
    op(f"v_lshl_add_u32 {V(vA)}, {V(17)}, 5, {V(vA)}")
    op(f"v_and_b32 {V(17)}, 3, {V(vL)}")
    op(f"v_lshl_add_u32 {V(vA)}, {V(17)}, 3, {V(vA)}")
    op(f"v_lshrrev_b32 {V(17)}, 5, {V(vL)}")
    op(f"v_lshl_add_u32 {V(vA)}, {V(17)}, 10, {V(vA)}")
w1_tr_addr()
op(f"s_lshl_b32 {S(sT1)}, {S(sW)}, 6")
op(f"v_xor_b32 {V(26)}, {S(sT1)}, {V(vA)}")
op(f"v_add_u32 {V(27)}, 0x10000, {V(26)}")
c0, c1 = 28, 29
op(f"v_mov_b32 {V(c0)}, 0")
op(f"v_mov_b32 {V(c1)}, 0")
vT2a, vT2b = 30, 31
wo_like_addr(vT2a, vT2b, S(sS2L), L_S2)
vWDk = [vWD, 15, 21, 191]
for k in range(2, 4):
    op(f"v_add_u32 {V(vWDk[k])}, {k*(8192-1024)}, {V(vWD)}")
trtok = {}
def w2_round_tr(r):
    o = []
    for s in range(3):
        o += tr_step_ops(lambda k, s=s: A(8*(3*r+s)+k, 2), s, vT2a, vT2b)
    return o
def w2_tr(r):
    if "w" in XK and 3 <= r <= 5: return []
    trs = w2_round_tr(r)
    def first():
        e.wait_tok(w2tok[r][-1]); e.ops(trs[0:2])
    def last():
        op(trs[10]); trtok[r] = op(trs[11])
    return [first] + [lambda k=k: e.ops(trs[k:k+2]) for k in range(2, 10, 2)] + [last]
def w2_dma(r):
    if "w" in XK and 3 <= r <= 6: return []
    d = w2_round_dma(r)
    return [lambda: (e.wait_tok(trtok[r-1]), d[0]())] + d[1:]
group_signal(1)
stamp("o_signaled")
def cs_groups(glo, ghi, buf=32):
    if "c" in XK: return

    for grp in range(glo, ghi + 1):
        if grp < ghi:
            for s in range(4):
                ss = grp*4 + s
                base = 26 if ss < 16 else 27
                for j in range(2):
                    op(f"ds_read_b64_tr_b16 {V(buf+16*(grp%2)+4*s+2*j,2)}, {V(base)} offset:{(ss%16)*4096+j*2048}")
        if grp > glo:
            for k in range(16):
                op(dot_ones(c0 if k % 2 == 0 else c1, buf+16*((grp-1)%2)+k))
for f in w2_tr(0): f()
cs_groups(0, 2)
for f in w2_dma(1): f()
cs_groups(2, 4)
stamp("cs_a")
def mask8():
    op(f"s_and_b32 {S(sT2)}, {S(sM)}, 8")
    op(f"s_lshl_b32 {S(sT2)}, 0xff, {S(sT2)}")
    op(f"s_mov_b32 {S(sT3)}, 0")
group_wait(1, mask8)
stamp("o_ok")

OF, ACC, RT = 32, 96, 160
op(f"s_lshl_b32 {S(sT0)}, {S(sTB)}, 6")
op(f"s_lshl_b32 {S(sT1)}, {S(sW)}, 3")
op(f"s_add_u32 {S(sT0)}, {S(sT0)}, {S(sT1)}")
op(f"s_lshl_b32 {S(sT0)}, {S(sT0)}, 10")
op(f"s_add_u32 {S(sT0)}, {S(sT0)}, {hx(WS_O)}")
def o_load(n):
    t, s = divmod(n, 8)
    if s % 4 == 0:
        op(f"s_add_u32 {S(sT4)}, {S(sT0)}, {t*32768 + s*1024}")
    op(f"buffer_load_dwordx4 {V(OF+4*n,4)}, {V(vL16)}, {S(sWS,4)}, {S(sT4)} offen offset:{(s%4)*1024} sc1")
for n in range(4):
    o_load(n)
fill3 = record(lambda: cs_groups(4, 8, buf=128))
def cf_build():
    op(f"v_add_f32 {V(c0)}, {V(c0)}, {V(c1)}")
    halves_sum(c0, c1)
    split_hi_lo(c0, 128, 129, 17)
    op(f"v_cvt_pk_bf16_f32 {V(129)}, {V(129)}, 0")
    op(f"v_lshl_or_b32 {V(129)}, {V(14)}, 16, {V(129)}")
    op(f"v_mov_b32 {V(130)}, {V(14)}")
    op(f"v_mov_b32 {V(131)}, 0")
    for k in range(4):
        op(f"v_accvgpr_write_b32 {A(224+k)}, {V(128+k)}")
fill3 += record(cf_build)
NP3 = 10
for k in range(6):
    e.ops(spread(fill3, k, 6))
    o_load(4 + k)
for f in w2_tr(1): f()
vRW, vRR = 22, 25
def reduce_addrs(base):
    for q in range(1, 4):
        op(f"s_xor_b32 {S(sT1)}, {S(sW)}, {q}")
        op(f"s_mul_i32 {S(sT1)}, {S(sT1)}, 6144")
        op(f"s_add_u32 {S(sT1)}, {S(sT1)}, {base + (q-1)*2048}")
        op(f"v_add_u32 {V(vRW+q-1)}, {S(sT1)}, {V(vL16)}")
    op(f"s_mul_i32 {S(sT1)}, {S(sW)}, 6144")
    op(f"s_add_u32 {S(sT1)}, {S(sT1)}, {base}")
    op(f"v_add_u32 {V(vRR)}, {S(sT1)}, {V(vL16)}")
def red_write_ops(acc, t, toff):
    o = []
    for q in range(1, 4):
        r = acc + 32*t + 8*q
        o.append(f"ds_write_b128 {V(vRW+q-1)}, {V(r,4)} offset:{toff}")
        o.append(f"ds_write_b128 {V(vRW+q-1)}, {V(r+4,4)} offset:{toff+1024}")
    return o
def red_read_ops(tmp, toff):
    o = []
    for q in range(3):
        o.append(f"ds_read_b128 {V(tmp+8*q,4)}, {V(vRR)} offset:{toff+q*2048}")
        o.append(f"ds_read_b128 {V(tmp+8*q+4,4)}, {V(vRR)} offset:{toff+q*2048+1024}")
    return o
def red_sum_ops(acc, tmp, t, pk):
    r = acc + 32*t
    o = []
    if pk:
        for k in range(4):
            o.append(f"v_pk_add_f32 {V(tmp+2*k,2)}, {V(tmp+2*k,2)}, {V(tmp+8+2*k,2)}")
            o.append(f"v_pk_add_f32 {V(r+2*k,2)}, {V(r+2*k,2)}, {V(tmp+16+2*k,2)}")
        for k in range(4):
            o.append(f"v_pk_add_f32 {V(r+2*k,2)}, {V(r+2*k,2)}, {V(tmp+2*k,2)}")
    else:
        for q in range(3):
            for k in range(8):
                o.append(f"v_add_f32 {V(r+k)}, {V(r+k)}, {V(tmp+8*q+k)}")
    return o
def add_packed_ops(r, pk, tmp, usepk):
    o = []
    for k in range(4):
        o.append(f"v_lshlrev_b32 {V(tmp+2*k)}, 16, {V(pk+k)}")
        o.append(f"v_and_b32 {V(tmp+2*k+1)}, 0xffff0000, {V(pk+k)}")
    if usepk:
        o += [f"v_pk_add_f32 {V(r+2*k,2)}, {V(r+2*k,2)}, {V(tmp+2*k,2)}" for k in range(4)]
    else:
        o += [f"v_add_f32 {V(r+k)}, {V(r+k)}, {V(tmp+k)}" for k in range(8)]
    return o
pre = [f"s_lshl_b32 s4, {S(sTB)}, 6", f"s_lshl_b32 s5, {S(sHQ)}, 2", "s_add_u32 s4, s4, s5", f"s_add_u32 s4, s4, {S(sW)}",
       "s_lshl_b32 s4, s4, 10", f"s_add_u32 s4, s4, {hx(WS_H)}", "s_add_u32 s5, s4, 32768",
       f"s_lshl_b32 {S(sVA)}, {S(sTB)}, 1", f"s_add_u32 {S(sVA)}, {S(sVA)}, {S(sT_)}", f"s_lshl_b32 {S(sVA)}, {S(sVA)}, 11",
       f"s_lshr_b32 {S(sVB)}, {S(sHQ)}, 1", f"s_lshl_b32 {S(sVB)}, {S(sVB)}, 9", f"s_add_u32 {S(sVA)}, {S(sVA)}, {S(sVB)}",
       f"s_and_b32 {S(sVB)}, {S(sHQ)}, 1", f"s_lshl_b32 {S(sVB)}, {S(sVB)}, 3", f"s_add_u32 {S(sVA)}, {S(sVA)}, {S(sVB)}",
       f"s_add_u32 {S(sVA)}, {S(sVA)}, {hx(WS_ST)}"]
pre += record(lambda: reduce_addrs(L_R3))
pre += [f"v_and_b32 {V(26)}, 31, {V(vL)}", f"v_lshlrev_b32 {V(27)}, 3, {V(26)}", f"v_lshlrev_b32 {V(26)}, 4, {V(26)}",
        f"s_lshl_b32 {S(sT1)}, {S(sW)}, 9", f"s_add_u32 {S(sT1)}, {S(sT1)}, {L_SR}", f"v_add_u32 {V(28)}, {S(sT1)}, {V(27)}",
        f"s_lshl_b32 {S(sT1)}, {S(sT_)}, 8", f"s_add_u32 {S(sT1)}, {S(sT1)}, {L_SR}", f"v_add_u32 {V(27)}, {S(sT1)}, {V(27)}"]
rw0 = red_write_ops(ACC, 0, 0)
for n in range(16):
    t, s = divmod(n, 8)
    for u in range(2):
        d = V(ACC+32*t+16*u, 16)
        mfma(d, V(WO+8*s+4*u,4), V(OF+4*n,4), "0" if s == 0 else d)
        if u == 0 and n + NP3 < 16:
            o_load(n + NP3)
        if n < 8:
            e.ops(spread(pre, 2*n+u, 16))
        if n == 8:
            e.ops(add_packed_ops(ACC, vRES, RT, False)[4*u:4*u+4])
        if n == 9 and u == 0:
            e.wait_tok(trtok[1])
            e.barrier()
        if 10 <= n < 13:
            op(rw0[2*(n-10)+u])
        if n == 13 and u == 1:
            e.wait(lg=0)
            e.barrier()
            e.ops(red_read_ops(RT+8, 0))
        if n == 14:
            e.ops([f"v_add_f32 {V(ACC+k)}, {V(ACC+k)}, {V(RT+k)}" for k in range(4*u, 4*u+4)])
        if n == 15:
            e.ops(add_packed_ops(ACC+32, vRES+4, RT, False)[4*u:4*u+4])
e.ops(red_sum_ops(ACC, RT+8, 0, False)[:8])
e.wait(lg=0)
e.barrier()
e.ops(red_write_ops(ACC, 1, 0))
e.ops(red_sum_ops(ACC, RT+8, 0, False)[8:])
for k in range(4):
    op(f"v_cvt_pk_bf16_f32 {V(vRES+k)}, {V(ACC+2*k)}, {V(ACC+2*k+1)}")
for k in range(4):
    op(f"v_pk_add_f32 {V(ACC+32+2*k,2)}, {V(ACC+32+2*k,2)}, {V(RT+2*k,2)}")
e.wait(lg=0)
e.barrier()
stamp("p3_red")
e.ops(red_read_ops(RT+8, 0))
stores_mode(lambda m: op(f"buffer_store_dwordx4 {V(vRES,4)}, {V(vL16)}, {S(sWS,4)}, s4 offen{m}"), "h")
ST3 = 32
for r in range(ST3, ST3+4):
    op(f"v_mov_b32 {V(r)}, 0")
for k in range(4):
    op(dot_ones(ST3, vRES+k))
    op(dot_sq(ST3+1, vRES+k))
e.ops(red_sum_ops(ACC, RT+8, 1, True))
for k in range(4):
    op(f"v_cvt_pk_bf16_f32 {V(vRES+4+k)}, {V(ACC+32+2*k)}, {V(ACC+32+2*k+1)}")
stores_mode(lambda m: op(f"buffer_store_dwordx4 {V(vRES+4,4)}, {V(vL16)}, {S(sWS,4)}, s5 offen{m}"), "h")
for k in range(4):
    op(dot_ones(ST3+2, vRES+4+k))
    op(dot_sq(ST3+3, vRES+4+k))
for k in range(4):
    op(f"v_mov_b32 {V(ST3+4+k)}, {V(ST3+k)}")
op("s_nop 0")
for k in range(4):
    op(f"v_permlane32_swap_b32 {V(ST3+k)}, {V(ST3+4+k)}")
for k in range(4):
    op(f"v_add_f32 {V(ST3+k)}, {V(ST3+k)}, {V(ST3+4+k)}")
op(f"ds_write_b64 {V(28)}, {V(ST3,2)}")
op(f"ds_write_b64 {V(28)}, {V(ST3+2,2)} offset:256")
e.wait(lg=0)
e.barrier()
for k in range(4):
    op(f"ds_read_b64 {V(ST3+8+2*k,2)}, {V(27)} offset:{k*512}")
op(f"s_lshl_b32 {S(sT1)}, {S(sP)}, 13")
op(f"s_lshl_b32 {S(sT2)}, {S(sT_)}, 10")
op(f"s_add_u32 {S(sT1)}, {S(sT1)}, {S(sT2)}")
op(f"s_add_u32 {S(sT1)}, {S(sT1)}, {L_CT}")
op(f"v_add_u32 {V(17)}, {S(sT1)}, {V(vL16)}")
op(f"ds_write_b128 {V(17)}, {A(224,4)}")
op(f"v_pk_add_f32 {V(ST3+8,2)}, {V(ST3+8,2)}, {V(ST3+10,2)}")
op(f"v_pk_add_f32 {V(ST3+12,2)}, {V(ST3+12,2)}, {V(ST3+14,2)}")
op(f"v_pk_add_f32 {V(ST3+8,2)}, {V(ST3+8,2)}, {V(ST3+12,2)}")
op(f"s_mov_b64 exec, {S(sLOW,2)}")
stores_mode(lambda m: op(f"buffer_store_dwordx2 {V(ST3+8,2)}, {V(26)}, {S(sWS,4)}, {S(sVA)} offen{m}"), "h")
op("s_mov_b64 exec, -1")
e.wait(lg=0)
group_signal(2)
stamp("h_signaled")
vWDk = [vWD, 15, 21, 248]
op(f"v_add_u32 {V(vWDk[3])}, {3*(8192-1024)}, {V(vWD)}")
d2 = w2_round_dma(2)
for f in d2: f()
op(f"s_cmp_ge_u32 {S(sM)}, 14")
op("s_cbranch_scc1 L_p4_skip")

w1_tr_addr()
for nb in range(1, 4):
    op(f"v_xor_b32 {V(vA+nb)}, {nb << 6}, {V(vA)}")
HB, GA, RING4 = 32, 160, 224
STV = 208
op(f"s_lshl_b32 s4, {S(sG)}, 2")
op(f"s_add_u32 s4, s4, {S(sW)}")
op(f"s_lshl_b32 s5, s4, 11")
op(f"s_add_u32 s5, s5, {hx(WS_ST)}")
op(f"s_mul_i32 {S(sVB)}, s4, 112")
op(f"s_lshl_b32 s4, s4, 15")
op(f"s_add_u32 {S(sVA)}, s4, {hx(WS_H)}")
sG0, sG1 = 49, 58
op(f"s_lshl_b32 {S(sT1)}, {S(sM)}, 3")
op(f"s_add_u32 {S(sG0)}, {S(sG0)}, {S(sT1)}")
op(f"s_lshl_b32 {S(sG0)}, {S(sG0)}, 10")
op(f"s_add_u32 {S(sG0)}, {S(sG0)}, {hx(WS_G)}")
op(f"s_add_u32 {S(sG1)}, {S(sG0)}, 4096")
vCT = 14
op(f"v_add_u32 {V(vCT)}, {L_CT}, {V(vL16)}")
SF4, vKK, vSG, TP = 244, 18, 26, 252
NS, LA = 5, 4
def mask16():
    op(f"s_mov_b32 {S(sT2)}, 0xffff")
    op(f"s_mov_b32 {S(sT3)}, 0")
seq = []
for s in range(32):
    seq += [(0, s), (1, s)]
NB0 = 12
seq += [(2, s) for s in range(NB0)] + [(0, 'r'), (1, 'r')] + [(2, s) for s in range(NB0, 32)] + [(2, 'r')]
seq += [(3, s) for s in range(32)] + [(3, 'r')]
hi_state = {nb: False for nb in range(4)}
def frag_read(n):
    nb, s = seq[n]
    d = RING4 + 4*(n % NS)
    if s == 'r':
        op(f"ds_read_b128 {V(d,4)}, {V(vCT)} offset:{ct_off(nb)}")
        return
    if s >= 16 and not hi_state[nb]:
        op(f"v_add_u32 {V(vA+nb)}, 0x10000, {V(vA+nb)}")
        hi_state[nb] = True
    op(f"ds_read_b64_tr_b16 {V(d,2)}, {V(vA+nb)} offset:{(s%16)*4096}")
    op(f"ds_read_b64_tr_b16 {V(d+2,2)}, {V(vA+nb)} offset:{(s%16)*4096+2048}")
for n in range(LA):
    frag_read(n)
group_wait(2, mask16)
stamp("h_ok")
def epoch_bump():
    D = e.fresh("nobump")
    op(f"s_cmp_lg_u32 {S(sM)}, 0")
    op(f"s_cbranch_scc1 {D}")
    op(f"s_add_u32 {S(sT1)}, {S(sELO)}, 1")
    op(f"v_mov_b32 {V(18)}, {S(sT1)}")
    op(f"s_lshl_b32 {S(sT1)}, {S(sG)}, 3")
    op(f"v_mov_b32 {V(17)}, 0")
    op("s_mov_b64 exec, 1")
    op(f"buffer_store_dword {V(18)}, {V(17)}, {S(sWS,4)}, {S(sT1)} offen offset:{WS_E} sc1")
    op("s_mov_b64 exec, -1")
    e.label(D)
def h_load(n):
    if n < 32:
        if n % 4 == 0:
            op(f"s_add_u32 s4, {S(sVA)}, {n*1024}")
        op(f"buffer_load_dwordx4 {V(HB+4*n,4)}, {V(vL16)}, {S(sWS,4)}, s4 offen offset:{(n%4)*1024} sc1")
    else:
        k = n - 32
        op(f"buffer_load_dwordx4 {V(STV+4*k,4)}, {V(vL16)}, {S(sWS,4)}, s5 offen offset:{k*1024} sc1")
NPRE = 9
for n in range(NPRE):
    h_load(n)
    if n == 3:
        wave0(epoch_bump)
    if n >= 4:
        pass
for f in w2_tr(2): f()
def frag_mfma(n):
    nb, s = seq[n]
    d = V(GA+16*nb, 16)
    b = V(SF4,4) if s == 'r' else V(HB+4*s,4)
    mfma(d, V(RING4+4*(n % NS),4), b, "0" if s == 0 else d)
def gelu_plain(nb, i):
    if "g" in XK: return []
    a0 = GA + 16*nb; a = a0 + 2*i; T = TP
    o = [f"v_mul_f32 {V(T+k)}, {V(a+k)}, {V(a+k)}" for k in range(2)]
    o += [f"v_fma_f32 {V(T+k)}, {V(T+k)}, {V(vKK+1)}, {V(vKK)}" for k in range(2)]
    o += [f"v_mul_f32 {V(T+k)}, {V(T+k)}, {V(a+k)}" for k in range(2)]
    o += [f"v_exp_f32 {V(T+k)}, {V(T+k)}" for k in range(2)]
    o += [f"v_fma_f32 {V(T+k)}, {V(T+k)}, {V(vSG)}, {V(vSG)}" for k in range(2)]
    o += [f"v_rcp_f32 {V(T+k)}, {V(T+k)}" for k in range(2)]
    o += [f"v_mul_f32 {V(T+k)}, {V(T+k)}, {V(a+k)}" for k in range(2)]
    o.append(f"v_cvt_pk_bf16_f32 {V(a0+i)}, {V(T)}, {V(T+1)}")
    return o
def gelu_pk(items):
    if "G" in XK: return ["s_nop 0"]
    o = []
    for x in range(0, len(items), 2):
        prs = [(GA+16*nb+2*i, TP+2*k, GA+16*nb+i) for k, (nb, i) in enumerate(items[x:x+2])]
        for a, T, d in prs: o.append(f"v_pk_mul_f32 {V(T,2)}, {V(a,2)}, {V(a,2)}")
        for a, T, d in prs: o.append(f"v_pk_fma_f32 {V(T,2)}, {V(T,2)}, {V(vKK,2)}, {V(vKK,2)} op_sel:[0,1,0] op_sel_hi:[1,1,0]")
        for a, T, d in prs: o.append(f"v_pk_mul_f32 {V(T,2)}, {V(T,2)}, {V(a,2)}")
        for a, T, d in prs: o += [f"v_exp_f32 {V(T)}, {V(T)}", f"v_exp_f32 {V(T+1)}, {V(T+1)}"]
        for a, T, d in prs: o.append(f"v_pk_fma_f32 {V(T,2)}, {V(T,2)}, {V(vSG,2)}, {V(vSG,2)} op_sel_hi:[1,0,0]")
        for a, T, d in prs: o += [f"v_rcp_f32 {V(T)}, {V(T)}", f"v_rcp_f32 {V(T+1)}, {V(T+1)}"]
        for a, T, d in prs: o.append(f"v_pk_mul_f32 {V(T,2)}, {V(T,2)}, {V(a,2)}")
        for a, T, d in prs: o.append(f"v_cvt_pk_bf16_f32 {V(d)}, {V(T)}, {V(T+1)}")
    return o
def g_store(nbs):
    def st(m):
        for nb in nbs:
            so = S(sG0) if nb < 2 else S(sG1)
            op(f"buffer_store_dwordx4 {V(GA+16*nb,4)}, {V(vL16)}, {S(sWS,4)}, {so} offen offset:{(nb%2)*2048}{m}")
            op(f"buffer_store_dwordx4 {V(GA+16*nb+4,4)}, {V(vL16)}, {S(sWS,4)}, {so} offen offset:{(nb%2)*2048+1024}{m}")
    stores_mode(st, "g")
C1 = -2.0 * math.log2(math.e) * math.sqrt(2.0/math.pi)
def stats4_ops():
    s0, q0, t0, t1 = TP, TP+1, TP+2, TP+3
    t2, t3 = 17, 27
    o = [f"v_add_f32 {V(s0)}, {V(STV)}, {V(STV+2)}", f"v_add_f32 {V(q0)}, {V(STV+1)}, {V(STV+3)}",
         f"v_add_f32 {V(t0)}, {V(STV+4)}, {V(STV+6)}", f"v_add_f32 {V(t1)}, {V(STV+5)}, {V(STV+7)}",
         f"v_add_f32 {V(s0)}, {V(s0)}, {V(t0)}", f"v_add_f32 {V(q0)}, {V(q0)}, {V(t1)}"]
    o += [f"v_mov_b32 {V(t0)}, {V(s0)}", f"v_mov_b32 {V(t1)}, {V(q0)}", f"v_mov_b32 {V(SF4+3)}, 0",
          f"v_permlane32_swap_b32 {V(s0)}, {V(t0)}", f"v_permlane32_swap_b32 {V(q0)}, {V(t1)}",
          f"v_add_f32 {V(s0)}, {V(s0)}, {V(t0)}", f"v_add_f32 {V(q0)}, {V(q0)}, {V(t1)}",
          f"v_mul_f32 {V(s0)}, {hx(f2u(-1.0/512))}, {V(s0)}",
          f"v_mul_f32 {V(q0)}, {hx(f2u(1.0/512))}, {V(q0)}",
          f"v_fma_f32 {V(q0)}, -{V(s0)}, {V(s0)}, {V(q0)}",
          f"v_max_f32 {V(q0)}, 0, {V(q0)}",
          f"v_add_f32 {V(t0)}, {hx(f2u(1e-5))}, {V(q0)}",
          f"v_rsq_f32 {V(t1)}, {V(t0)}",
          f"v_cvt_pk_bf16_f32 {V(t2)}, {V(s0)}, {V(s0)}",
          f"v_mul_f32 {V(q0)}, {V(q0)}, {V(t1)}",
          f"v_mul_f32 {V(q0)}, {V(q0)}, {V(t1)}",
          f"v_add_f32 {V(q0)}, {hx(f2u(1e-5))}, {V(q0)}",
          f"v_rsq_f32 {V(t3)}, {V(q0)}",
          f"v_mul_f32 {V(t0)}, {V(t0)}, {V(t1)}",
          f"v_and_b32 {V(t2)}, 0xffff0000, {V(t2)}",
          f"v_mul_f32 {V(t1)}, {V(t1)}, {V(t3)}",
          f"v_mul_f32 {V(q0)}, {V(q0)}, {V(t3)}",
          f"v_mul_f32 {V(vSG)}, {V(q0)}, {V(t0)}",
          f"v_sub_f32 {V(t2)}, {V(s0)}, {V(t2)}",
          f"v_cvt_pk_bf16_f32 {V(SF4)}, {V(s0)}, {V(t2)}",
          f"v_cvt_pk_bf16_f32 {V(SF4+1)}, {V(s0)}, {V(vSG)}",
          f"v_and_b32 {V(t2)}, 0xffff0000, {V(SF4+1)}",
          f"v_sub_f32 {V(t2)}, {V(vSG)}, {V(t2)}",
          f"v_cvt_pk_bf16_f32 {V(SF4+2)}, {V(t2)}, 0"]
    o += [f"v_cndmask_b32 {V(SF4+k)}, 0, {V(SF4+k)}, {S(sLOW,2)}" for k in range(3)]
    o += [f"v_mul_f32 {V(vKK)}, {hx(f2u(C1))}, {V(t1)}",
          f"v_mul_f32 {V(t0)}, {V(t1)}, {V(t1)}",
          f"v_mul_f32 {V(t0)}, {hx(f2u(0.044715))}, {V(t0)}",
          f"v_mul_f32 {V(vKK+1)}, {V(vKK)}, {V(t0)}"]
    return o
iA = 64
iR0 = seq.index((0, 'r')); iB0 = seq.index((1, 'r')) + 1
iC0 = seq.index((2, 'r')) + 1
NPL_B, NPL_C = 2, 3
st4 = stats4_ops()
fillB = [x for i in range(NPL_B) for x in gelu_plain(0, i)]
fillC = [x for i in range(NPL_C) for x in gelu_plain(2, i)]
sched = {}
def at(n, acts, step=1):
    for k, f in enumerate(acts):
        sched.setdefault(n + k*step, []).append(f)
at(iA - 8, w2_dma(3))
for k in range(8):
    sched.setdefault(iA + 3 + k, []).append(lambda k=k: e.ops(spread(st4, k, 8)))
at(iB0 + 1, w2_tr(3))
at(iB0 + 10, w2_dma(4))
nB = iC0 - (iB0 + 3)
for k in range(nB):
    sched.setdefault(iB0 + 3 + k, []).append(lambda k=k: e.ops(spread(fillB, k, nB)))
at(iC0 + 12, w2_tr(5))
at(iC0 + 22, w2_dma(6))
nC = len(seq) - (iC0 + 2)
for k in range(nC):
    sched.setdefault(iC0 + 2 + k, []).append(lambda k=k: e.ops(spread(fillC, k, nC)))
def weave(ops_, acts, first, step):
    k = 0
    for i, x in enumerate(ops_):
        if i >= first and (i - first) % step == 0 and k < len(acts):
            acts[k](); k += 1
        op(x)
    for f in acts[k:]:
        f()
for n in range(len(seq)):
    if n == iC0:
        stamp("p4_Bm")
        e.ops(gelu_pk([(0, i) for i in range(NPL_B, 8)]))
        g_store((0,))
        weave(gelu_pk([(1, i) for i in range(8)]), w2_tr(4) + w2_dma(5), 16, 8)
        g_store((1,))
        stamp("p4_B")
    if n + LA < len(seq):
        frag_read(n + LA)
    frag_mfma(n)
    nb, s = seq[n]
    if n < iA and nb == 0 and s + NPRE < 34:
        h_load(s + NPRE)
    for f in sched.get(n, []):
        f()
    if n == iA - 1:
        stamp("p4_passA")
stamp("p4_mfma")
e.ops(gelu_pk([(2, i) for i in range(NPL_C, 8)]))
g_store((2,))
e.ops(gelu_pk([(3, i) for i in range(8)]))
g_store((3,))
e.wait(lg=0)
group_signal(3)
stamp("g_signaled")
op("s_branch L_p5")
e.label("L_p4_skip")
for r in range(2, 6):
    for f in w2_tr(r): f()
    for f in w2_dma(r+1): f()
e.barrier()
e.label("L_p5")

op(f"s_lshl_b32 {S(sT4)}, {S(sW)}, 14")
def stage_rest():
    D = e.fresh("nostage")
    op(f"s_cmp_eq_u32 {S(sW)}, 0")
    op(f"s_cbranch_scc1 {D}")
    for a in stage_acts(sW2, S(sT4), 0, S(sS2R), 42*8192, 14, []):
        a()
    op(f"s_mul_i32 {S(sT0)}, {S(sW)}, 5120")
    op(f"s_sub_u32 {S(sT0)}, {S(sT0)}, 5120")
    op(f"s_lshl_b32 {S(sT1)}, {S(sT0)}, 3")
    for a in stage_acts(sW2, S(sT0), 0, S(sT1), 42*8192, 5, []):
        a()
    e.label(D)
stage_rest()
wo_like_addr(26, 27, S(sT4), 0)
L_R5, L_OT = 65536, 114688
reduce_addrs(L_R5)
GB, NG, RT5, ACC5 = 32, 34, 168, 192
op(f"s_mul_i32 s4, {S(sTB)}, 224")
op(f"s_mul_i32 s5, {S(sW)}, 28")
op(f"s_add_u32 s4, s4, s5")
op(f"s_lshl_b32 s4, s4, 10")
op(f"s_add_u32 s4, s4, {hx(WS_G)}")
stamp("w2_issued")
def mask14():
    op(f"s_mov_b32 {S(sT2)}, 0x3fff")
    op(f"s_mov_b32 {S(sT3)}, 0")
group_wait(3, mask14)
stamp("g_ok")
def g_load(n):
    t, s = divmod(n, 28)
    if s % 4 == 0:
        op(f"s_add_u32 s5, s4, {(t*112+s)*1024}")
    return op(f"buffer_load_dwordx4 {V(GB+4*(n%NG),4)}, {V(vL16)}, {S(sWS,4)}, s5 offen offset:{(s%4)*1024} sc1")
NPRE5 = 12
for n in range(NPRE5):
    g_load(n)
rw = red_write_ops(ACC5, 0, 0)
fin0 = red_sum_ops(ACC5, RT5, 0, False) + add_packed_ops(ACC5, vRES, RT5, False) + add_packed_ops(ACC5, vB2, RT5, False) + \
       [f"v_cvt_pk_bf16_f32 {V(vRES+k)}, {V(ACC5+2*k)}, {V(ACC5+2*k+1)}" for k in range(4)]
otw = [f"v_and_b32 {V(17)}, 31, {V(vL)}", f"v_mul_u32_u24 {V(17)}, 144, {V(17)}", f"v_lshrrev_b32 {V(18)}, 5, {V(vL)}",
       f"v_lshl_add_u32 {V(17)}, {V(18)}, 3, {V(17)}", f"s_lshl_b32 {S(sT1)}, {S(sW)}, 5", f"s_add_u32 {S(sT1)}, {S(sT1)}, {L_OT}",
       f"v_add_u32 {V(17)}, {S(sT1)}, {V(17)}",
       f"v_lshrrev_b32 {V(18)}, 3, {V(vL)}", f"v_and_b32 {V(19)}, 7, {V(vL)}", f"v_lshlrev_b32 {V(19)}, 4, {V(19)}",
       f"v_lshl_add_u32 {V(20)}, {V(18)}, 10, {V(19)}", f"v_mul_u32_u24 {V(18)}, 144, {V(18)}", f"v_add_u32 {V(18)}, {V(18)}, {V(19)}",
       f"s_mul_i32 {S(sT1)}, {S(sW)}, {16*144}", f"s_add_u32 {S(sT1)}, {S(sT1)}, {L_OT}", f"v_add_u32 {V(18)}, {S(sT1)}, {V(18)}",
       f"s_lshl_b32 {S(sT0)}, {S(sTB)}, 16", f"s_lshl_b32 {S(sT1)}, {S(sW)}, 14", f"s_add_u32 {S(sT0)}, {S(sT0)}, {S(sT1)}",
       f"s_lshl_b32 {S(sT1)}, {S(sHQ)}, 7", f"s_add_u32 {S(sT0)}, {S(sT0)}, {S(sT1)}", f"s_add_u32 {S(sT1)}, {S(sT0)}, 8192"]
tr6 = w2_round_tr(6)
for n in range(56):
    t, s = divmod(n, 28)
    for u in range(2):
        d = V(ACC5+32*t+16*u, 16)
        mfma(d, A(8*s+4*u,4), V(GB+4*(n%NG),4), "0" if s == 0 else d)
        if u == 0 and n + NPRE5 < 56:
            g_load(n + NPRE5)
        if n < 3:
            e.ops(tr6[4*n+2*u:4*n+2*u+2])
        if n == 3 and u == 1:
            e.barrier()
        if 4 <= n < 11:
            sl = n - 4
            e.ops(tr_step_ops(lambda k, sl=sl: A(8*(21+sl)+k, 2), sl, 26, 27)[2*u:2*u+2])
        if 34 <= n < 37:
            op(rw[2*(n-34)+u])
        if n == 41 and u == 1:
            e.wait(lg=0)
            e.barrier()
            e.ops(red_read_ops(RT5, 0))
        if 44 <= n < 52:
            e.ops(spread(fin0, 2*(n-44)+u, 16))
        if 28 <= n < 34:
            e.ops(spread(otw, 2*(n-28)+u, 12))
        if n == 52 and u == 0:
            op(f"ds_write_b64 {V(17)}, {V(vRES,2)}")
            op(f"ds_write_b64 {V(17)}, {V(vRES+2,2)} offset:16")
        if n == 54:
            e.ops(add_packed_ops(ACC5+32, vRES+4, RT5, False)[4*u:4*u+4])
        if n == 55:
            e.ops(add_packed_ops(ACC5+32, vB2, RT5+8, False)[4*u:4*u+4])
stamp("p5_mfma")
e.ops(red_write_ops(ACC5, 1, 24576))
for k in range(4):
    op(f"v_pk_add_f32 {V(RT5+2*k,2)}, {V(RT5+2*k,2)}, {V(RT5+8+2*k,2)}")
for k in range(4):
    op(f"v_pk_add_f32 {V(ACC5+32+2*k,2)}, {V(ACC5+32+2*k,2)}, {V(RT5+2*k,2)}")
e.wait(lg=0)
e.barrier()
e.ops(red_read_ops(RT5, 24576))
e.ops(red_sum_ops(ACC5, RT5, 1, True))
for k in range(4):
    op(f"v_cvt_pk_bf16_f32 {V(vRES+4+k)}, {V(ACC5+32+2*k)}, {V(ACC5+32+2*k+1)}")
op(f"ds_write_b64 {V(17)}, {V(vRES+4,2)} offset:{32*144}")
op(f"ds_write_b64 {V(17)}, {V(vRES+6,2)} offset:{32*144+16}")
e.wait(lg=0)
e.barrier()
OM = " sc1" if "x" in WT else (" nt" if "n" in WT else "")
op(f"ds_read_b128 {V(32,4)}, {V(18)}")
op(f"ds_read_b128 {V(36,4)}, {V(18)} offset:{8*144}")
op(f"buffer_store_dwordx4 {V(32,4)}, {V(20)}, {S(sOUT,4)}, {S(sT0)} offen{OM}")
op(f"buffer_store_dwordx4 {V(36,4)}, {V(20)}, {S(sOUT,4)}, {S(sT1)} offen{OM}")
if PROF:
    e.wait(vm=0)
    stamp("end")
    op(f"s_memtime {S(sPA,2)}")
    e.wait(lg=0)
    op(f"v_writelane_b32 {V(vST)}, {S(sPA)}, 61")
    op(f"s_lshl_b32 {S(sT0)}, {S(sG)}, 4")
    op(f"s_add_u32 {S(sT0)}, {S(sT0)}, {S(sM)}")
    op(f"s_lshl_b32 {S(sT0)}, {S(sT0)}, 2")
    op(f"s_add_u32 {S(sT0)}, {S(sT0)}, {S(sW)}")
    op(f"s_lshl_b32 {S(sT0)}, {S(sT0)}, 8")
    op(f"s_add_u32 {S(sT0)}, {S(sT0)}, {hx(WS_PROF)}")
    op(f"v_writelane_b32 {V(vST)}, {S(sFAST)}, 62")
    op(f"s_getreg_b32 {S(sT1)}, hwreg(HW_REG_HW_ID)")
    op(f"v_writelane_b32 {V(vST)}, {S(sT1)}, 63")
    op(f"v_lshlrev_b32 {V(17)}, 2, {V(vL)}")
    op(f"buffer_store_dword {V(vST)}, {V(17)}, {S(sWS,4)}, {S(sT0)} offen")
e.label("L_end")
op("s_endpgm")

hdr = open("cdna_kernels/" + NAME + ".s.ref").read().split("; Override launch")[0]
txt = hdr
txt += "; One persistent launch: 256 workgroups (one per CU), five phases handed over through d_ws.\n"
txt += f"; @launch grid=(256,1,1) block=(256,1,1) lds={LDS_BYTES}\n"
txt += f""".amdgcn_target "amdgcn-amd-amdhsa--gfx950"
.text
.globl {KERNEL}
.p2align 8
.type {KERNEL},@function
{KERNEL}:
"""
txt += e.text()
txt += f"""L_code_end:
.section .rodata,"a"
.p2align 6
.amdhsa_kernel {KERNEL}
  .amdhsa_next_free_vgpr 512
  .amdhsa_next_free_sgpr 102
  .amdhsa_accum_offset 256
  .amdhsa_group_segment_fixed_size 0
  .amdhsa_kernarg_size 88
  .amdhsa_user_sgpr_count 2
  .amdhsa_user_sgpr_kernarg_segment_ptr 1
  .amdhsa_system_sgpr_workgroup_id_x 1
  .amdhsa_float_denorm_mode_32 3
.end_amdhsa_kernel
"""
out = [a for a in sys.argv[1:] if a.endswith(".s")]
open(out[0] if out else "out.s", "w").write(txt)
print("instructions", e.n_ins, "nops", e.n_nop, file=sys.stderr)
if PROF:
    open("stamps.txt", "w").write("\n".join(stamp_names) + "\n")
```
